```python
import torch

def _softmax(x, axis=-1):
    return torch.softmax(x, dim=axis)
def _gelu(x):
    return torch.nn.functional.gelu(x, approximate="tanh")
def _silu(x):
    return torch.nn.functional.silu(x)
def _sigmoid(x):
    return torch.sigmoid(x)
def _layernorm(x, axis=-1, eps=1e-5):
    m = x.mean(dim=axis, keepdim=True)
    v = x.var(dim=axis, keepdim=True, unbiased=False)
    return (x - m) / torch.sqrt(v + eps)
def _scatter_add(tgt, idx, src, axis=0):
    return tgt.clone().index_add_(axis, idx, src)
def _segment_sum(src, seg, n):
    out = torch.zeros((n,) + src.shape[1:], dtype=src.dtype)
    return out.index_add_(0, seg, src)
def _pad(x, pw):
    flat = tuple(v for pair in reversed(pw) for v in pair)
    return torch.nn.functional.pad(x, flat)

kernel_name = 'gated_mix__softmax_full_mha__ssm_conv_s4__prompt'

def setup_inputs():

    _w = (lambda a: (lambda t: t.to(torch.bfloat16) if t.is_floating_point() else t)(torch.as_tensor(a)))
    def _A_setup():
        B, S, D = 1, 2048, 640
        return {
            "x": _w((lambda *s: torch.randn(*s, dtype=torch.bfloat16) * 0.05)(B, S, D)),
            "wqkv": _w((lambda *s: torch.randn(*s, dtype=torch.bfloat16) * 0.8)(D, 3 * D)),
            "wo": _w((lambda *s: torch.randn(*s, dtype=torch.bfloat16) * 0.05)(D, D)),
        }
    _A_in = _A_setup()

    def _B_setup():
        B, L, D, N = 1, 2048, 640, 128
        A_re = -(lambda _x: torch.exp(torch.as_tensor(_x)))((lambda *s: torch.randn(*s, dtype=torch.bfloat16) * 6.4)(D, N))
        A_im = torch.pi * (lambda *s: torch.randn(*s, dtype=torch.bfloat16) * 0.1)(D, N)
        B_re = (lambda *s: torch.randn(*s, dtype=torch.bfloat16) * 0.2)(D, N)
        B_im = (lambda *s: torch.randn(*s, dtype=torch.bfloat16) * 0.2)(D, N)
        C_re = (lambda *s: torch.randn(*s, dtype=torch.bfloat16) * 0.2)(D, N)
        C_im = (lambda *s: torch.randn(*s, dtype=torch.bfloat16) * 0.2)(D, N)
        log_dt = (lambda *s: torch.randn(*s, dtype=torch.bfloat16) * 0.1)(D) * 0.5 - 4.0
        Dskip = (lambda *s: torch.randn(*s, dtype=torch.bfloat16) * 0.1)(D)
        return {
            "u": _w((lambda *s: torch.randn(*s, dtype=torch.bfloat16) * 0.05)(B, L, D)),
            "A_re": _w(A_re),
            "A_im": _w(A_im),
            "B_re": _w(B_re),
            "B_im": _w(B_im),
            "C_re": _w(C_re),
            "C_im": _w(C_im),
            "log_dt": _w(log_dt),
            "Dskip": _w(Dskip),
        }
    _B_in = _B_setup()

    return {
        "A_x": _A_in["x"],
        "A_wqkv": _A_in["wqkv"],
        "A_wo": _A_in["wo"],
        "B_u": _B_in["u"],
        "B_A_re": _B_in["A_re"],
        "B_A_im": _B_in["A_im"],
        "B_B_re": _B_in["B_re"],
        "B_B_im": _B_in["B_im"],
        "B_C_re": _B_in["C_re"],
        "B_C_im": _B_in["C_im"],
        "B_log_dt": _B_in["log_dt"],
        "B_Dskip": _B_in["Dskip"],
        "gate_w": _w((lambda *s: torch.randn(*s, dtype=torch.bfloat16) * 0.05)(640) * 16.0),
    }

def reference(A_x, A_wqkv, A_wo, B_u, B_A_re, B_A_im, B_B_re, B_B_im, B_C_re, B_C_im, B_log_dt, B_Dskip, gate_w):
    def _A_ref(x, wqkv, wo):
        B, S, D = x.shape
        H = 32; Dh = D // H
        qkv = (lambda x, *d: x.permute(*d))((x @ wqkv).reshape(B, S, 3, H, Dh), 2, 0, 3, 1, 4)
        q, k, v = qkv[0], qkv[1], qkv[2]
        scale = Dh ** -0.5
        scores = torch.einsum("bhqd,bhkd->bhqk", q, k) * scale
        p = _softmax(scores, axis=-1)
        o = torch.einsum("bhqk,bhkd->bhqd", p, v)
        return (lambda x, *d: x.permute(*d))(o, 0, 2, 1, 3).reshape(B, S, D) @ wo

    def _B_ref(u, A_re, A_im, B_re, B_im, C_re, C_im, log_dt, Dskip):
        Bsz, L, D = u.shape
        dt = torch.exp(log_dt)[:, None]
        A = A_re + 1j * A_im
        Bc = B_re + 1j * B_im
        Cc = C_re + 1j * C_im
        logdA = dt * A
        dB = dt * Bc
        l = (lambda x, dt: x.to(dt))(torch.arange(L), A_re.dtype)
        P = torch.exp(logdA[:, :, None] * l[None, None, :])
        K = torch.einsum("dn,dnl,dn->dl", Cc, P, dB).real
        L2 = 2 * L
        Kp = _pad(K, ((0, 0), (0, L)))
        up = (lambda x, *d: x.permute(*d))(u, 0, 2, 1)
        up = _pad(up, ((0, 0), (0, 0), (0, L)))
        Kf = (lambda x, axes=(-2,-1): torch.fft.rfft2(x.float(), dim=axes))(Kp[:, None, :], axes=(-2, -1))
        Uf = (lambda x, axes=(-2,-1): torch.fft.rfft2(x.float(), dim=axes))(up[:, :, None, :], axes=(-2, -1))
        Yf = Uf * Kf[None, :, :, :]
        y = (lambda x, s, axes=(-2,-1): torch.fft.irfft2(x, s=s, dim=axes).to(torch.bfloat16))(Yf, (1, L2), axes=(-2, -1))[:, :, 0, :L]
        y = (lambda x, *d: x.permute(*d))(y, 0, 2, 1) + u * Dskip[None, None, :]
        return y

    x = A_x
    g = _sigmoid((x * gate_w).sum(-1, keepdims=True))
    a = _A_ref(x, A_wqkv, A_wo)
    b = _B_ref(x, B_A_re, B_A_im, B_B_re, B_B_im, B_C_re, B_C_im, B_log_dt, B_Dskip)
    return g * a + (1 - g) * b
```

```python
import re

def v(i, n=1):
    return f"v{i}" if n == 1 else f"v[{i}:{i+n-1}]"
def s(i, n=1):
    return f"s{i}" if n == 1 else f"s[{i}:{i+n-1}]"

_reg_re = re.compile(r"^(-|\|)?(abs\()?-?([vsa])(?:(\d+)|\[(\d+):(\d+)\])\)?\|?$")
def parse_reg(tok):
    tok = tok.strip()
    if tok in ("vcc",): return [("s", 106), ("s", 107)]
    if tok == "vcc_lo": return [("s", 106)]
    if tok == "vcc_hi": return [("s", 107)]
    if tok == "exec": return [("s", 126), ("s", 127)]
    if tok == "exec_lo": return [("s", 126)]
    if tok == "exec_hi": return [("s", 127)]
    if tok == "m0": return [("s", 124)]
    m = _reg_re.match(tok)
    if not m: return []
    k = m.group(3)
    if m.group(4) is not None:
        return [(k, int(m.group(4)))]
    return [(k, i) for i in range(int(m.group(5)), int(m.group(6)) + 1)]

TRANS = ("v_exp_f32", "v_log_f32", "v_rcp_f32", "v_rsq_f32", "v_sqrt_f32", "v_sin_f32", "v_cos_f32", "v_exp_f16", "v_rcp_iflag_f32")

class Ins:
    def __init__(self, text):
        self.text = text
        t = text.split(";")[0].strip()
        parts = t.split(None, 1)
        self.op = parts[0]
        rest = parts[1] if len(parts) > 1 else ""
        ops = []; cur = ""; depth = 0
        for ch in rest:
            if ch in "[(": depth += 1
            if ch in "])": depth -= 1
            if ch == "," and depth == 0:
                ops.append(cur.strip()); cur = ""
            else: cur += ch
        if cur.strip(): ops.append(cur.strip())
        self.mods = ""
        if ops:
            last = ops[-1].split(None, 1)
            ops[-1] = last[0]
            if len(last) > 1: self.mods = last[1]
        self.ops = ops
        op = self.op
        self.kind = "other"
        self.defs = []; self.uses = []; self.srcC = []; self.storedata = []
        R = [parse_reg(o) for o in ops]
        if op.startswith("v_mfma"):
            self.kind = "mfma"
            self.defs = R[0]; self.uses = R[1] + R[2] + R[3]; self.srcC = R[3]; self.srcAB = R[1] + R[2]
            self.passes = 4 if "16x16" in op else 8
        elif op.startswith("v_cmp"):
            self.kind = "valu"; self.defs = R[0]; self.uses = sum(R[1:], [])
        elif op in ("v_readfirstlane_b32", "v_readlane_b32"):
            self.kind = "valu"; self.defs = R[0]; self.uses = sum(R[1:], [])
        elif op.startswith("v_permlane32_swap") or op.startswith("v_permlane16_swap"):
            self.kind = "valu"; self.defs = R[0] + R[1]; self.uses = R[0] + R[1]
        elif op.startswith("v_"):
            self.kind = "valu"
            nd = 1
            if op.startswith(("v_add_co", "v_sub_co", "v_addc_co", "v_subb_co", "v_mad_u64", "v_div_scale")): nd = 2
            self.defs = sum(R[:nd], []); self.uses = sum(R[nd:], [])
            if op.startswith(("v_fmac", "v_dot2c", "v_pk_fmac")) or "UNUSED_PRESERVE" in self.mods or "row_" in self.mods or "quad_perm" in self.mods: self.uses += R[0]
            if op.startswith("v_cndmask") and len(ops) == 3: self.uses += parse_reg("vcc")
        elif op.startswith("ds_"):
            self.kind = "ds"
            if op.startswith(("ds_read", "ds_bpermute", "ds_swizzle")) :
                self.defs = R[0]; self.uses = sum(R[1:], [])
            else:
                self.uses = sum(R, [])
        elif op.startswith("buffer_") or op.startswith("global_"):
            self.kind = "vmem"
            isl = " lds" in (" " + self.mods) or "_lds_" in op
            if "load" in op and not isl:
                self.defs = R[0]; self.uses = sum(R[1:], [])
            else:
                self.uses = sum(R, [])
                if "store" in op and ("x4" in op or "x3" in op):
                    self.storedata = R[0] if op.startswith("buffer_") else R[1]
            if isl: self.uses += parse_reg("m0"); self.lds = True
        elif op.startswith("s_"):
            self.kind = "salu"
            if op in ("s_nop", "s_waitcnt", "s_barrier", "s_endpgm", "s_setprio", "s_branch", "s_sleep") or op.startswith(("s_cbranch", "s_cmp")):
                self.uses = sum(R, [])
            else:
                self.defs = R[0] if R else []
                self.uses = sum(R[1:], [])
                if "saveexec" in op: self.defs = self.defs + parse_reg("exec")
        self.lds = getattr(self, "lds", False)
        self.dpp = self.kind == "valu" and ("row_" in self.mods or "quad_perm" in self.mods or "wave_" in self.mods)
        self.ws = 1
        if op == "s_nop": self.ws = int(ops[0], 0) + 1

def need(p, c):
    n = 0
    pd = set(p.defs)
    cu = set(c.uses); cd = set(c.defs)
    if p.kind == "valu":
        vd = {r for r in pd if r[0] in "va"}
        sd = {r for r in pd if r[0] == "s"}
        if c.kind == "mfma" and vd & cu: n = max(n, 2)
        if p.op in TRANS and c.kind in ("valu",) and c.op not in TRANS and vd & cu: n = max(n, 1)
        if p.op in TRANS and c.kind == "valu" and vd & cu: n = max(n, 1)
        if c.op in ("v_readfirstlane_b32", "v_readlane_b32") and vd & cu: n = max(n, 1)
        if c.op.startswith("v_permlane") and vd & cu: n = max(n, 2)
        if c.dpp and vd & cu: n = max(n, 2)
        if sd:
            if c.kind == "vmem" and sd & cu: n = max(n, 5)
            if c.kind == "valu" and sd & cu: n = max(n, 2)
            if c.op in ("v_readlane_b32", "v_writelane_b32") and sd & cu: n = max(n, 4)
            if c.kind == "salu" and sd & cu: n = max(n, 1)
        if ("sdwa" in p.op or "op_sel" in p.mods) and not p.op.startswith("v_pk_") and c.kind == "valu" and vd & (cu | cd): n = max(n, 1)
    if p.op.startswith("v_dot") and c.op != p.op and pd & (cu | cd): n = max(n, 3)
    if p.kind == "mfma":
        big = {4: 8, 8: 12}[p.passes]
        if c.kind == "mfma":
            if pd & set(c.srcAB): n = max(n, big)
            if pd & set(c.srcC):
                if set(c.srcC) == pd and c.passes == p.passes: pass
                else: n = max(n, {4: 6, 8: 10}[p.passes])
            if pd & cd and not (set(c.srcC) == pd):
                n = max(n, 0)
        elif c.kind in ("valu", "vmem", "ds"):
            if pd & (cu | cd): n = max(n, big)
        if c.kind == "valu" and set(p.srcC) & cd: n = max(n, {4: 3, 8: 7}[p.passes])
    if p.storedata and c.kind in ("valu", "mfma", "ds", "vmem") and set(p.storedata) & cd: n = max(n, 2)
    if p.kind == "salu" and ("s", 124) in pd and c.lds: n = max(n, 1)
    return n

class Asm:
    def __init__(self):
        self.lines = []
        self.win = []
        self.nops = 0
    def raw(self, text):
        self.lines.append(("raw", text))
    def label(self, name):
        self.lines.append(("label", name))
    def c(self, text):
        self.lines.append(("raw", "    ; " + text))
    def __call__(self, text):
        for ln in text.strip().split("\n"):
            ln = ln.strip()
            if not ln or ln.startswith(";"): continue
            if ln.endswith(":"):
                self.label(ln[:-1]); continue
            self.ins(ln)
    def ins(self, text):
        i = Ins(text)
        dist = 0; req = 0
        for p in reversed(self.win):
            nd = need(p, i)
            if nd - dist > req: req = nd - dist
            dist += p.ws
            if dist >= 20: break
        if req > 0:
            nop = Ins(f"s_nop {req-1}")
            self.lines.append(("ins", nop)); self.win.append(nop); self.nops += 1
        self.lines.append(("ins", i)); self.win.append(i)
        if len(self.win) > 40: self.win = self.win[-40:]
        if i.op in ("s_endpgm", "s_branch"): self.win = []
    def check_branches(self):
        idx = {}
        for n, (t, p) in enumerate(self.lines):
            if t == "label": idx[p] = n
        errs = []
        for n, (t, p) in enumerate(self.lines):
            if t == "ins" and (p.op.startswith("s_cbranch") or p.op == "s_branch"):
                tgt = p.ops[0]
                pre = [q for (tt, q) in self.lines[max(0, n - 30):n + 1] if tt == "ins"]
                post = []
                for (tt, q) in self.lines[idx[tgt]:idx[tgt] + 40]:
                    if tt == "ins":
                        post.append(q)
                        if q.op in ("s_branch", "s_endpgm"): break
                for ci, cns in enumerate(post):
                    d0 = sum(q.ws for q in post[:ci])
                    if d0 >= 20: break
                    dist = d0
                    for pr in reversed(pre):
                        nd = need(pr, cns)
                        if nd > dist: errs.append((p.text, pr.text, cns.text, nd, dist))
                        dist += pr.ws
                        if dist >= 20: break
        return errs
    def text(self):
        out = []
        for t, p in self.lines:
            if t == "raw": out.append(p)
            elif t == "label": out.append(p + ":")
            else: out.append("    " + p.text)
        return "\n".join(out) + "\n"

def kernel_header(a, name):
    a.raw(".text"); a.raw(f".globl {name}"); a.raw(".p2align 8"); a.raw(f".type {name},@function")
    a.label(name); a.win = []

def kernel_desc(a, name, vgpr, sgpr=102):
    acc = (vgpr + 3) // 4 * 4
    a.raw(f""".section .rodata,"a"
.p2align 6
.amdhsa_kernel {name}
  .amdhsa_next_free_vgpr {vgpr}
  .amdhsa_next_free_sgpr {sgpr}
  .amdhsa_accum_offset {acc}
  .amdhsa_group_segment_fixed_size 0
  .amdhsa_kernarg_size 128
  .amdhsa_user_sgpr_count 2
  .amdhsa_user_sgpr_kernarg_segment_ptr 1
  .amdhsa_system_sgpr_workgroup_id_x 1
.end_amdhsa_kernel""")
```

```python
from asmlib import *
from layout import *
import struct, math

def f2u(x): return struct.unpack("<I", struct.pack("<f", x))[0]

def srd(a, d, ptr, size):
    a(f"s_mov_b32 s{d}, s{ptr}")
    a(f"s_and_b32 s{d+1}, s{ptr+1}, 0xffff")
    a(f"s_mov_b32 s{d+2}, {size}")
    a(f"s_mov_b32 s{d+3}, 0x20000")

def common_prologue(a):
    a("s_load_dwordx16 s[16:31], s[0:1], 0")
    a("s_load_dwordx16 s[32:47], s[0:1], 64")
    a("v_lshrrev_b32 v1, 6, v0")
    a("v_and_b32 v0, 63, v0")
    a("v_readfirstlane_b32 s3, v1")
    a("s_waitcnt lgkmcnt(0)")
    srd(a, 48, 46, WS_SIZE)

SWS = "s[48:51]"

def gemm_role(a):
    a("s_and_b32 s4, s2, 7")
    a("s_lshr_b32 s5, s2, 3")
    a("s_and_b32 s6, s4, 1")
    a("s_mul_i32 s6, s6, 30")
    a("s_add_u32 s6, s6, s5")
    a("s_lshr_b32 s7, s6, 2")
    a("s_and_b32 s6, s6, 3")
    a("s_lshr_b32 s4, s4, 1")
    a("s_lshl_b32 s4, s4, 2")
    a("s_add_u32 s8, s4, s6")
    srd(a, 52, 16, 2048 * 1280)
    srd(a, 56, 18, 640 * 3840)
    SX = "s[52:55]"; SW = "s[56:59]"
    a(f"s_mul_i32 s9, s8, {128*1280}")
    a("s_lshl_b32 s10, s7, 8")
    a("s_lshl_b32 s11, s3, 12")
    XO = 4; WO = 8; XA = 12; XAH = 16; WA = 20; WAH = 22; EA = 24; T = 32
    XF = 40; WF = 56; ACC = 72
    a(f"v_lshrrev_b32 v{T}, 3, v0")
    a(f"s_lshl_b32 s12, s3, 5")
    a(f"v_add_u32 v{T}, s12, v{T}")
    a(f"v_mul_u32_u24 v{T}, 1280, v{T}")
    a(f"v_lshrrev_b32 v{T+1}, 4, v0")
    a(f"v_and_b32 v{T+2}, 7, v0")
    a(f"v_xor_b32 v{T+2}, v{T+2}, v{T+1}")
    a(f"v_lshl_add_u32 v{XO}, v{T+2}, 4, v{T}")
    a(f"v_xor_b32 v{T+2}, 4, v{T+2}")
    a(f"v_lshl_add_u32 v{XO+1}, v{T+2}, 4, v{T}")
    a(f"v_add_u32 v{XO+1}, {10240-1024}, v{XO+1}")
    a(f"v_add_u32 v{XO+2}, {2*(10240-1024)}, v{XO}")
    a(f"v_add_u32 v{XO+3}, {2*(10240-1024)}, v{XO+1}")
    a(f"s_lshl_b32 s12, s3, 4")
    a(f"v_add_u32 v{T}, s12, v{T+1}")
    a(f"v_mul_u32_u24 v{T}, 3840, v{T}")
    a(f"v_and_b32 v{T+2}, 15, v0")
    a(f"v_lshlrev_b32 v{T+3}, 2, v{T+1}")
    a(f"v_xor_b32 v{T+2}, v{T+2}, v{T+3}")
    a(f"v_lshl_add_u32 v{WO}, v{T+2}, 4, v{T}")
    for e in range(1, 4):
        a(f"v_add_u32 v{WO+e}, {e*(15360-1024)}, v{WO}")
    def dma(i):
        c = i // 2; slot = i % 5
        a(f"s_add_u32 m0, s11, {slot*16384}")
        if i % 2 == 0:
            a(f"s_add_u32 s12, s9, {c*128}")
            for e in range(4):
                a(f"buffer_load_dwordx4 v{XO+e}, {SX}, s12 offen offset:{e*1024} lds")
        else:
            a(f"s_add_u32 s12, s10, {c*64*3840}")
            for e in range(4):
                a(f"buffer_load_dwordx4 v{WO+e}, {SW}, s12 offen offset:{e*1024} lds")
    for i in range(5): dma(i)
    a("s_lshr_b32 s13, s3, 1")
    a("s_and_b32 s14, s3, 1")
    a(f"v_and_b32 v{T}, 31, v0")
    a(f"v_lshrrev_b32 v{T+1}, 5, v0")
    a(f"v_bfe_u32 v{T+2}, v0, 1, 3")
    a(f"v_xor_b32 v{T+2}, v{T+2}, v{T+1}")
    a(f"v_lshlrev_b32 v{T+2}, 4, v{T+2}")
    a(f"v_lshl_add_u32 v{T+2}, v{T}, 7, v{T+2}")
    a("s_lshl_b32 s12, s13, 13")
    a(f"v_add_u32 v{XA}, s12, v{T+2}")
    for ks in range(1, 4):
        a(f"v_xor_b32 v{XA+ks}, {ks*32}, v{XA}")
    for ks in range(4):
        a(f"v_add_u32 v{XAH+ks}, 0x10000, v{XA+ks}")
    a(f"v_bfe_u32 v{T+2}, v0, 2, 2")
    a(f"v_lshl_add_u32 v{T+3}, v{T+1}, 3, v{T+2}")
    a(f"v_lshlrev_b32 v{T+3}, 8, v{T+3}")
    a(f"v_and_b32 v{T+4}, 3, v0")
    a(f"v_lshl_add_u32 v{T+3}, v{T+4}, 3, v{T+3}")
    a(f"v_bfe_u32 v{T+4}, v0, 4, 1")
    a(f"v_lshl_add_u32 v{T+3}, v{T+4}, 5, v{T+3}")
    a("s_lshl_b32 s12, s14, 1")
    a(f"v_xor_b32 v{T+4}, s12, v{T+2}")
    a(f"v_lshl_add_u32 v{WA}, v{T+4}, 6, v{T+3}")
    a(f"v_xor_b32 v{WA+1}, 64, v{WA}")
    a(f"v_add_u32 v{WAH}, 0x10000, v{WA}")
    a(f"v_add_u32 v{WAH+1}, 0x10000, v{WA+1}")
    a("s_lshl_b32 s15, s8, 2")
    a("s_lshl_b32 s12, s13, 1")
    a("s_add_u32 s15, s15, s12")
    a("s_mul_i32 s15, s15, 1280")
    a("s_cmp_ge_u32 s7, 10")
    a("s_cbranch_scc1 K1_GEMM_V")

    def reads(c, ks, buf):
        sx = (2 * c) % 5; sw = (2 * c + 1) % 5
        for rb in range(2):
            reg, off = (XA + ks, sx * 16384) if sx < 4 else (XAH + ks, 0)
            a(f"ds_read_b128 {v(XF+buf*8+rb*4,4)}, v{reg} offset:{off + rb*4096}")
        for cb in range(2):
            reg, off = (WA + cb, sw * 16384) if sw < 4 else (WAH + cb, 0)
            for s_ in range(2):
                a(f"ds_read_b64_tr_b16 {v(WF+buf*8+cb*4+s_*2,2)}, v{reg} offset:{off + ks*4096 + s_*1024}")
    def mfmas(orient, buf, first):
        for rb in range(2):
            for cb in range(2):
                acc = v(ACC + (rb * 2 + cb) * 16, 16)
                x = v(XF + buf * 8 + rb * 4, 4); w = v(WF + buf * 8 + cb * 4, 4)
                A, B = (w, x) if orient == "qk" else (x, w)
                a(f"v_mfma_f32_32x32x16_bf16 {acc}, {A}, {B}, {'0' if first else acc}")
    def body(orient):
        a("s_waitcnt vmcnt(12)")
        a("s_barrier")
        reads(0, 0, 0)
        for c in range(10):
            for ks in range(3):
                reads(c, ks + 1, (ks + 1) & 1)
                a("s_waitcnt lgkmcnt(6)")
                mfmas(orient, ks & 1, c == 0 and ks == 0)
            if c < 9:
                a(f"s_waitcnt vmcnt({4 if c <= 7 else 0}) lgkmcnt(0)")
                a("s_barrier")
                for i in (2 * c + 5, 2 * c + 6):
                    if i < 20: dma(i)
                reads(c + 1, 0, 0)
            else:
                a("s_waitcnt lgkmcnt(0)")
            mfmas(orient, 1, False)

    a("s_lshl_b32 s12, s7, 5")
    a("s_lshl_b32 s60, s14, 4")
    a("s_add_u32 s12, s12, s60")
    a(f"v_add_u32 v{T+2}, s12, v{T+1}")
    a(f"v_lshlrev_b32 v{T+6}, 4, v{T}")
    a(f"v_lshl_add_u32 v{T+7}, v{T}, 3, 0")
    a(f"v_add_u32 v{T+7}, 1024, v{T+7}")
    a(f"s_mov_b32 s61, {HS}")
    for cb in range(2):
        for qd in range(4):
            e = EA + cb * 4 + qd
            a(f"v_add_u32 v{T+3}, {8*cb+2*qd}, v{T+2}")
            a(f"v_mul_u32_u24 v{T+4}, 205, v{T+3}")
            a(f"v_lshrrev_b32 v{T+4}, 10, v{T+4}")
            a(f"v_mul_u32_u24 v{T+5}, 5, v{T+4}")
            a(f"v_sub_u32 v{T+3}, v{T+3}, v{T+5}")
            a(f"v_cmp_eq_u32 vcc, 4, v{T+3}")
            a(f"v_lshrrev_b32 v{T+5}, 1, v{T+3}")
            a(f"v_lshl_add_u32 v{T+5}, v{T+5}, 9, v{T+6}")
            a(f"v_and_b32 v{T+3}, 1, v{T+3}")
            a(f"v_lshl_add_u32 v{T+5}, v{T+3}, 3, v{T+5}")
            a(f"v_cndmask_b32 v{T+5}, v{T+5}, v{T+7}, vcc")
            a(f"v_mad_u32_u24 v{e}, v{T+4}, s61, v{T+5}")
    qs = (20 ** -0.5) * math.log2(math.e)
    a(f"s_mov_b32 s62, {f2u(qs)}")
    a("s_cmp_ge_u32 s7, 5")
    a("s_cselect_b32 s62, 1.0, s62")
    body("qk")
    for rb in range(2):
        for cb in range(2):
            ac = ACC + (rb * 2 + cb) * 16
            for qd in range(4):
                r = ac + qd * 4
                for i in range(4): a(f"v_mul_f32 v{r+i}, s62, v{r+i}")
                a(f"v_cvt_pk_bf16_f32 v{r}, v{r}, v{r+1}")
                a(f"v_cvt_pk_bf16_f32 v{r+1}, v{r+2}, v{r+3}")
                a(f"buffer_store_dwordx2 {v(r,2)}, v{EA+cb*4+qd}, {SWS}, s15 offen offset:{rb*1280}")
    a("s_endpgm")
    a.label("K1_GEMM_V")
    a("s_sub_u32 s12, s7, 10")
    a("s_lshl_b32 s12, s12, 7")
    a("s_lshl_b32 s60, s14, 6")
    a("s_add_u32 s12, s12, s60")
    a(f"s_mov_b32 s61, {HS}")
    a(f"v_mul_u32_u24 v{T+6}, 320, v{T+1}")
    for cb in range(2):
        a(f"v_add_u32 v{T+3}, s12, v{T}")
        if cb: a(f"v_add_u32 v{T+3}, 32, v{T+3}")
        a(f"v_mul_u32_u24 v{T+4}, 3277, v{T+3}")
        a(f"v_lshrrev_b32 v{T+4}, 16, v{T+4}")
        a(f"v_mul_u32_u24 v{T+5}, 20, v{T+4}")
        a(f"v_sub_u32 v{T+3}, v{T+3}, v{T+5}")
        a(f"v_lshl_add_u32 v{T+5}, v{T+3}, 4, v{T+6}")
        a(f"v_mad_u32_u24 v{EA+cb}, v{T+4}, s61, v{T+5}")
    a(f"s_add_u32 s15, s15, {VF}")
    body("v")
    for rb in range(2):
        for cb in range(2):
            ac = ACC + (rb * 2 + cb) * 16
            for g in range(2):
                r = ac + g * 8
                for i in range(4): a(f"v_cvt_pk_bf16_f32 v{r+i}, v{r+2*i}, v{r+2*i+1}")
                a(f"buffer_store_dwordx4 {v(r,4)}, v{EA+cb}, {SWS}, s15 offen offset:{rb*1280+g*640}")
    a("s_endpgm")

def gate_role(a):
    srd(a, 52, 16, 2048 * 1280)
    SX = "s[52:55]"
    G = 8; X = 32; ACC = 192; T = 2
    a("s_sub_u32 s4, s2, 240")
    a("s_lshl_b32 s4, s4, 2")
    a("s_add_u32 s4, s4, s3")
    a(f"s_mul_i32 s5, s4, {32*1280}")
    a(f"v_and_b32 v{T}, 15, v0")
    a(f"v_lshlrev_b32 v{T+1}, 4, v{T}")
    for e in range(5):
        a(f"global_load_dwordx4 {v(G+4*e,4)}, v{T+1}, s[40:41] offset:{e*256}")
    a(f"v_lshrrev_b32 v{T+2}, 4, v0")
    a(f"v_mul_u32_u24 v{T+3}, 1280, v{T+2}")
    a(f"v_add_u32 v{T+3}, v{T+3}, v{T+1}")
    for grp in range(8):
        for e in range(5):
            a(f"buffer_load_dwordx4 {v(X+grp*20+e*4,4)}, v{T+3}, {SX}, s5 offen offset:{e*256}")
        if grp < 7: a(f"s_add_u32 s5, s5, {4*1280}")
    for grp in range(8):
        a(f"v_mov_b32 v{ACC+grp}, 0")
    for grp in range(8):
        a(f"s_waitcnt vmcnt({(7-grp)*5})")
        for i in range(20):
            a(f"v_dot2c_f32_bf16 v{ACC+grp}, v{X+grp*20+i}, v{G+i}")
    for sh in (8, 4, 2, 1):
        for grp in range(8):
            a(f"v_add_f32_dpp v{ACC+grp}, v{ACC+grp}, v{ACC+grp} row_ror:{sh} row_mask:0xf bank_mask:0xf")
    for k in range(1, 8):
        a(f"v_cmp_eq_u32 vcc, {k}, v{T}")
        a(f"v_cndmask_b32 v{ACC}, v{ACC}, v{ACC+k}, vcc")
    R = ACC
    a(f"v_cvt_pk_bf16_f32 v{R}, v{R}, v{R}")
    a(f"v_lshlrev_b32 v{R}, 16, v{R}")
    a(f"v_mul_f32 v{R}, {f2u(-math.log2(math.e))}, v{R}")
    a(f"v_exp_f32 v{R}, v{R}")
    a(f"v_add_f32 v{R}, 1.0, v{R}")
    a(f"v_rcp_f32 v{R}, v{R}")
    a(f"v_cvt_pk_bf16_f32 v{R}, v{R}, v{R}")
    a(f"v_lshlrev_b32 v{R}, 16, v{R}")
    a(f"v_lshl_add_u32 v{T+3}, v{T}, 2, v{T+2}")
    a(f"v_lshlrev_b32 v{T+3}, 2, v{T+3}")
    a("s_lshl_b32 s5, s4, 7")
    a(f"s_add_u32 s5, s5, {GT}")
    a(f"v_cmp_gt_u32 vcc, 8, v{T}")
    a("s_and_saveexec_b64 s[6:7], vcc")
    a(f"buffer_store_dword v{R}, v{T+3}, {SWS}, s5 offen")
    a("s_endpgm")

def cmul(a, d, x, y):
    a(f"v_pk_mul_f32 {v(d,2)}, {v(x,2)}, {v(y,2)} op_sel:[0,0] op_sel_hi:[0,1]")
    a(f"v_pk_fma_f32 {v(d,2)}, {v(x,2)}, {v(y,2)}, {v(d,2)} op_sel:[1,1,0] op_sel_hi:[1,0,1] neg_lo:[0,1,0]")

def cmul2(a, d, x, y):
    for o in (0, 2):
        a(f"v_pk_mul_f32 {v(d+o,2)}, {v(x+o,2)}, {v(y+o,2)} op_sel:[0,0] op_sel_hi:[0,1]")
    for o in (0, 2):
        a(f"v_pk_fma_f32 {v(d+o,2)}, {v(x+o,2)}, {v(y+o,2)}, {v(d+o,2)} op_sel:[1,1,0] op_sel_hi:[1,0,1] neg_lo:[0,1,0]")

def kgen_role(a):
    log2e = math.log2(math.e)
    a("s_sub_u32 s4, s2, 256")
    a("s_lshl_b32 s4, s4, 2")
    a("s_add_u32 s4, s4, s3")
    a("s_lshl_b32 s5, s4, 8")
    T = 2
    P = 8
    a(f"v_lshl_add_u32 v{T}, v0, 2, s5")
    for i, pr in enumerate((24, 26, 28, 30, 32, 34)):
        a(f"global_load_dword v{P+i}, v{T}, s[{pr}:{pr+1}]")
    a("s_lshl_b32 s6, s4, 1")
    a(f"v_mov_b32 v{T+1}, s6")
    a(f"global_load_ushort v{P+6}, v{T+1}, s[36:37]")
    SL = 528
    a("s_mul_i32 s7, s3, 8448+3328")
    WRA = 16; RDA = 17; TB0 = 18; TB1 = 19; TB2 = 20
    a(f"v_lshl_add_u32 v{WRA}, v0, 3, s7")
    a(f"v_and_b32 v{T+2}, 15, v0")
    a(f"v_lshrrev_b32 v{T+3}, 4, v0")
    a(f"v_mul_u32_u24 v{RDA}, {SL}, v{T+2}")
    a(f"v_lshl_add_u32 v{RDA}, v{T+3}, 4, v{RDA}")
    a(f"v_add_u32 v{RDA}, s7, v{RDA}")
    a("s_add_u32 s8, s7, 8448")
    a(f"v_lshlrev_b32 v{TB0}, 4, v{T+2}")
    a(f"v_lshl_add_u32 v{TB0}, v{T+3}, 2, v{TB0}")
    a(f"v_lshl_add_u32 v{TB0}, v{TB0}, 2, s8")
    a(f"v_lshlrev_b32 v{T+4}, 3, v{T+2}")
    a(f"v_lshl_add_u32 v{T+4}, v{T+3}, 2, v{T+4}")
    a(f"v_add_u32 v{T+4}, 256, v{T+4}")
    a(f"v_lshlrev_b32 v{T+5}, 2, v{T+2}")
    a(f"v_lshl_add_u32 v{T+5}, v{T+3}, 6, v{T+5}")
    a(f"v_add_u32 v{T+5}, 256, v{T+5}")
    a(f"v_cmp_gt_u32 vcc, 32, v0")
    a(f"v_cndmask_b32 v{TB1}, v{T+5}, v{T+4}, vcc")
    a(f"v_lshl_add_u32 v{TB1}, v{TB1}, 2, s8")
    a(f"v_lshlrev_b32 v{T+4}, 1, v{T+2}")
    a(f"v_lshl_add_u32 v{T+4}, v{T+3}, 6, v{T+4}")
    a(f"v_add_u32 v{T+4}, 512, v{T+4}")
    a(f"v_mov_b32 v{T+5}, 704")
    a(f"v_cmp_ge_u32 vcc, 32, v0")
    a(f"v_cndmask_b32 v{TB2}, v{T+5}, v{T+4}, vcc")
    a(f"v_lshl_add_u32 v{TB2}, v{TB2}, 2, s8")
    a("s_waitcnt vmcnt(0)")
    DT = 21
    hi = struct.unpack("<f", struct.pack("<f", log2e))[0]; lo = log2e - hi
    a(f"v_lshlrev_b32 v{T}, 16, v{P+6}")
    a(f"s_mov_b32 s9, {f2u(hi)}")
    a(f"v_mul_f32 v{T+1}, s9, v{T}")
    a(f"v_fma_f32 v{T+2}, v{T}, s9, -v{T+1}")
    a(f"v_mov_b32 v{T+3}, {f2u(lo)}")
    a(f"v_fmac_f32 v{T+2}, v{T}, v{T+3}")
    a(f"v_exp_f32 v{T+1}, v{T+1}")
    a(f"v_mul_f32 v{T+2}, {f2u(math.log(2.0))}, v{T+2}")
    a(f"v_fma_f32 v{T+1}, v{T+1}, v{T+2}, v{T+1}")
    a(f"v_cvt_pk_bf16_f32 v{DT}, v{T+1}, v{T+1}")
    a(f"v_lshlrev_b32 v{DT}, 16, v{DT}")
    A_ = 24; B_ = 28; C_ = 32; W_ = 36
    for grp, (re_, im_) in ((A_, (P, P + 1)), (B_, (P + 2, P + 3)), (C_, (P + 4, P + 5))):
        a(f"v_lshlrev_b32 v{grp}, 16, v{re_}")
        a(f"v_lshlrev_b32 v{grp+1}, 16, v{im_}")
        a(f"v_and_b32 v{grp+2}, 0xffff0000, v{re_}")
        a(f"v_and_b32 v{grp+3}, 0xffff0000, v{im_}")
    for i in range(4):
        a(f"v_mul_f32 v{A_+i}, v{DT}, v{A_+i}")
        a(f"v_mul_f32 v{B_+i}, v{DT}, v{B_+i}")
    cmul2(a, W_, C_, B_)
    a(f"s_mov_b32 s10, {f2u(1.0/(2*math.pi))}")
    for o in (0, 2):
        a(f"v_mul_f32 v{A_+o}, s9, v{A_+o}")
        a(f"v_mul_f32 v{A_+o+1}, s10, v{A_+o+1}")
    Z1 = 40; Z16 = 44; Z256 = 48
    def base(dst, n):
        E = 52
        a(f"s_mov_b32 s11, {f2u(float(n))}")
        for o in (0, 2):
            if n != 1:
                a(f"v_mul_f32 v{E+o}, s11, v{A_+o}")
                a(f"v_mul_f32 v{E+o+1}, s11, v{A_+o+1}")
                a(f"v_fract_f32 v{E+o+1}, v{E+o+1}")
                a(f"v_exp_f32 v{E+o}, v{E+o}")
            else:
                a(f"v_fract_f32 v{E+o+1}, v{A_+o+1}")
                a(f"v_exp_f32 v{E+o}, v{A_+o}")
        for o in (0, 2):
            a(f"v_cos_f32 v{dst+o}, v{E+o+1}")
            a(f"v_sin_f32 v{dst+o+1}, v{E+o+1}")
        for o in (0, 2):
            a(f"v_pk_mul_f32 {v(dst+o,2)}, {v(dst+o,2)}, {v(E+o,2)} op_sel:[0,0] op_sel_hi:[1,0]")
    base(Z16, 16)
    PK = 58
    cnt = [0]
    def put(src, slot, neg=False):
        p = PK + 2 * (cnt[0] & 1); cnt[0] += 1
        n = "-" if neg else ""
        a(f"v_cvt_pk_bf16_f32 v{p}, v{src}, {n}v{src+1}")
        a(f"v_cvt_pk_bf16_f32 v{p+1}, v{src+2}, {n}v{src+3}")
        a(f"ds_write_b64 v{WRA}, {v(p,2)} offset:{slot*SL}")
    CA = 64; CB = 68
    put(W_, 0, True)
    cur = W_
    for j in range(1, 16):
        nxt = CA if cur != CA else CB
        cmul2(a, nxt, cur, Z16)
        put(nxt, j, True)
        cur = nxt
    RF = 96
    for s_ in range(8):
        a(f"ds_read_b128 {v(RF+4*s_,4)}, v{RDA} offset:{64*s_}")
    base(Z1, 1)
    base(Z256, 256)
    EV = 128
    ONE = 72
    a(f"v_mov_b32 v{ONE}, 0x3f80")
    a(f"v_mov_b32 v{ONE+1}, 0x3f80")
    a(f"ds_write_b64 v{WRA}, {v(ONE,2)} offset:0")
    put(Z1, 1)
    cur = Z1
    for j in range(2, 16):
        nxt = EV + 4 * (j // 2 - 1) if j % 2 == 0 else CA
        cmul2(a, nxt, cur, Z1)
        put(nxt, j)
        cur = nxt
    LF = 160
    D = 76
    def tile(t):
        for s_ in range(8):
            a(f"ds_read_b128 {v(LF+4*s_,4)}, v{RDA} offset:{64*s_}")
    def tile_mfma(t):
        for s_ in range(8):
            a(f"s_waitcnt lgkmcnt({7-s_})") if False else None
        a("s_waitcnt lgkmcnt(0)")
        for s_ in range(8):
            a(f"v_mfma_f32_16x16x32_bf16 {v(D+4*t,4)}, {v(LF+4*s_,4)}, {v(RF+4*s_,4)}, {'0' if s_==0 else v(D+4*t,4)}")
    ev = lambda j: EV + 4 * (j // 2 - 1)
    tile(0)
    Z512 = 88; Z768 = 92
    cmul2(a, Z512, Z256, Z256)
    cmul2(a, Z768, Z512, Z256)
    tile_mfma(0)
    put(Z256, 0)
    for m in range(1, 8):
        cmul2(a, CA, Z256, ev(2 * m)); put(CA, m)
    for k, zb in ((8, Z512), (12, Z768)):
        put(zb, k)
        for i in range(1, 4):
            cmul2(a, CA, zb, ev(4 * i)); put(CA, k + i)
    tile(1)
    Z1024 = 88;
    cmul2(a, CB, Z512, Z512)
    tile_mfma(1)
    cur = CB
    oth = {CB: 92, 92: CB}
    for aa in range(4):
        put(cur, 2 * aa)
        cmul2(a, CA, cur, ev(8)); put(CA, 2 * aa + 1)
        nxt = oth[cur]
        cmul2(a, nxt, cur, Z256)
        cur = nxt
    put(cur, 8)
    tile(2)
    tile_mfma(2)
    TP = 96
    for t in range(3):
        for r in range(4):
            a(f"v_cvt_pk_bf16_f32 v{TP+4*t+r}, v{D+4*t+r}, v{D+4*t+r}")
    a(f"ds_write_b128 v{TB0}, {v(TP,4)}")
    a(f"ds_write_b128 v{TB1}, {v(TP+4,4)}")
    a(f"ds_write_b64 v{TB2}, {v(TP+8,2)}")
    a(f"ds_write_b64 v{TB2}, {v(TP+10,2)} offset:128")
    RA = 2
    a(f"v_lshlrev_b32 v{RA}, 3, v0")
    a(f"v_lshlrev_b32 v{RA+1}, 2, v0")
    a(f"v_add_u32 v{RA+2}, 128, v{RA+1}")
    a(f"v_cmp_gt_u32 vcc, 32, v0")
    a(f"v_cndmask_b32 v{RA}, v{RA+2}, v{RA}, vcc")
    a(f"v_lshl_add_u32 v{RA}, v{RA}, 2, s8")
    a(f"v_lshl_add_u32 v{RA+2}, v0, 3, s8")
    a(f"v_add_u32 v{RA+1}, s8, v{RA+1}")
    E0 = 112; E1 = 120; E2 = 124; E3 = 126
    a(f"ds_read_b128 {v(E0,4)}, v{RA}")
    a(f"ds_read_b128 {v(E0+4,4)}, v{RA} offset:16")
    a(f"ds_read_b64 {v(E1,2)}, v{RA+2} offset:{384*4}")
    a(f"ds_read_b32 v{E1+2}, v{RA+2} offset:{384*4+8}")
    a(f"ds_read_b32 v{E2}, v{RA+1} offset:{512*4}")
    a(f"ds_read_b32 v{E2+1}, v{RA+1} offset:{513*4}")
    a(f"ds_read_b32 v{E3}, v{RA+1} offset:{576*4}")
    a(f"ds_read_b32 v{E3+1}, v{RA+1} offset:{577*4}")
    a(f"v_lshlrev_b32 v{RA+3}, 4, v0")
    a(f"v_sub_u32 v{RA+3}, {63*16}, v{RA+3}")
    a(f"s_mul_i32 s12, s4, {KCS}")
    a(f"s_add_u32 s12, s12, {KC}")
    a("s_mov_b32 s13, 0xffff")
    a(f"v_and_b32 v{RA+4}, 1, v0")
    a(f"v_sub_u32 v{RA+4}, 0, v{RA+4}")
    a(f"v_or_b32 v{RA+4}, 0xffff, v{RA+4}")
    O = 128
    a("s_waitcnt lgkmcnt(0)")
    a(f"v_bfi_b32 v{O}, s13, v{E0+4}, v{E0+3}")
    a(f"v_mov_b32 v{O+1}, v{E0+2}")
    a(f"v_bfi_b32 v{O+2}, s13, v{E0+2}, v{E0+1}")
    a(f"v_mov_b32 v{O+3}, v{E0}")
    a("s_mov_b64 exec, 0xffffffff")
    for i in range(4):
        a(f"v_bfi_b32 v{O+i}, s13, v{E0+7-2*i}, v{E0+6-2*i}")
    a("s_mov_b64 exec, -1")
    a(f"buffer_store_dwordx4 {v(O,4)}, v{RA+3}, {SWS}, s12 offen offset:{192*16}")
    a(f"v_mov_b32 v{O+4}, v{E1+2}")
    a(f"v_mov_b32 v{O+5}, v{E1+1}")
    a(f"v_bfi_b32 v{O+6}, s13, v{E1+1}, v{E1}")
    a(f"v_mov_b32 v{O+7}, v{E1}")
    a(f"buffer_store_dwordx4 {v(O+4,4)}, v{RA+3}, {SWS}, s12 offen offset:{128*16}")
    for u, E in enumerate((E2, E3)):
        o = O + 8 + 4 * u
        a(f"v_mov_b32 v{o}, v{E+1}")
        a(f"v_bfi_b32 v{o+1}, v{RA+4}, v{E+1}, v{E}")
        a(f"v_mov_b32 v{o+2}, v{E}")
        a(f"v_mov_b32 v{o+3}, v{E}")
        a(f"buffer_store_dwordx4 {v(o,4)}, v{RA+3}, {SWS}, s12 offen offset:{(64-64*u)*16}")
    for i in range(4): a(f"v_mov_b32 v{O+16+i}, 0")
    a(f"v_mov_b32 v{RA}, 4096")
    a("s_mov_b64 exec, 1")
    a(f"buffer_store_dwordx4 {v(O+16,4)}, v{RA}, {SWS}, s12 offen")
    a("s_endpgm")

def trans_role(a):
    a("s_sub_u32 s4, s2, 416")
    a("s_lshl_b32 s4, s4, 2")
    a("s_add_u32 s4, s4, s3")
    a("s_mul_i32 s7, s3, 10240")
    a("s_cmp_ge_u32 s4, 320")
    a("s_cbranch_scc1 K1_WOT")
    srd(a, 52, 16, 2048 * 1280)
    SX = "s[52:55]"
    T = 2
    a("s_mul_i32 s5, s4, 205")
    a("s_lshr_b32 s5, s5, 10")
    a("s_mul_i32 s6, s5, 5")
    a("s_sub_u32 s6, s4, s6")
    a(f"s_mul_i32 s8, s5, {32*1280}")
    a("s_lshl_b32 s9, s6, 8")
    a("s_add_u32 s8, s8, s9")
    a(f"v_lshrrev_b32 v{T}, 4, v0")
    a(f"v_and_b32 v{T+1}, 15, v0")
    a(f"v_lshlrev_b32 v{T+2}, 1, v{T}")
    a(f"v_xor_b32 v{T+2}, v{T+2}, v{T+1}")
    a(f"v_mul_u32_u24 v{T+3}, 1280, v{T}")
    a(f"v_lshl_add_u32 v{T+4}, v{T+2}, 4, v{T+3}")
    a(f"v_xor_b32 v{T+2}, 8, v{T+2}")
    a(f"v_lshl_add_u32 v{T+5}, v{T+2}, 4, v{T+3}")
    for e in range(8):
        a(f"s_add_u32 m0, s7, {e*1024}")
        a(f"s_add_u32 s10, s8, {e*4*1280}")
        a(f"buffer_load_dwordx4 v{T+4+((e>>1)&1)}, {SX}, s10 offen lds")
    a(f"v_bfe_u32 v{T+6}, v0, 2, 2")
    a(f"v_lshl_add_u32 v{T+7}, v{T}, 3, v{T+6}")
    a(f"v_lshlrev_b32 v{T+7}, 8, v{T+7}")
    a(f"v_and_b32 v{T+8}, 3, v0")
    a(f"v_lshl_add_u32 v{T+7}, v{T+8}, 3, v{T+7}")
    a(f"v_bfe_u32 v{T+8}, v0, 4, 1")
    a(f"v_lshl_or_b32 v{T+8}, v{T+8}, 2, v{T+6}")
    a(f"v_lshl_add_u32 v{T+7}, v{T+8}, 5, v{T+7}")
    RA = 16
    for cg in range(8):
        a(f"v_xor_b32 v{RA+cg}, {cg*32}, v{T+7}")
        a(f"v_add_u32 v{RA+cg}, s7, v{RA+cg}")
    a(f"v_lshlrev_b32 v{T+9}, 12, v{T+1}")
    a(f"v_lshl_add_u32 v{T+9}, v{T}, 4, v{T+9}")
    a(f"s_lshl_b32 s10, s6, 19")
    a("s_lshl_b32 s11, s5, 6")
    a("s_add_u32 s10, s10, s11")
    a(f"s_add_u32 s10, s10, {XT}")
    a("s_waitcnt vmcnt(0)")
    D = 32
    for cg in range(8):
        for s_ in range(2):
            a(f"ds_read_b64_tr_b16 {v(D+4*cg+2*s_,2)}, v{RA+cg} offset:{s_*1024}")
    for cg in range(8):
        a(f"s_waitcnt lgkmcnt({(7-cg)*2})")
        a(f"buffer_store_dwordx4 {v(D+4*cg,4)}, v{T+9}, {SWS}, s10 offen")
        if cg < 7: a(f"s_add_u32 s10, s10, {16*4096}")
    a("s_endpgm")
    a.label("K1_WOT")
    srd(a, 52, 20, 640 * 1280)
    a("s_sub_u32 s4, s4, 320")
    a("s_mul_i32 s5, s4, 205")
    a("s_lshr_b32 s5, s5, 10")
    a("s_mul_i32 s6, s5, 5")
    a("s_sub_u32 s6, s4, s6")
    a(f"s_mul_i32 s8, s5, {40*1280}")
    a("s_lshl_b32 s9, s6, 8")
    a("s_add_u32 s8, s8, s9")
    a(f"v_lshrrev_b32 v{T}, 4, v0")
    a(f"v_and_b32 v{T+1}, 15, v0")
    a(f"v_lshlrev_b32 v{T+2}, 2, v{T}")
    a(f"v_xor_b32 v{T+2}, v{T+2}, v{T+1}")
    a(f"v_mul_u32_u24 v{T+3}, 1280, v{T}")
    a(f"v_lshl_add_u32 v{T+4}, v{T+2}, 4, v{T+3}")
    for e in range(10):
        a(f"s_add_u32 m0, s7, {e*1024}")
        a(f"s_add_u32 s10, s8, {e*4*1280}")
        a(f"buffer_load_dwordx4 v{T+4}, {SX}, s10 offen lds")
    a(f"v_bfe_u32 v{T+6}, v0, 2, 2")
    a(f"v_lshlrev_b32 v{T+7}, 8, v{T+6}")
    a(f"v_and_b32 v{T+8}, 3, v0")
    a(f"v_lshl_add_u32 v{T+7}, v{T+8}, 3, v{T+7}")
    a(f"v_bfe_u32 v{T+8}, v0, 4, 1")
    a(f"v_lshl_add_u32 v{T+7}, v{T+8}, 5, v{T+7}")
    a(f"v_lshrrev_b32 v{T+8}, 5, v0")
    a(f"v_xor_b32 v{T+8}, v{T+8}, v{T+6}")
    a(f"v_lshl_add_u32 v{T+7}, v{T+8}, 6, v{T+7}")
    a(f"v_xor_b32 v{RA+1}, 128, v{T+7}")
    a(f"v_add_u32 v{RA}, s7, v{T+7}")
    a(f"v_add_u32 v{RA+1}, s7, v{RA+1}")
    a(f"v_lshlrev_b32 v{T+9}, 4, v0")
    a(f"s_mul_i32 s10, s5, {5*10240}")
    a("s_lshl_b32 s11, s6, 11")
    a("s_add_u32 s10, s10, s11")
    a(f"s_add_u32 s10, s10, {WOF}")
    a("s_waitcnt vmcnt(0)")
    rows = [(0, 8), (4, 12), (20, 28), (24, 32), (16, 36)]
    for gi in range(5):
        for cs in range(2):
            for s_ in range(2):
                a(f"ds_read_b64_tr_b16 {v(D+(gi*2+cs)*4+2*s_,2)}, v{RA+cs} offset:{rows[gi][s_]*256}")
        if gi == 2: a("s_waitcnt lgkmcnt(4)")
    a("s_waitcnt lgkmcnt(0)")
    for gi in range(5):
        for cs in range(2):
            a(f"buffer_store_dwordx4 {v(D+(gi*2+cs)*4,4)}, v{T+9}, {SWS}, s10 offen offset:{cs*1024}")
        if gi < 4: a(f"s_add_u32 s10, s10, 10240")
    a("s_endpgm")

LAUNCH = "; @launch kernel=k1_kernel grid=(516,1,1) block=(256,1,1) lds=81920"
def k1(a):
    kernel_header(a, "k1_kernel")
    a("s_cmp_ge_u32 s2, 516")
    a("s_cbranch_scc1 K1_EXIT")
    common_prologue(a)
    a("s_cmp_ge_u32 s2, 416")
    a("s_cbranch_scc1 K1_TRANS")
    a("s_cmp_ge_u32 s2, 256")
    a("s_cbranch_scc1 K1_KGEN")
    a("s_cmp_ge_u32 s2, 240")
    a("s_cbranch_scc1 K1_GATE")
    gemm_role(a)
    a.label("K1_GATE"); gate_role(a)
    a.label("K1_KGEN"); kgen_role(a)
    a.label("K1_TRANS"); trans_role(a)
    a.label("K1_EXIT"); a("s_endpgm")
    kernel_desc(a, "k1_kernel", 200)
```

```python
import sys, importlib
sys.path.insert(0, "g")
from asmlib import *
import k1
NAME = "gated_mix__softmax_full_mha__ssm_conv_s4__prompt"
def build(kernels=("k1","k2","k3"), opts=None):
    ref = open(f"cdna_kernels/{NAME}.s.ref").read().split("\n")
    hdr = [l for l in ref if l.startswith(";") and "@launch" not in l and "Override" not in l and "grid=ceil" not in l]
    a = Asm()
    launches = []
    mods = {}
    for k in kernels:
        mods[k] = importlib.import_module(k)
        launches.append(mods[k].LAUNCH)
    for l in hdr: a.raw(l)
    for l in launches: a.raw(l)
    a.raw('.amdgcn_target "amdgcn-amd-amdhsa--gfx950"')
    for k in kernels:
        getattr(mods[k], k)(a, **(opts or {}).get(k, {}))
    errs = a.check_branches()
    for e in errs: print("BRANCH HAZARD", e)
    return a.text(), a
if __name__ == "__main__":
    ks = sys.argv[2].split(",") if len(sys.argv) > 2 else ("k1","k2","k3")
    txt, a = build(ks)
    out = sys.argv[1] if len(sys.argv) > 1 else f"cdna_kernels/{NAME}.s"
    open(out, "w").write(txt)
    print("written", out, len(txt), "bytes; nops inserted", a.nops)
```

```python
import re

def v(i, n=1):
    return f"v{i}" if n == 1 else f"v[{i}:{i+n-1}]"
def s(i, n=1):
    return f"s{i}" if n == 1 else f"s[{i}:{i+n-1}]"

_reg_re = re.compile(r"^(-|\|)?(abs\()?-?([vsa])(?:(\d+)|\[(\d+):(\d+)\])\)?\|?$")
def parse_reg(tok):
    tok = tok.strip()
    if tok in ("vcc",): return [("s", 106), ("s", 107)]
    if tok == "vcc_lo": return [("s", 106)]
    if tok == "vcc_hi": return [("s", 107)]
    if tok == "exec": return [("s", 126), ("s", 127)]
    if tok == "exec_lo": return [("s", 126)]
    if tok == "exec_hi": return [("s", 127)]
    if tok == "m0": return [("s", 124)]
    m = _reg_re.match(tok)
    if not m: return []
    k = m.group(3)
    if m.group(4) is not None:
        return [(k, int(m.group(4)))]
    return [(k, i) for i in range(int(m.group(5)), int(m.group(6)) + 1)]

TRANS = ("v_exp_f32", "v_log_f32", "v_rcp_f32", "v_rsq_f32", "v_sqrt_f32", "v_sin_f32", "v_cos_f32", "v_exp_f16", "v_rcp_iflag_f32")

class Ins:
    def __init__(self, text):
        self.text = text
        t = text.split(";")[0].strip()
        parts = t.split(None, 1)
        self.op = parts[0]
        rest = parts[1] if len(parts) > 1 else ""
        ops = []; cur = ""; depth = 0
        for ch in rest:
            if ch in "[(": depth += 1
            if ch in "])": depth -= 1
            if ch == "," and depth == 0:
                ops.append(cur.strip()); cur = ""
            else: cur += ch
        if cur.strip(): ops.append(cur.strip())
        self.mods = ""
        if ops:
            last = ops[-1].split(None, 1)
            ops[-1] = last[0]
            if len(last) > 1: self.mods = last[1]
        self.ops = ops
        op = self.op
        self.kind = "other"
        self.defs = []; self.uses = []; self.srcC = []; self.storedata = []
        R = [parse_reg(o) for o in ops]
        if op.startswith("v_mfma"):
            self.kind = "mfma"
            self.defs = R[0]; self.uses = R[1] + R[2] + R[3]; self.srcC = R[3]; self.srcAB = R[1] + R[2]
            self.passes = 4 if "16x16" in op else 8
        elif op.startswith("v_cmp"):
            self.kind = "valu"; self.defs = R[0]; self.uses = sum(R[1:], [])
        elif op in ("v_readfirstlane_b32", "v_readlane_b32"):
            self.kind = "valu"; self.defs = R[0]; self.uses = sum(R[1:], [])
        elif op.startswith("v_permlane32_swap") or op.startswith("v_permlane16_swap"):
            self.kind = "valu"; self.defs = R[0] + R[1]; self.uses = R[0] + R[1]
        elif op.startswith("v_"):
            self.kind = "valu"
            nd = 1
            if op.startswith(("v_add_co", "v_sub_co", "v_addc_co", "v_subb_co", "v_mad_u64", "v_div_scale")): nd = 2
            self.defs = sum(R[:nd], []); self.uses = sum(R[nd:], [])
            if op.startswith(("v_fmac", "v_dot2c", "v_pk_fmac")) or "UNUSED_PRESERVE" in self.mods or "row_" in self.mods or "quad_perm" in self.mods: self.uses += R[0]
            if op.startswith("v_cndmask") and len(ops) == 3: self.uses += parse_reg("vcc")
        elif op.startswith("ds_"):
            self.kind = "ds"
            if op.startswith(("ds_read", "ds_bpermute", "ds_swizzle")) :
                self.defs = R[0]; self.uses = sum(R[1:], [])
            else:
                self.uses = sum(R, [])
        elif op.startswith("buffer_") or op.startswith("global_"):
            self.kind = "vmem"
            isl = " lds" in (" " + self.mods) or "_lds_" in op
            if "load" in op and not isl:
                self.defs = R[0]; self.uses = sum(R[1:], [])
            else:
                self.uses = sum(R, [])
                if "store" in op and ("x4" in op or "x3" in op):
                    self.storedata = R[0] if op.startswith("buffer_") else R[1]
            if isl: self.uses += parse_reg("m0"); self.lds = True
        elif op.startswith("s_"):
            self.kind = "salu"
            if op in ("s_nop", "s_waitcnt", "s_barrier", "s_endpgm", "s_setprio", "s_branch", "s_sleep") or op.startswith(("s_cbranch", "s_cmp")):
                self.uses = sum(R, [])
            else:
                self.defs = R[0] if R else []
                self.uses = sum(R[1:], [])
                if "saveexec" in op: self.defs = self.defs + parse_reg("exec")
        self.lds = getattr(self, "lds", False)
        self.dpp = self.kind == "valu" and ("row_" in self.mods or "quad_perm" in self.mods or "wave_" in self.mods)
        self.ws = 1
        if op == "s_nop": self.ws = int(ops[0], 0) + 1

def need(p, c):
    n = 0
    pd = set(p.defs)
    cu = set(c.uses); cd = set(c.defs)
    if p.kind == "valu":
        vd = {r for r in pd if r[0] in "va"}
        sd = {r for r in pd if r[0] == "s"}
        if c.kind == "mfma" and vd & cu: n = max(n, 2)
        if p.op in TRANS and c.kind in ("valu",) and c.op not in TRANS and vd & cu: n = max(n, 1)
        if p.op in TRANS and c.kind == "valu" and vd & cu: n = max(n, 1)
        if c.op in ("v_readfirstlane_b32", "v_readlane_b32") and vd & cu: n = max(n, 1)
        if c.op.startswith("v_permlane") and vd & cu: n = max(n, 2)
        if c.dpp and vd & cu: n = max(n, 2)
        if sd:
            if c.kind == "vmem" and sd & cu: n = max(n, 5)
            if c.kind == "valu" and sd & cu: n = max(n, 2)
            if c.op in ("v_readlane_b32", "v_writelane_b32") and sd & cu: n = max(n, 4)
            if c.kind == "salu" and sd & cu: n = max(n, 1)
        if ("sdwa" in p.op or "op_sel" in p.mods) and not p.op.startswith("v_pk_") and c.kind == "valu" and vd & (cu | cd): n = max(n, 1)
    if p.op.startswith("v_dot") and c.op != p.op and pd & (cu | cd): n = max(n, 3)
    if p.kind == "mfma":
        big = {4: 8, 8: 12}[p.passes]
        if c.kind == "mfma":
            if pd & set(c.srcAB): n = max(n, big)
            if pd & set(c.srcC):
                if set(c.srcC) == pd and c.passes == p.passes: pass
                else: n = max(n, {4: 6, 8: 10}[p.passes])
            if pd & cd and not (set(c.srcC) == pd):
                n = max(n, 0)
        elif c.kind in ("valu", "vmem", "ds"):
            if pd & (cu | cd): n = max(n, big)
        if c.kind == "valu" and set(p.srcC) & cd: n = max(n, {4: 3, 8: 7}[p.passes])
    if p.storedata and c.kind in ("valu", "mfma", "ds", "vmem") and set(p.storedata) & cd: n = max(n, 2)
    if p.kind == "salu" and ("s", 124) in pd and c.lds: n = max(n, 1)
    return n

class Asm:
    def __init__(self):
        self.lines = []
        self.win = []
        self.nops = 0
        self.instr = False
        self.kidx = 0
    def raw(self, text):
        self.lines.append(("raw", text))
    def label(self, name):
        self.lines.append(("label", name))
    def c(self, text):
        self.lines.append(("raw", "    ; " + text))
    def __call__(self, text):
        for ln in text.strip().split("\n"):
            ln = ln.strip()
            if not ln or ln.startswith(";"): continue
            if ln.endswith(":"):
                self.label(ln[:-1]); continue
            self.ins(ln)
    def tstart(self):
        if not self.instr: return
        self("s_load_dwordx2 s[84:85], s[0:1], 120")
        self("s_memrealtime s[88:89]")
        self("s_memtime s[90:91]")
        for k in range(8): self(f"s_mov_b32 s{64+2*k}, 0")
    def stamp(self, k):
        if self.instr: self(f"s_memtime s[{64+2*k}:{65+2*k}]")
    def end(self):
        if self.instr:
            self("s_waitcnt vmcnt(0)")
            self("s_memrealtime s[92:93]")
            self("s_memtime s[94:95]")
            self("s_mov_b64 exec, 1")
            self("s_waitcnt lgkmcnt(0)")
            self("s_and_b32 s85, s85, 0xffff")
            self("s_mov_b32 s86, 0x1800000")
            self("s_mov_b32 s87, 0x20000")
            self("s_lshl_b32 s96, s2, 4")
            self("s_add_u32 s96, s96, s3")
            self("s_lshl_b32 s96, s96, 6")
            self(f"s_add_u32 s96, s96, {0x1500000 + self.kidx*0x90000}")
            self("v_mov_b32 v0, 0")
            regs = [88, 92, 90, 94] + [64+2*k for k in range(8)]
            for n in range(3):
                for i in range(4): self(f"v_mov_b32 v{4+i}, s{regs[4*n+i]}")
                self(f"buffer_store_dwordx4 v[4:7], v0, s[84:87], s96 offen offset:{16*n}")
                self("s_nop 1")
        self("s_endpgm")
    def ins(self, text):
        i = Ins(text)
        dist = 0; req = 0
        for p in reversed(self.win):
            nd = need(p, i)
            if nd - dist > req: req = nd - dist
            dist += p.ws
            if dist >= 20: break
        if req > 0:
            nop = Ins(f"s_nop {req-1}")
            self.lines.append(("ins", nop)); self.win.append(nop); self.nops += 1
        self.lines.append(("ins", i)); self.win.append(i)
        if len(self.win) > 40: self.win = self.win[-40:]
        if i.op in ("s_endpgm", "s_branch"): self.win = []
    def check_branches(self):
        idx = {}
        for n, (t, p) in enumerate(self.lines):
            if t == "label": idx[p] = n
        errs = []
        for n, (t, p) in enumerate(self.lines):
            if t == "ins" and (p.op.startswith("s_cbranch") or p.op == "s_branch"):
                tgt = p.ops[0]
                pre = [q for (tt, q) in self.lines[max(0, n - 30):n + 1] if tt == "ins"]
                post = []
                for (tt, q) in self.lines[idx[tgt]:idx[tgt] + 40]:
                    if tt == "ins":
                        post.append(q)
                        if q.op in ("s_branch", "s_endpgm"): break
                for ci, cns in enumerate(post):
                    d0 = sum(q.ws for q in post[:ci])
                    if d0 >= 20: break
                    dist = d0
                    for pr in reversed(pre):
                        nd = need(pr, cns)
                        if nd > dist: errs.append((p.text, pr.text, cns.text, nd, dist))
                        dist += pr.ws
                        if dist >= 20: break
        return errs
    def text(self):
        out = []
        for t, p in self.lines:
            if t == "raw": out.append(p)
            elif t == "label": out.append(p + ":")
            else: out.append("    " + p.text)
        return "\n".join(out) + "\n"

def kernel_header(a, name):
    a.raw(".text"); a.raw(f".globl {name}"); a.raw(".p2align 8"); a.raw(f".type {name},@function")
    a.label(name); a.win = []

def kernel_desc(a, name, vgpr, sgpr=102):
    acc = (vgpr + 3) // 4 * 4
    a.raw(f""".section .rodata,"a"
.p2align 6
.amdhsa_kernel {name}
  .amdhsa_next_free_vgpr {vgpr}
  .amdhsa_next_free_sgpr {sgpr}
  .amdhsa_accum_offset {acc}
  .amdhsa_group_segment_fixed_size 0
  .amdhsa_kernarg_size 128
  .amdhsa_user_sgpr_count 2
  .amdhsa_user_sgpr_kernarg_segment_ptr 1
  .amdhsa_system_sgpr_workgroup_id_x 1
.end_amdhsa_kernel""")
```

```python
from asmlib import *
from layout import *
import struct, math

def f2u(x): return struct.unpack("<I", struct.pack("<f", x))[0]

def srd(a, d, ptr, size):
    a(f"s_mov_b32 s{d}, s{ptr}")
    a(f"s_and_b32 s{d+1}, s{ptr+1}, 0xffff")
    a(f"s_mov_b32 s{d+2}, {size}")
    a(f"s_mov_b32 s{d+3}, 0x20000")

def common_prologue(a):
    a("s_load_dwordx16 s[16:31], s[0:1], 0")
    a("s_load_dwordx16 s[32:47], s[0:1], 64")
    a("v_lshrrev_b32 v1, 6, v0")
    a("v_and_b32 v0, 63, v0")
    a("v_readfirstlane_b32 s3, v1")
    a("s_waitcnt lgkmcnt(0)")
    a.stamp(7)
    srd(a, 48, 46, WS_SIZE)

SWS = "s[48:51]"

def gemm_role(a):
    a("s_and_b32 s4, s2, 7")
    a("s_lshr_b32 s5, s2, 3")
    a("s_and_b32 s6, s4, 1")
    a("s_mul_i32 s6, s6, 30")
    a("s_add_u32 s6, s6, s5")
    a("s_lshr_b32 s7, s6, 2")
    a("s_and_b32 s6, s6, 3")
    a("s_lshr_b32 s4, s4, 1")
    a("s_lshl_b32 s4, s4, 2")
    a("s_add_u32 s8, s4, s6")
    srd(a, 52, 16, 2048 * 1280)
    srd(a, 56, 18, 640 * 3840)
    SX = "s[52:55]"; SW = "s[56:59]"
    a(f"s_mul_i32 s9, s8, {128*1280}")
    a("s_lshl_b32 s10, s7, 8")
    a("s_lshl_b32 s11, s3, 12")
    XO = 4; WO = 8; XA = 12; XAH = 16; WA = 20; WAH = 22; EA = 24; T = 32
    XF = 40; WF = 56; ACC = 72
    a(f"v_lshrrev_b32 v{T}, 3, v0")
    a(f"s_lshl_b32 s12, s3, 5")
    a(f"v_add_u32 v{T}, s12, v{T}")
    a(f"v_mul_u32_u24 v{T}, 1280, v{T}")
    a(f"v_lshrrev_b32 v{T+1}, 4, v0")
    a(f"v_and_b32 v{T+2}, 7, v0")
    a(f"v_xor_b32 v{T+2}, v{T+2}, v{T+1}")
    a(f"v_lshl_add_u32 v{XO}, v{T+2}, 4, v{T}")
    a(f"v_xor_b32 v{T+2}, 4, v{T+2}")
    a(f"v_lshl_add_u32 v{XO+1}, v{T+2}, 4, v{T}")
    a(f"v_add_u32 v{XO+1}, {10240-1024}, v{XO+1}")
    a(f"v_add_u32 v{XO+2}, {2*(10240-1024)}, v{XO}")
    a(f"v_add_u32 v{XO+3}, {2*(10240-1024)}, v{XO+1}")
    a(f"s_lshl_b32 s12, s3, 4")
    a(f"v_add_u32 v{T}, s12, v{T+1}")
    a(f"v_mul_u32_u24 v{T}, 3840, v{T}")
    a(f"v_and_b32 v{T+2}, 15, v0")
    a(f"v_lshlrev_b32 v{T+3}, 2, v{T+1}")
    a(f"v_xor_b32 v{T+2}, v{T+2}, v{T+3}")
    a(f"v_lshl_add_u32 v{WO}, v{T+2}, 4, v{T}")
    for e in range(1, 4):
        a(f"v_add_u32 v{WO+e}, {e*(15360-1024)}, v{WO}")
    def dma(i):
        c = i // 2; slot = i % 5
        a(f"s_add_u32 m0, s11, {slot*16384}")
        if i % 2 == 0:
            a(f"s_add_u32 s12, s9, {c*128}")
            for e in range(4):
                a(f"buffer_load_dwordx4 v{XO+e}, {SX}, s12 offen offset:{e*1024} lds")
        else:
            a(f"s_add_u32 s12, s10, {c*64*3840}")
            for e in range(4):
                a(f"buffer_load_dwordx4 v{WO+e}, {SW}, s12 offen offset:{e*1024} lds")
    for i in range(5): dma(i)
    a("s_lshr_b32 s13, s3, 1")
    a("s_and_b32 s14, s3, 1")
    a(f"v_and_b32 v{T}, 31, v0")
    a(f"v_lshrrev_b32 v{T+1}, 5, v0")
    a(f"v_bfe_u32 v{T+2}, v0, 1, 3")
    a(f"v_xor_b32 v{T+2}, v{T+2}, v{T+1}")
    a(f"v_lshlrev_b32 v{T+2}, 4, v{T+2}")
    a(f"v_lshl_add_u32 v{T+2}, v{T}, 7, v{T+2}")
    a("s_lshl_b32 s12, s13, 13")
    a(f"v_add_u32 v{XA}, s12, v{T+2}")
    for ks in range(1, 4):
        a(f"v_xor_b32 v{XA+ks}, {ks*32}, v{XA}")
    for ks in range(4):
        a(f"v_add_u32 v{XAH+ks}, 0x10000, v{XA+ks}")
    a(f"v_bfe_u32 v{T+2}, v0, 2, 2")
    a(f"v_lshl_add_u32 v{T+3}, v{T+1}, 3, v{T+2}")
    a(f"v_lshlrev_b32 v{T+3}, 8, v{T+3}")
    a(f"v_and_b32 v{T+4}, 3, v0")
    a(f"v_lshl_add_u32 v{T+3}, v{T+4}, 3, v{T+3}")
    a(f"v_bfe_u32 v{T+4}, v0, 4, 1")
    a(f"v_lshl_add_u32 v{T+3}, v{T+4}, 5, v{T+3}")
    a("s_lshl_b32 s12, s14, 1")
    a(f"v_xor_b32 v{T+4}, s12, v{T+2}")
    a(f"v_lshl_add_u32 v{WA}, v{T+4}, 6, v{T+3}")
    a(f"v_xor_b32 v{WA+1}, 64, v{WA}")
    a(f"v_add_u32 v{WAH}, 0x10000, v{WA}")
    a(f"v_add_u32 v{WAH+1}, 0x10000, v{WA+1}")
    a("s_lshl_b32 s15, s8, 2")
    a("s_lshl_b32 s12, s13, 1")
    a("s_add_u32 s15, s15, s12")
    a("s_mul_i32 s15, s15, 1280")
    a("s_cmp_ge_u32 s7, 10")
    a("s_cbranch_scc1 K1_GEMM_V")

    def reads(c, ks, buf):
        sx = (2 * c) % 5; sw = (2 * c + 1) % 5
        for rb in range(2):
            reg, off = (XA + ks, sx * 16384) if sx < 4 else (XAH + ks, 0)
            a(f"ds_read_b128 {v(XF+buf*8+rb*4,4)}, v{reg} offset:{off + rb*4096}")
        for cb in range(2):
            reg, off = (WA + cb, sw * 16384) if sw < 4 else (WAH + cb, 0)
            for s_ in range(2):
                a(f"ds_read_b64_tr_b16 {v(WF+buf*8+cb*4+s_*2,2)}, v{reg} offset:{off + ks*4096 + s_*1024}")
    def mfmas(orient, buf, first):
        for rb in range(2):
            for cb in range(2):
                acc = v(ACC + (rb * 2 + cb) * 16, 16)
                x = v(XF + buf * 8 + rb * 4, 4); w = v(WF + buf * 8 + cb * 4, 4)
                A, B = (w, x) if orient == "qk" else (x, w)
                a(f"v_mfma_f32_32x32x16_bf16 {acc}, {A}, {B}, {'0' if first else acc}")
    def body(orient):
        a.stamp(0)
        a("s_waitcnt vmcnt(12)")
        a("s_barrier")
        a.stamp(1)
        reads(0, 0, 0)
        for c in range(10):
            for ks in range(3):
                reads(c, ks + 1, (ks + 1) & 1)
                a("s_waitcnt lgkmcnt(6)")
                mfmas(orient, ks & 1, c == 0 and ks == 0)
            if c < 9:
                a(f"s_waitcnt vmcnt({4 if c <= 7 else 0}) lgkmcnt(0)")
                a("s_barrier")
                for i in (2 * c + 5, 2 * c + 6):
                    if i < 20: dma(i)
                reads(c + 1, 0, 0)
            else:
                a("s_waitcnt lgkmcnt(0)")
            mfmas(orient, 1, False)
            if c in (1, 4, 7, 9): a.stamp(2 + (1, 4, 7, 9).index(c))

    a("s_lshl_b32 s12, s7, 5")
    a("s_lshl_b32 s60, s14, 4")
    a("s_add_u32 s12, s12, s60")
    a(f"v_add_u32 v{T+2}, s12, v{T+1}")
    a(f"v_lshlrev_b32 v{T+6}, 4, v{T}")
    a(f"v_lshl_add_u32 v{T+7}, v{T}, 3, 0")
    a(f"v_add_u32 v{T+7}, 1024, v{T+7}")
    a(f"s_mov_b32 s61, {HS}")
    for cb in range(2):
        for qd in range(4):
            e = EA + cb * 4 + qd
            a(f"v_add_u32 v{T+3}, {8*cb+2*qd}, v{T+2}")
            a(f"v_mul_u32_u24 v{T+4}, 205, v{T+3}")
            a(f"v_lshrrev_b32 v{T+4}, 10, v{T+4}")
            a(f"v_mul_u32_u24 v{T+5}, 5, v{T+4}")
            a(f"v_sub_u32 v{T+3}, v{T+3}, v{T+5}")
            a(f"v_cmp_eq_u32 vcc, 4, v{T+3}")
            a(f"v_lshrrev_b32 v{T+5}, 1, v{T+3}")
            a(f"v_lshl_add_u32 v{T+5}, v{T+5}, 9, v{T+6}")
            a(f"v_and_b32 v{T+3}, 1, v{T+3}")
            a(f"v_lshl_add_u32 v{T+5}, v{T+3}, 3, v{T+5}")
            a(f"v_cndmask_b32 v{T+5}, v{T+5}, v{T+7}, vcc")
            a(f"v_mad_u32_u24 v{e}, v{T+4}, s61, v{T+5}")
    qs = (20 ** -0.5) * math.log2(math.e)
    a(f"s_mov_b32 s62, {f2u(qs)}")
    a("s_cmp_ge_u32 s7, 5")
    a("s_cselect_b32 s62, 1.0, s62")
    body("qk")
    for rb in range(2):
        for cb in range(2):
            ac = ACC + (rb * 2 + cb) * 16
            for qd in range(4):
                r = ac + qd * 4
                for i in range(4): a(f"v_mul_f32 v{r+i}, s62, v{r+i}")
                a(f"v_cvt_pk_bf16_f32 v{r}, v{r}, v{r+1}")
                a(f"v_cvt_pk_bf16_f32 v{r+1}, v{r+2}, v{r+3}")
                a(f"buffer_store_dwordx2 {v(r,2)}, v{EA+cb*4+qd}, {SWS}, s15 offen offset:{rb*1280}{SCQ}")
    a.end()
    a.label("K1_GEMM_V")
    a("s_sub_u32 s12, s7, 10")
    a("s_lshl_b32 s12, s12, 7")
    a("s_lshl_b32 s60, s14, 6")
    a("s_add_u32 s12, s12, s60")
    a(f"s_mov_b32 s61, {HS}")
    a(f"v_mul_u32_u24 v{T+6}, 320, v{T+1}")
    for cb in range(2):
        a(f"v_add_u32 v{T+3}, s12, v{T}")
        if cb: a(f"v_add_u32 v{T+3}, 32, v{T+3}")
        a(f"v_mul_u32_u24 v{T+4}, 3277, v{T+3}")
        a(f"v_lshrrev_b32 v{T+4}, 16, v{T+4}")
        a(f"v_mul_u32_u24 v{T+5}, 20, v{T+4}")
        a(f"v_sub_u32 v{T+3}, v{T+3}, v{T+5}")
        a(f"v_lshl_add_u32 v{T+5}, v{T+3}, 4, v{T+6}")
        a(f"v_mad_u32_u24 v{EA+cb}, v{T+4}, s61, v{T+5}")
    a(f"s_add_u32 s15, s15, {VF}")
    body("v")
    for rb in range(2):
        for cb in range(2):
            ac = ACC + (rb * 2 + cb) * 16
            for g in range(2):
                r = ac + g * 8
                for i in range(4): a(f"v_cvt_pk_bf16_f32 v{r+i}, v{r+2*i}, v{r+2*i+1}")
                a(f"buffer_store_dwordx4 {v(r,4)}, v{EA+cb}, {SWS}, s15 offen offset:{rb*1280+g*640}{SC}")
    a.end()

def gate_role(a):
    srd(a, 52, 16, 2048 * 1280)
    SX = "s[52:55]"
    G = 8; X = 32; ACC = 192; T = 2
    a("s_sub_u32 s4, s2, 240")
    a("s_lshl_b32 s4, s4, 2")
    a("s_add_u32 s4, s4, s3")
    a(f"s_mul_i32 s5, s4, {32*1280}")
    a(f"v_and_b32 v{T}, 15, v0")
    a(f"v_lshlrev_b32 v{T+1}, 4, v{T}")
    for e in range(5):
        a(f"global_load_dwordx4 {v(G+4*e,4)}, v{T+1}, s[40:41] offset:{e*256}")
    a(f"v_lshrrev_b32 v{T+2}, 4, v0")
    a(f"v_mul_u32_u24 v{T+3}, 1280, v{T+2}")
    a(f"v_add_u32 v{T+3}, v{T+3}, v{T+1}")
    for grp in range(8):
        for e in range(5):
            a(f"buffer_load_dwordx4 {v(X+grp*20+e*4,4)}, v{T+3}, {SX}, s5 offen offset:{e*256}")
        if grp < 7: a(f"s_add_u32 s5, s5, {4*1280}")
    for grp in range(8):
        a(f"v_mov_b32 v{ACC+grp}, 0")
    for grp in range(8):
        a(f"s_waitcnt vmcnt({(7-grp)*5})")
        for i in range(20):
            a(f"v_dot2c_f32_bf16 v{ACC+grp}, v{X+grp*20+i}, v{G+i}")
    for sh in (8, 4, 2, 1):
        for grp in range(8):
            a(f"v_add_f32_dpp v{ACC+grp}, v{ACC+grp}, v{ACC+grp} row_ror:{sh} row_mask:0xf bank_mask:0xf")
    for k in range(1, 8):
        a(f"v_cmp_eq_u32 vcc, {k}, v{T}")
        a(f"v_cndmask_b32 v{ACC}, v{ACC}, v{ACC+k}, vcc")
    R = ACC
    a(f"v_cvt_pk_bf16_f32 v{R}, v{R}, v{R}")
    a(f"v_lshlrev_b32 v{R}, 16, v{R}")
    a(f"v_mul_f32 v{R}, {f2u(-math.log2(math.e))}, v{R}")
    a(f"v_exp_f32 v{R}, v{R}")
    a(f"v_add_f32 v{R}, 1.0, v{R}")
    a(f"v_rcp_f32 v{R}, v{R}")
    a(f"v_cvt_pk_bf16_f32 v{R}, v{R}, v{R}")
    a(f"v_lshlrev_b32 v{R}, 16, v{R}")
    a(f"v_lshl_add_u32 v{T+3}, v{T}, 2, v{T+2}")
    a(f"v_lshlrev_b32 v{T+3}, 2, v{T+3}")
    a("s_lshl_b32 s5, s4, 7")
    a(f"s_add_u32 s5, s5, {GT}")
    a(f"v_cmp_gt_u32 vcc, 8, v{T}")
    a("s_and_saveexec_b64 s[6:7], vcc")
    a(f"buffer_store_dword v{R}, v{T+3}, {SWS}, s5 offen")
    a.end()

def cmul(a, d, x, y):
    a(f"v_pk_mul_f32 {v(d,2)}, {v(x,2)}, {v(y,2)} op_sel:[0,0] op_sel_hi:[0,1]")
    a(f"v_pk_fma_f32 {v(d,2)}, {v(x,2)}, {v(y,2)}, {v(d,2)} op_sel:[1,1,0] op_sel_hi:[1,0,1] neg_lo:[0,1,0]")

def cmul2(a, d, x, y):
    for o in (0, 2):
        a(f"v_pk_mul_f32 {v(d+o,2)}, {v(x+o,2)}, {v(y+o,2)} op_sel:[0,0] op_sel_hi:[0,1]")
    for o in (0, 2):
        a(f"v_pk_fma_f32 {v(d+o,2)}, {v(x+o,2)}, {v(y+o,2)}, {v(d+o,2)} op_sel:[1,1,0] op_sel_hi:[1,0,1] neg_lo:[0,1,0]")

def kgen_role(a):
    log2e = math.log2(math.e)
    a("s_sub_u32 s4, s2, 256")
    a("s_lshl_b32 s4, s4, 2")
    a("s_add_u32 s4, s4, s3")
    a("s_lshl_b32 s5, s4, 8")
    T = 2
    P = 8
    a(f"v_lshl_add_u32 v{T}, v0, 2, s5")
    for i, pr in enumerate((24, 26, 28, 30, 32, 34)):
        a(f"global_load_dword v{P+i}, v{T}, s[{pr}:{pr+1}]")
    a("s_lshl_b32 s6, s4, 1")
    a(f"v_mov_b32 v{T+1}, s6")
    a(f"global_load_ushort v{P+6}, v{T+1}, s[36:37]")
    if PF:
        srd(a, 52, 16, 2048 * 1280)
        srd(a, 56, 18, 640 * 3840)
        a("s_sub_u32 s60, s2, 256")
        a("s_lshr_b32 s60, s60, 3")
        a("s_lshl_b32 s60, s60, 2")
        a("s_add_u32 s60, s60, s3")
        a("s_and_b32 s61, s2, 7")
        a(f"v_lshrrev_b32 v196, 5, v0")
        a(f"v_mul_u32_u24 v196, 3840, v196")
        a(f"v_and_b32 v197, 31, v0")
        a(f"v_lshl_add_u32 v196, v197, 6, v196")
        a("s_and_b32 s62, s61, 1")
        a("s_mul_i32 s62, s62, 1792")
        a(f"s_mul_i32 s63, s60, {2*3840}")
        a("s_add_u32 s62, s62, s63")
        a(f"s_add_u32 s62, s62, {128*3840}")
        a(f"v_lshrrev_b32 v198, 2, v0")
        a(f"v_mul_u32_u24 v198, 1280, v198")
        a(f"v_and_b32 v197, 3, v0")
        a(f"v_lshl_add_u32 v198, v197, 6, v198")
        a("s_lshr_b32 s61, s61, 1")
        a(f"s_mul_i32 s61, s61, {512*1280}")
        a("s_and_b32 s63, s60, 31")
        a(f"s_mul_i32 s63, s63, {16*1280}")
        a("s_add_u32 s61, s61, s63")
        a("s_lshr_b32 s63, s60, 5")
        a("s_lshl_b32 s63, s63, 8")
        a("s_add_u32 s61, s61, s63")
        a(f"buffer_load_dword v199, v196, s[56:59], s62 offen")
        a(f"buffer_load_dword v199, v198, s[52:55], s61 offen offset:256")
        for u in range(1, 4):
            a(f"s_add_u32 s62, s62, {160*3840}")
            a(f"buffer_load_dword v199, v196, s[56:59], s62 offen")
        a(f"buffer_load_dword v199, v198, s[52:55], s61 offen offset:{256+512}")
    SL = 528
    a("s_mul_i32 s7, s3, 8448+3328")
    WRA = 16; RDA = 17; TB0 = 18; TB1 = 19; TB2 = 20
    a(f"v_lshl_add_u32 v{WRA}, v0, 3, s7")
    a(f"v_and_b32 v{T+2}, 15, v0")
    a(f"v_lshrrev_b32 v{T+3}, 4, v0")
    a(f"v_mul_u32_u24 v{RDA}, {SL}, v{T+2}")
    a(f"v_lshl_add_u32 v{RDA}, v{T+3}, 4, v{RDA}")
    a(f"v_add_u32 v{RDA}, s7, v{RDA}")
    a("s_add_u32 s8, s7, 8448")
    a(f"v_lshlrev_b32 v{TB0}, 4, v{T+2}")
    a(f"v_lshl_add_u32 v{TB0}, v{T+3}, 2, v{TB0}")
    a(f"v_lshl_add_u32 v{TB0}, v{TB0}, 2, s8")
    a(f"v_lshlrev_b32 v{T+4}, 3, v{T+2}")
    a(f"v_lshl_add_u32 v{T+4}, v{T+3}, 2, v{T+4}")
    a(f"v_add_u32 v{T+4}, 256, v{T+4}")
    a(f"v_lshlrev_b32 v{T+5}, 2, v{T+2}")
    a(f"v_lshl_add_u32 v{T+5}, v{T+3}, 6, v{T+5}")
    a(f"v_add_u32 v{T+5}, 256, v{T+5}")
    a(f"v_cmp_gt_u32 vcc, 32, v0")
    a(f"v_cndmask_b32 v{TB1}, v{T+5}, v{T+4}, vcc")
    a(f"v_lshl_add_u32 v{TB1}, v{TB1}, 2, s8")
    a(f"v_lshlrev_b32 v{T+4}, 1, v{T+2}")
    a(f"v_lshl_add_u32 v{T+4}, v{T+3}, 6, v{T+4}")
    a(f"v_add_u32 v{T+4}, 512, v{T+4}")
    a(f"v_mov_b32 v{T+5}, 704")
    a(f"v_cmp_ge_u32 vcc, 32, v0")
    a(f"v_cndmask_b32 v{TB2}, v{T+5}, v{T+4}, vcc")
    a(f"v_lshl_add_u32 v{TB2}, v{TB2}, 2, s8")
    a(f"s_waitcnt vmcnt({6 if PF else 0})")
    a.stamp(0)
    DT = 21
    hi = struct.unpack("<f", struct.pack("<f", log2e))[0]; lo = log2e - hi
    a(f"v_lshlrev_b32 v{T}, 16, v{P+6}")
    a(f"s_mov_b32 s9, {f2u(hi)}")
    a(f"v_mul_f32 v{T+1}, s9, v{T}")
    a(f"v_fma_f32 v{T+2}, v{T}, s9, -v{T+1}")
    a(f"v_mov_b32 v{T+3}, {f2u(lo)}")
    a(f"v_fmac_f32 v{T+2}, v{T}, v{T+3}")
    a(f"v_exp_f32 v{T+1}, v{T+1}")
    a(f"v_mul_f32 v{T+2}, {f2u(math.log(2.0))}, v{T+2}")
    a(f"v_fma_f32 v{T+1}, v{T+1}, v{T+2}, v{T+1}")
    a(f"v_cvt_pk_bf16_f32 v{DT}, v{T+1}, v{T+1}")
    a(f"v_lshlrev_b32 v{DT}, 16, v{DT}")
    A_ = 24; B_ = 28; C_ = 32; W_ = 36
    for grp, (re_, im_) in ((A_, (P, P + 1)), (B_, (P + 2, P + 3)), (C_, (P + 4, P + 5))):
        a(f"v_lshlrev_b32 v{grp}, 16, v{re_}")
        a(f"v_lshlrev_b32 v{grp+1}, 16, v{im_}")
        a(f"v_and_b32 v{grp+2}, 0xffff0000, v{re_}")
        a(f"v_and_b32 v{grp+3}, 0xffff0000, v{im_}")
    for i in range(4):
        a(f"v_mul_f32 v{A_+i}, v{DT}, v{A_+i}")
        a(f"v_mul_f32 v{B_+i}, v{DT}, v{B_+i}")
    cmul2(a, W_, C_, B_)
    a(f"s_mov_b32 s10, {f2u(1.0/(2*math.pi))}")
    for o in (0, 2):
        a(f"v_mul_f32 v{A_+o}, s9, v{A_+o}")
        a(f"v_mul_f32 v{A_+o+1}, s10, v{A_+o+1}")
    Z1 = 40; Z16 = 44; Z256 = 48
    def base(dst, n):
        E = 52
        a(f"s_mov_b32 s11, {f2u(float(n))}")
        for o in (0, 2):
            if n != 1:
                a(f"v_mul_f32 v{E+o}, s11, v{A_+o}")
                a(f"v_mul_f32 v{E+o+1}, s11, v{A_+o+1}")
                a(f"v_fract_f32 v{E+o+1}, v{E+o+1}")
                a(f"v_exp_f32 v{E+o}, v{E+o}")
            else:
                a(f"v_fract_f32 v{E+o+1}, v{A_+o+1}")
                a(f"v_exp_f32 v{E+o}, v{A_+o}")
        for o in (0, 2):
            a(f"v_cos_f32 v{dst+o}, v{E+o+1}")
            a(f"v_sin_f32 v{dst+o+1}, v{E+o+1}")
        for o in (0, 2):
            a(f"v_pk_mul_f32 {v(dst+o,2)}, {v(dst+o,2)}, {v(E+o,2)} op_sel:[0,0] op_sel_hi:[1,0]")
    base(Z16, 16)
    PK = 58
    cnt = [0]
    def put(src, slot, neg=False):
        p = PK + 2 * (cnt[0] & 1); cnt[0] += 1
        n = "-" if neg else ""
        a(f"v_cvt_pk_bf16_f32 v{p}, v{src}, {n}v{src+1}")
        a(f"v_cvt_pk_bf16_f32 v{p+1}, v{src+2}, {n}v{src+3}")
        a(f"ds_write_b64 v{WRA}, {v(p,2)} offset:{slot*SL}")
    CA = 64; CB = 68
    put(W_, 0, True)
    cur = W_
    for j in range(1, 16):
        nxt = CA if cur != CA else CB
        cmul2(a, nxt, cur, Z16)
        put(nxt, j, True)
        cur = nxt
    RF = 96
    for s_ in range(8):
        a(f"ds_read_b128 {v(RF+4*s_,4)}, v{RDA} offset:{64*s_}")
    base(Z1, 1)
    base(Z256, 256)
    EV = 128
    ONE = 72
    a(f"v_mov_b32 v{ONE}, 0x3f80")
    a(f"v_mov_b32 v{ONE+1}, 0x3f80")
    a(f"ds_write_b64 v{WRA}, {v(ONE,2)} offset:0")
    put(Z1, 1)
    cur = Z1
    for j in range(2, 16):
        nxt = EV + 4 * (j // 2 - 1) if j % 2 == 0 else CA
        cmul2(a, nxt, cur, Z1)
        put(nxt, j)
        cur = nxt
    LF = 160
    D = 76
    def tile(t):
        for s_ in range(8):
            a(f"ds_read_b128 {v(LF+4*s_,4)}, v{RDA} offset:{64*s_}")
    def tile_mfma(t):
        for s_ in range(8):
            a(f"s_waitcnt lgkmcnt({7-s_})") if False else None
        a("s_waitcnt lgkmcnt(0)")
        for s_ in range(8):
            a(f"v_mfma_f32_16x16x32_bf16 {v(D+4*t,4)}, {v(LF+4*s_,4)}, {v(RF+4*s_,4)}, {'0' if s_==0 else v(D+4*t,4)}")
    ev = lambda j: EV + 4 * (j // 2 - 1)
    tile(0)
    Z512 = 88; Z768 = 92
    cmul2(a, Z512, Z256, Z256)
    cmul2(a, Z768, Z512, Z256)
    tile_mfma(0)
    put(Z256, 0)
    for m in range(1, 8):
        cmul2(a, CA, Z256, ev(2 * m)); put(CA, m)
    for k, zb in ((8, Z512), (12, Z768)):
        put(zb, k)
        for i in range(1, 4):
            cmul2(a, CA, zb, ev(4 * i)); put(CA, k + i)
    tile(1)
    Z1024 = 88;
    cmul2(a, CB, Z512, Z512)
    tile_mfma(1)
    cur = CB
    oth = {CB: 92, 92: CB}
    for aa in range(4):
        put(cur, 2 * aa)
        cmul2(a, CA, cur, ev(8)); put(CA, 2 * aa + 1)
        nxt = oth[cur]
        cmul2(a, nxt, cur, Z256)
        cur = nxt
    put(cur, 8)
    tile(2)
    tile_mfma(2)
    a.stamp(1)
    TP = 96
    for t in range(3):
        for r in range(4):
            a(f"v_cvt_pk_bf16_f32 v{TP+4*t+r}, v{D+4*t+r}, v{D+4*t+r}")
    a(f"ds_write_b128 v{TB0}, {v(TP,4)}")
    a(f"ds_write_b128 v{TB1}, {v(TP+4,4)}")
    a(f"ds_write_b64 v{TB2}, {v(TP+8,2)}")
    a(f"ds_write_b64 v{TB2}, {v(TP+10,2)} offset:128")
    RA = 2
    a(f"v_lshlrev_b32 v{RA}, 3, v0")
    a(f"v_lshlrev_b32 v{RA+1}, 2, v0")
    a(f"v_add_u32 v{RA+2}, 128, v{RA+1}")
    a(f"v_cmp_gt_u32 vcc, 32, v0")
    a(f"v_cndmask_b32 v{RA}, v{RA+2}, v{RA}, vcc")
    a(f"v_lshl_add_u32 v{RA}, v{RA}, 2, s8")
    a(f"v_lshl_add_u32 v{RA+2}, v0, 3, s8")
    a(f"v_add_u32 v{RA+1}, s8, v{RA+1}")
    E0 = 112; E1 = 120; E2 = 124; E3 = 126
    a(f"ds_read_b128 {v(E0,4)}, v{RA}")
    a(f"ds_read_b128 {v(E0+4,4)}, v{RA} offset:16")
    a(f"ds_read_b64 {v(E1,2)}, v{RA+2} offset:{384*4}")
    a(f"ds_read_b32 v{E1+2}, v{RA+2} offset:{384*4+8}")
    a(f"ds_read_b32 v{E2}, v{RA+1} offset:{512*4}")
    a(f"ds_read_b32 v{E2+1}, v{RA+1} offset:{513*4}")
    a(f"ds_read_b32 v{E3}, v{RA+1} offset:{576*4}")
    a(f"ds_read_b32 v{E3+1}, v{RA+1} offset:{577*4}")
    a(f"v_lshlrev_b32 v{RA+3}, 4, v0")
    a(f"v_sub_u32 v{RA+3}, {63*16}, v{RA+3}")
    a(f"s_mul_i32 s12, s4, {KCS}")
    a(f"s_add_u32 s12, s12, {KC}")
    a("s_mov_b32 s13, 0xffff")
    a(f"v_and_b32 v{RA+4}, 1, v0")
    a(f"v_sub_u32 v{RA+4}, 0, v{RA+4}")
    a(f"v_or_b32 v{RA+4}, 0xffff, v{RA+4}")
    O = 128
    a("s_waitcnt lgkmcnt(0)")
    a(f"v_bfi_b32 v{O}, s13, v{E0+4}, v{E0+3}")
    a(f"v_mov_b32 v{O+1}, v{E0+2}")
    a(f"v_bfi_b32 v{O+2}, s13, v{E0+2}, v{E0+1}")
    a(f"v_mov_b32 v{O+3}, v{E0}")
    a("s_mov_b64 exec, 0xffffffff")
    for i in range(4):
        a(f"v_bfi_b32 v{O+i}, s13, v{E0+7-2*i}, v{E0+6-2*i}")
    a("s_mov_b64 exec, -1")
    a(f"buffer_store_dwordx4 {v(O,4)}, v{RA+3}, {SWS}, s12 offen offset:{192*16}{SC}")
    a(f"v_mov_b32 v{O+4}, v{E1+2}")
    a(f"v_mov_b32 v{O+5}, v{E1+1}")
    a(f"v_bfi_b32 v{O+6}, s13, v{E1+1}, v{E1}")
    a(f"v_mov_b32 v{O+7}, v{E1}")
    a(f"buffer_store_dwordx4 {v(O+4,4)}, v{RA+3}, {SWS}, s12 offen offset:{128*16}{SC}")
    for u, E in enumerate((E2, E3)):
        o = O + 8 + 4 * u
        a(f"v_mov_b32 v{o}, v{E+1}")
        a(f"v_bfi_b32 v{o+1}, v{RA+4}, v{E+1}, v{E}")
        a(f"v_mov_b32 v{o+2}, v{E}")
        a(f"v_mov_b32 v{o+3}, v{E}")
        a(f"buffer_store_dwordx4 {v(o,4)}, v{RA+3}, {SWS}, s12 offen offset:{(64-64*u)*16}{SC}")
    for i in range(4): a(f"v_mov_b32 v{O+16+i}, 0")
    a(f"v_mov_b32 v{RA}, 4096")
    a("s_mov_b64 exec, 1")
    a(f"buffer_store_dwordx4 {v(O+16,4)}, v{RA}, {SWS}, s12 offen")
    a.end()

def trans_role(a):
    a("s_sub_u32 s4, s2, 416")
    a("s_lshl_b32 s4, s4, 2")
    a("s_add_u32 s4, s4, s3")
    a("s_mul_i32 s7, s3, 10240")
    a("s_cmp_ge_u32 s4, 320")
    a("s_cbranch_scc1 K1_WOT")
    srd(a, 52, 16, 2048 * 1280)
    SX = "s[52:55]"
    T = 2
    a("s_mul_i32 s5, s4, 205")
    a("s_lshr_b32 s5, s5, 10")
    a("s_mul_i32 s6, s5, 5")
    a("s_sub_u32 s6, s4, s6")
    a(f"s_mul_i32 s8, s5, {32*1280}")
    a("s_lshl_b32 s9, s6, 8")
    a("s_add_u32 s8, s8, s9")
    a(f"v_lshrrev_b32 v{T}, 4, v0")
    a(f"v_and_b32 v{T+1}, 15, v0")
    a(f"v_lshlrev_b32 v{T+2}, 1, v{T}")
    a(f"v_xor_b32 v{T+2}, v{T+2}, v{T+1}")
    a(f"v_mul_u32_u24 v{T+3}, 1280, v{T}")
    a(f"v_lshl_add_u32 v{T+4}, v{T+2}, 4, v{T+3}")
    a(f"v_xor_b32 v{T+2}, 8, v{T+2}")
    a(f"v_lshl_add_u32 v{T+5}, v{T+2}, 4, v{T+3}")
    for e in range(8):
        a(f"s_add_u32 m0, s7, {e*1024}")
        a(f"s_add_u32 s10, s8, {e*4*1280}")
        a(f"buffer_load_dwordx4 v{T+4+((e>>1)&1)}, {SX}, s10 offen lds")
    a(f"v_bfe_u32 v{T+6}, v0, 2, 2")
    a(f"v_lshl_add_u32 v{T+7}, v{T}, 3, v{T+6}")
    a(f"v_lshlrev_b32 v{T+7}, 8, v{T+7}")
    a(f"v_and_b32 v{T+8}, 3, v0")
    a(f"v_lshl_add_u32 v{T+7}, v{T+8}, 3, v{T+7}")
    a(f"v_bfe_u32 v{T+8}, v0, 4, 1")
    a(f"v_lshl_or_b32 v{T+8}, v{T+8}, 2, v{T+6}")
    a(f"v_lshl_add_u32 v{T+7}, v{T+8}, 5, v{T+7}")
    RA = 16
    for cg in range(8):
        a(f"v_xor_b32 v{RA+cg}, {cg*32}, v{T+7}")
        a(f"v_add_u32 v{RA+cg}, s7, v{RA+cg}")
    a(f"v_lshlrev_b32 v{T+9}, 12, v{T+1}")
    a(f"v_lshl_add_u32 v{T+9}, v{T}, 4, v{T+9}")
    a(f"s_lshl_b32 s10, s6, 19")
    a("s_lshl_b32 s11, s5, 6")
    a("s_add_u32 s10, s10, s11")
    a(f"s_add_u32 s10, s10, {XT}")
    a("s_waitcnt vmcnt(0)")
    D = 32
    for cg in range(8):
        for s_ in range(2):
            a(f"ds_read_b64_tr_b16 {v(D+4*cg+2*s_,2)}, v{RA+cg} offset:{s_*1024}")
    for cg in range(8):
        a(f"s_waitcnt lgkmcnt({(7-cg)*2})")
        a(f"buffer_store_dwordx4 {v(D+4*cg,4)}, v{T+9}, {SWS}, s10 offen{SC}")
        if cg < 7: a(f"s_add_u32 s10, s10, {16*4096}")
    a.end()
    a.label("K1_WOT")
    srd(a, 52, 20, 640 * 1280)
    a("s_sub_u32 s4, s4, 320")
    a("s_mul_i32 s5, s4, 205")
    a("s_lshr_b32 s5, s5, 10")
    a("s_mul_i32 s6, s5, 5")
    a("s_sub_u32 s6, s4, s6")
    a(f"s_mul_i32 s8, s5, {40*1280}")
    a("s_lshl_b32 s9, s6, 8")
    a("s_add_u32 s8, s8, s9")
    a(f"v_lshrrev_b32 v{T}, 4, v0")
    a(f"v_and_b32 v{T+1}, 15, v0")
    a(f"v_lshlrev_b32 v{T+2}, 2, v{T}")
    a(f"v_xor_b32 v{T+2}, v{T+2}, v{T+1}")
    a(f"v_mul_u32_u24 v{T+3}, 1280, v{T}")
    a(f"v_lshl_add_u32 v{T+4}, v{T+2}, 4, v{T+3}")
    for e in range(10):
        a(f"s_add_u32 m0, s7, {e*1024}")
        a(f"s_add_u32 s10, s8, {e*4*1280}")
        a(f"buffer_load_dwordx4 v{T+4}, {SX}, s10 offen lds")
    a(f"v_bfe_u32 v{T+6}, v0, 2, 2")
    a(f"v_lshlrev_b32 v{T+7}, 8, v{T+6}")
    a(f"v_and_b32 v{T+8}, 3, v0")
    a(f"v_lshl_add_u32 v{T+7}, v{T+8}, 3, v{T+7}")
    a(f"v_bfe_u32 v{T+8}, v0, 4, 1")
    a(f"v_lshl_add_u32 v{T+7}, v{T+8}, 5, v{T+7}")
    a(f"v_lshrrev_b32 v{T+8}, 5, v0")
    a(f"v_xor_b32 v{T+8}, v{T+8}, v{T+6}")
    a(f"v_lshl_add_u32 v{T+7}, v{T+8}, 6, v{T+7}")
    a(f"v_xor_b32 v{RA+1}, 128, v{T+7}")
    a(f"v_add_u32 v{RA}, s7, v{T+7}")
    a(f"v_add_u32 v{RA+1}, s7, v{RA+1}")
    a(f"v_lshlrev_b32 v{T+9}, 4, v0")
    a(f"s_mul_i32 s10, s5, {5*10240}")
    a("s_lshl_b32 s11, s6, 11")
    a("s_add_u32 s10, s10, s11")
    a(f"s_add_u32 s10, s10, {WOF}")
    a("s_waitcnt vmcnt(0)")
    rows = [(0, 8), (4, 12), (20, 28), (24, 32), (16, 36)]
    for gi in range(5):
        for cs in range(2):
            for s_ in range(2):
                a(f"ds_read_b64_tr_b16 {v(D+(gi*2+cs)*4+2*s_,2)}, v{RA+cs} offset:{rows[gi][s_]*256}")
        if gi == 2: a("s_waitcnt lgkmcnt(4)")
    a("s_waitcnt lgkmcnt(0)")
    for gi in range(5):
        for cs in range(2):
            a(f"buffer_store_dwordx4 {v(D+(gi*2+cs)*4,4)}, v{T+9}, {SWS}, s10 offen offset:{cs*1024}{SC}")
        if gi < 4: a(f"s_add_u32 s10, s10, 10240")
    a.end()

LAUNCH = "; @launch kernel=k1_kernel grid=(516,1,1) block=(256,1,1) lds=81920"
def k1(a, sc="", scq="", pf=0):
    global SC, SCQ, PF
    SC = sc; SCQ = scq; PF = pf
    kernel_header(a, "k1_kernel")
    a("s_cmp_ge_u32 s2, 516")
    a("s_cbranch_scc1 K1_EXIT")
    a.tstart()
    common_prologue(a)
    a("s_cmp_ge_u32 s2, 416")
    a("s_cbranch_scc1 K1_TRANS")
    a("s_cmp_ge_u32 s2, 256")
    a("s_cbranch_scc1 K1_KGEN")
    a("s_cmp_ge_u32 s2, 240")
    a("s_cbranch_scc1 K1_GATE")
    gemm_role(a)
    a.label("K1_GATE"); gate_role(a)
    a.label("K1_KGEN"); kgen_role(a)
    a.label("K1_TRANS"); trans_role(a)
    a.label("K1_EXIT"); a("s_endpgm ")
    kernel_desc(a, "k1_kernel", 200)
```

```python
import sys, importlib
sys.path.insert(0, "g")
from asmlib import *
import k1
NAME = "gated_mix__softmax_full_mha__ssm_conv_s4__prompt"
def build(kernels=("k1","k2","k3"), opts=None, instr=False):
    ref = open(f"cdna_kernels/{NAME}.s.ref").read().split("\n")
    hdr = [l for l in ref if l.startswith(";") and "@launch" not in l and "Override" not in l and "grid=ceil" not in l]
    a = Asm(); a.instr = instr
    launches = []
    mods = {}
    for k in kernels:
        mods[k] = importlib.import_module(k)
        launches.append(mods[k].LAUNCH)
    for l in hdr: a.raw(l)
    for l in launches: a.raw(l)
    a.raw('.amdgcn_target "amdgcn-amd-amdhsa--gfx950"')
    for n, k in enumerate(kernels):
        a.kidx = n
        getattr(mods[k], k)(a, **(opts or {}).get(k, {}))
    errs = a.check_branches()
    for e in errs: print("BRANCH HAZARD", e)
    return a.text(), a
if __name__ == "__main__":
    ks = sys.argv[2].split(",") if len(sys.argv) > 2 else ("k1","k2","k3")
    opts = eval(sys.argv[4]) if len(sys.argv) > 4 else None
    txt, a = build(ks, opts=opts, instr=(len(sys.argv) > 3 and sys.argv[3] == "i"))
    out = sys.argv[1] if len(sys.argv) > 1 else f"cdna_kernels/{NAME}.s"
    open(out, "w").write(txt)
    print("written", out, len(txt), "bytes; nops inserted", a.nops)
```

```python
import re

def v(i, n=1):
    return f"v{i}" if n == 1 else f"v[{i}:{i+n-1}]"
def s(i, n=1):
    return f"s{i}" if n == 1 else f"s[{i}:{i+n-1}]"

_reg_re = re.compile(r"^(-|\|)?(abs\()?-?([vsa])(?:(\d+)|\[(\d+):(\d+)\])\)?\|?$")
def parse_reg(tok):
    tok = tok.strip()
    if tok in ("vcc",): return [("s", 106), ("s", 107)]
    if tok == "vcc_lo": return [("s", 106)]
    if tok == "vcc_hi": return [("s", 107)]
    if tok == "exec": return [("s", 126), ("s", 127)]
    if tok == "exec_lo": return [("s", 126)]
    if tok == "exec_hi": return [("s", 127)]
    if tok == "m0": return [("s", 124)]
    m = _reg_re.match(tok)
    if not m: return []
    k = m.group(3)
    if m.group(4) is not None:
        return [(k, int(m.group(4)))]
    return [(k, i) for i in range(int(m.group(5)), int(m.group(6)) + 1)]

TRANS = ("v_exp_f32", "v_log_f32", "v_rcp_f32", "v_rsq_f32", "v_sqrt_f32", "v_sin_f32", "v_cos_f32", "v_exp_f16", "v_rcp_iflag_f32")

class Ins:
    def __init__(self, text):
        self.text = text
        t = text.split(";")[0].strip()
        parts = t.split(None, 1)
        self.op = parts[0]
        rest = parts[1] if len(parts) > 1 else ""
        ops = []; cur = ""; depth = 0
        for ch in rest:
            if ch in "[(": depth += 1
            if ch in "])": depth -= 1
            if ch == "," and depth == 0:
                ops.append(cur.strip()); cur = ""
            else: cur += ch
        if cur.strip(): ops.append(cur.strip())
        self.mods = ""
        if ops:
            last = ops[-1].split(None, 1)
            ops[-1] = last[0]
            if len(last) > 1: self.mods = last[1]
        self.ops = ops
        op = self.op
        self.kind = "other"
        self.defs = []; self.uses = []; self.srcC = []; self.storedata = []
        R = [parse_reg(o) for o in ops]
        if op.startswith("v_mfma"):
            self.kind = "mfma"
            self.defs = R[0]; self.uses = R[1] + R[2] + R[3]; self.srcC = R[3]; self.srcAB = R[1] + R[2]
            self.passes = 4 if "16x16" in op else 8
        elif op.startswith("v_cmp"):
            self.kind = "valu"; self.defs = R[0]; self.uses = sum(R[1:], [])
        elif op in ("v_readfirstlane_b32", "v_readlane_b32"):
            self.kind = "valu"; self.defs = R[0]; self.uses = sum(R[1:], [])
        elif op.startswith("v_permlane32_swap") or op.startswith("v_permlane16_swap"):
            self.kind = "valu"; self.defs = R[0] + R[1]; self.uses = R[0] + R[1]
        elif op.startswith("v_"):
            self.kind = "valu"
            nd = 1
            if op.startswith(("v_add_co", "v_sub_co", "v_addc_co", "v_subb_co", "v_mad_u64", "v_div_scale")): nd = 2
            self.defs = sum(R[:nd], []); self.uses = sum(R[nd:], [])
            if op.startswith(("v_fmac", "v_dot2c", "v_pk_fmac")) or "UNUSED_PRESERVE" in self.mods or "row_" in self.mods or "quad_perm" in self.mods: self.uses += R[0]
            if op.startswith("v_cndmask") and len(ops) == 3: self.uses += parse_reg("vcc")
        elif op.startswith("ds_"):
            self.kind = "ds"
            if op.startswith(("ds_read", "ds_bpermute", "ds_swizzle")) :
                self.defs = R[0]; self.uses = sum(R[1:], [])
            else:
                self.uses = sum(R, [])
        elif op.startswith("buffer_") or op.startswith("global_"):
            self.kind = "vmem"
            isl = " lds" in (" " + self.mods) or "_lds_" in op
            if "load" in op and not isl:
                self.defs = R[0]; self.uses = sum(R[1:], [])
            else:
                self.uses = sum(R, [])
                if "store" in op and ("x4" in op or "x3" in op):
                    self.storedata = R[0] if op.startswith("buffer_") else R[1]
            if isl: self.uses += parse_reg("m0"); self.lds = True
        elif op.startswith("s_"):
            self.kind = "salu"
            if op in ("s_nop", "s_waitcnt", "s_barrier", "s_endpgm", "s_setprio", "s_branch", "s_sleep") or op.startswith(("s_cbranch", "s_cmp")):
                self.uses = sum(R, [])
            else:
                self.defs = R[0] if R else []
                self.uses = sum(R[1:], [])
                if "saveexec" in op: self.defs = self.defs + parse_reg("exec")
        self.lds = getattr(self, "lds", False)
        self.dpp = self.kind == "valu" and ("row_" in self.mods or "quad_perm" in self.mods or "wave_" in self.mods)
        self.ws = 1
        if op == "s_nop": self.ws = int(ops[0], 0) + 1

def need(p, c):
    n = 0
    pd = set(p.defs)
    cu = set(c.uses); cd = set(c.defs)
    if p.kind == "valu":
        vd = {r for r in pd if r[0] in "va"}
        sd = {r for r in pd if r[0] == "s"}
        if c.kind == "mfma" and vd & cu: n = max(n, 2)
        if p.op in TRANS and c.kind in ("valu",) and c.op not in TRANS and vd & cu: n = max(n, 1)
        if p.op in TRANS and c.kind == "valu" and vd & cu: n = max(n, 1)
        if c.op in ("v_readfirstlane_b32", "v_readlane_b32") and vd & cu: n = max(n, 1)
        if c.op.startswith("v_permlane") and vd & cu: n = max(n, 2)
        if c.dpp and vd & cu: n = max(n, 2)
        if sd:
            if c.kind == "vmem" and sd & cu: n = max(n, 5)
            if c.kind == "valu" and sd & cu: n = max(n, 2)
            if c.op in ("v_readlane_b32", "v_writelane_b32") and sd & cu: n = max(n, 4)
            if c.kind == "salu" and sd & cu: n = max(n, 1)
        if ("sdwa" in p.op or "op_sel" in p.mods) and not p.op.startswith("v_pk_") and c.kind == "valu" and vd & (cu | cd): n = max(n, 1)
    if p.op.startswith("v_dot") and c.op != p.op and pd & (cu | cd): n = max(n, 3)
    if p.kind == "mfma":
        big = {4: 8, 8: 12}[p.passes]
        if c.kind == "mfma":
            if pd & set(c.srcAB): n = max(n, big)
            if pd & set(c.srcC):
                if set(c.srcC) == pd and c.passes == p.passes: pass
                else: n = max(n, {4: 6, 8: 10}[p.passes])
            if pd & cd and not (set(c.srcC) == pd):
                n = max(n, 0)
        elif c.kind in ("valu", "vmem", "ds"):
            if pd & (cu | cd): n = max(n, big)
        if c.kind == "valu" and set(p.srcC) & cd: n = max(n, {4: 3, 8: 7}[p.passes])
    if p.storedata and c.kind in ("valu", "mfma", "ds", "vmem") and set(p.storedata) & cd: n = max(n, 2)
    if p.kind == "salu" and ("s", 124) in pd and c.lds: n = max(n, 1)
    return n

class Asm:
    def __init__(self):
        self.lines = []
        self.win = []
        self.nops = 0
        self.instr = False
        self.kidx = 0
        self.sizes = {}
        self.hop = None; self.hopn = {}; self.hoppos = 0; self.hops_enabled = True
    def size(self, i):
        if i.op.startswith(("s_cbranch", "s_branch", "s_nop", "s_waitcnt", "s_barrier")): return 4
        return self.sizes.get(i.text, 8)
    def _emit_hop(self):
        n = self.hopn.get(self.hop, 0)
        self.lines.append(("label", f"HOP_{self.hop}_{n}"))
        h = Ins(f"s_cbranch_execz HOP_{self.hop}_{n+1}")
        self.lines.append(("ins", h)); self.win.append(h)
        self.hopn[self.hop] = n + 1
        self.hoppos = 4
    def hop_on(self, chain):
        if not self.hops_enabled: return
        self.hop = chain; self._emit_hop()
    def hop_off(self):
        self.hop = None
    def hop_end(self, chain, target, parts):
        self.hop = None
        n = self.hopn.get(chain, 0)
        self.raw(f".set HOP_{chain}_{n}, {target}")
        for p in range(parts):
            self.raw(f".set HOPE_{chain}_{p}, " + (f"HOP_{chain}_{p*n//parts}" if n else target))
    def code_touch(self, start, end, sp, vo, vd):
        lab = f"CT_{len(self.lines)}"
        self(f"s_getpc_b64 s[{sp}:{sp+1}]")
        self.label(lab)
        self(f"s_sub_u32 s{sp}, s{sp}, {lab}-{start}")
        self(f"s_subb_u32 s{sp+1}, s{sp+1}, 0")
        self(f"v_lshlrev_b32 v{vo}, 7, v0")
        for n in range(self.touch_n):
            self(f"v_min_u32 v{vd+n}, {end}-{start}-4, v{vo}")
            self(f"global_load_dword v{vd+n}, v{vd+n}, s[{sp}:{sp+1}]")
            if n + 1 < self.touch_n: self(f"v_add_u32 v{vo}, 0x2000, v{vo}")
    def raw(self, text):
        self.lines.append(("raw", text))
    def label(self, name):
        self.lines.append(("label", name))
    def c(self, text):
        self.lines.append(("raw", "    ; " + text))
    def __call__(self, text):
        for ln in text.strip().split("\n"):
            ln = ln.strip()
            if not ln or ln.startswith(";"): continue
            if ln.endswith(":"):
                self.label(ln[:-1]); continue
            self.ins(ln)
    def tstart(self):
        if not self.instr: return
        self("s_load_dwordx2 s[84:85], s[0:1], 120")
        self("s_memrealtime s[88:89]")
        self("s_memtime s[90:91]")
        for k in range(8): self(f"s_mov_b32 s{64+2*k}, 0")
    def stamp(self, k):
        if self.instr: self(f"s_memtime s[{64+2*k}:{65+2*k}]")
    def end(self):
        if self.instr:
            self("s_waitcnt vmcnt(0)")
            self("s_memrealtime s[92:93]")
            self("s_memtime s[94:95]")
            self("s_mov_b64 exec, 1")
            self("s_waitcnt lgkmcnt(0)")
            self("s_and_b32 s85, s85, 0xffff")
            self("s_mov_b32 s86, 0x1800000")
            self("s_mov_b32 s87, 0x20000")
            self("s_lshl_b32 s96, s2, 4")
            self("s_add_u32 s96, s96, s3")
            self("s_lshl_b32 s96, s96, 6")
            self(f"s_add_u32 s96, s96, {0x1500000 + self.kidx*0x90000}")
            self("v_mov_b32 v0, 0")
            regs = [88, 92, 90, 94] + [64+2*k for k in range(8)]
            for n in range(3):
                for i in range(4): self(f"v_mov_b32 v{4+i}, s{regs[4*n+i]}")
                self(f"buffer_store_dwordx4 v[4:7], v0, s[84:87], s96 offen offset:{16*n}")
                self("s_nop 1")
        self("s_endpgm")
    def ins(self, text):
        i = Ins(text)
        dist = 0; req = 0
        for p in reversed(self.win):
            nd = need(p, i)
            if nd - dist > req: req = nd - dist
            dist += p.ws
            if dist >= 20: break
        if self.hop is not None:
            z = self.size(i) + (4 if req > 0 else 0)
            if self.hoppos + z > 64:
                self._emit_hop(); req -= 1
            self.hoppos += z
        if req > 0:
            nop = Ins(f"s_nop {req-1}")
            self.lines.append(("ins", nop)); self.win.append(nop); self.nops += 1
        self.lines.append(("ins", i)); self.win.append(i)
        if len(self.win) > 40: self.win = self.win[-40:]
        if i.op in ("s_endpgm", "s_branch"): self.win = []
    def check_branches(self):
        idx = {}
        for n, (t, p) in enumerate(self.lines):
            if t == "label": idx[p] = n
        errs = []
        for n, (t, p) in enumerate(self.lines):
            if t == "ins" and (p.op.startswith("s_cbranch") or p.op == "s_branch"):
                tgt = p.ops[0]
                if tgt.startswith("HOP"): continue
                pre = [q for (tt, q) in self.lines[max(0, n - 30):n + 1] if tt == "ins"]
                post = []
                for (tt, q) in self.lines[idx[tgt]:idx[tgt] + 40]:
                    if tt == "ins":
                        post.append(q)
                        if q.op in ("s_branch", "s_endpgm"): break
                for ci, cns in enumerate(post):
                    d0 = sum(q.ws for q in post[:ci])
                    if d0 >= 20: break
                    dist = d0
                    for pr in reversed(pre):
                        nd = need(pr, cns)
                        if nd > dist: errs.append((p.text, pr.text, cns.text, nd, dist))
                        dist += pr.ws
                        if dist >= 20: break
        return errs
    def text(self):
        out = []
        for t, p in self.lines:
            if t == "raw": out.append(p)
            elif t == "label": out.append(p + ":")
            else: out.append("    " + p.text)
        return "\n".join(out) + "\n"

def kernel_header(a, name):
    a.raw(".text"); a.raw(f".globl {name}"); a.raw(".p2align 8"); a.raw(f".type {name},@function")
    a.label(name); a.win = []

def kernel_desc(a, name, vgpr, sgpr=102):
    acc = (vgpr + 3) // 4 * 4
    a.raw(f""".section .rodata,"a"
.p2align 6
.amdhsa_kernel {name}
  .amdhsa_next_free_vgpr {vgpr}
  .amdhsa_next_free_sgpr {sgpr}
  .amdhsa_accum_offset {acc}
  .amdhsa_group_segment_fixed_size 0
  .amdhsa_kernarg_size 128
  .amdhsa_user_sgpr_count 2
  .amdhsa_user_sgpr_kernarg_segment_ptr 1
  .amdhsa_system_sgpr_workgroup_id_x 1
.end_amdhsa_kernel""")
```

```python
from asmlib import *
from layout import *
import struct, math

def f2u(x): return struct.unpack("<I", struct.pack("<f", x))[0]

def srd(a, d, ptr, size):
    a(f"s_mov_b32 s{d}, s{ptr}")
    a(f"s_and_b32 s{d+1}, s{ptr+1}, 0xffff")
    a(f"s_mov_b32 s{d+2}, {size}")
    a(f"s_mov_b32 s{d+3}, 0x20000")

def common_prologue(a):
    a("s_load_dwordx16 s[16:31], s[0:1], 0")
    a("s_load_dwordx16 s[32:47], s[0:1], 64")
    a("v_lshrrev_b32 v1, 6, v0")
    a("v_and_b32 v0, 63, v0")
    a("v_readfirstlane_b32 s3, v1")

def aux_prologue(a):
    a("s_waitcnt lgkmcnt(0)")
    a.stamp(7)
    srd(a, 48, 46, WS_SIZE)

SWS = "s[48:51]"

def gemm_role(a):
    a("s_and_b32 s4, s2, 7")
    a("s_lshr_b32 s5, s2, 3")
    a("s_and_b32 s6, s4, 1")
    a("s_mul_i32 s6, s6, 30")
    a("s_add_u32 s6, s6, s5")
    a("s_lshr_b32 s7, s6, 2")
    a("s_and_b32 s6, s6, 3")
    a("s_lshr_b32 s63, s4, 1")
    a("s_lshl_b32 s63, s63, 2")
    a("s_add_u32 s8, s63, s6")
    T = 32
    a("s_cmp_lt_u32 s3, 4")
    a("s_cbranch_scc1 K1_CONS")
    LO = 4
    a(f"v_lshrrev_b32 v{T+1}, 4, v0")
    a("s_and_b32 s11, s3, 1")
    a("s_lshl_b32 s12, s11, 12")
    a("s_cmp_ge_u32 s3, 6")
    a("s_cbranch_scc1 K1_LDW")
    a(f"v_lshrrev_b32 v{T}, 3, v0")
    a(f"v_mul_u32_u24 v{T}, 1280, v{T}")
    a(f"v_and_b32 v{T+2}, 7, v0")
    a(f"v_xor_b32 v{T+2}, v{T+2}, v{T+1}")
    a(f"v_lshl_add_u32 v{LO}, v{T+2}, 4, v{T}")
    a(f"v_xor_b32 v{T+2}, 4, v{T+2}")
    a(f"v_lshl_add_u32 v{LO+1}, v{T+2}, 4, v{T}")
    a(f"v_add_u32 v{LO+1}, {10240-1024}, v{LO+1}")
    a(f"v_add_u32 v{LO+2}, {2*(10240-1024)}, v{LO}")
    a(f"v_add_u32 v{LO+3}, {2*(10240-1024)}, v{LO+1}")
    a(f"s_mul_i32 s9, s8, {128*1280}")
    a(f"s_mul_i32 s11, s11, {32*1280}")
    a("s_add_u32 s9, s9, s11")
    a(f"s_mov_b32 s10, {64*1280}")
    a(f"s_mov_b32 s11, {(128 - 64*1280) & 0xffffffff}")
    a("s_mov_b32 s60, 49152")
    a("s_mov_b32 s61, 49152")
    a("s_mov_b32 s15, 4")
    a("s_mov_b32 s62, 16")
    a("s_waitcnt lgkmcnt(0)")
    srd(a, 52, 16, 2048 * 1280)
    a("s_branch K1_LD0")
    a.label("K1_LDW")
    a(f"v_mul_u32_u24 v{T}, 3840, v{T+1}")
    a(f"v_and_b32 v{T+2}, 15, v0")
    a(f"v_lshlrev_b32 v{T+3}, 2, v{T+1}")
    a(f"v_xor_b32 v{T+2}, v{T+2}, v{T+3}")
    a(f"v_lshl_add_u32 v{LO}, v{T+2}, 4, v{T}")
    for e in range(1, 4): a(f"v_add_u32 v{LO+e}, {e*(15360-1024)}, v{LO}")
    a("s_lshl_b32 s9, s7, 8")
    a(f"s_mul_i32 s11, s11, {4*15360}")
    a("s_add_u32 s9, s9, s11")
    a(f"s_mov_b32 s10, {32*3840}")
    a(f"s_mov_b32 s11, {32*3840}")
    a("s_add_u32 s12, s12, 49152")
    a("s_mov_b32 s60, 81920")
    a("s_mov_b32 s61, 32768")
    a("s_mov_b32 s15, 3")
    a("s_mov_b32 s62, 17")
    a("s_waitcnt lgkmcnt(0)")
    srd(a, 52, 18, 640 * 3840)
    def issue():
        a("s_mov_b32 m0, s12")
        a("s_add_u32 s12, s12, 8192")
        for e in range(4): a(f"buffer_load_dwordx4 v{LO+e}, s[52:55], s9 offen offset:{e*1024} lds")
        a("s_add_u32 s9, s9, s10")
        a("s_mov_b32 s14, s10")
        a("s_mov_b32 s10, s11")
        a("s_mov_b32 s11, s14")
        a("s_sub_u32 s14, s12, s61")
        a("s_cmp_ge_u32 s12, s60")
        a("s_cselect_b32 s12, s14, s12")
    a.label("K1_LD0")
    issue()
    a("s_sub_u32 s15, s15, 1")
    a("s_cmp_lg_u32 s15, 0")
    a("s_cbranch_scc1 K1_LD0")
    a.stamp(0)
    a("s_waitcnt vmcnt(8)")
    a("s_barrier")
    a.stamp(1)
    a.label("K1_LD1")
    issue()
    a("s_sub_u32 s62, s62, 1")
    a("s_cmp_lg_u32 s62, 0")
    a("s_waitcnt vmcnt(8)")
    a("s_barrier")
    a("s_cbranch_scc1 K1_LD1")
    for n in (4, 0):
        a(f"s_waitcnt vmcnt({n})")
        a("s_barrier")
    a.end()
    a.label("K1_CONS")
    XA = 12; XC = 16; WA = 20; EA = 24
    XF = 32; WF = 48; ACC = 64; PFO = 5
    def pf():
        if not PF: return
        a(f"buffer_load_dword v4, v{PFO}, s[52:55], s58 offen")
        a("s_add_u32 s58, s58, s57")
    if PF:
        a("s_lshr_b32 s59, s3, 1")
        a("s_add_u32 s59, s59, 1")
        a(f"v_lshrrev_b32 v{T}, 1, v0")
        a(f"v_and_b32 v{T+1}, 1, v0")
        a("s_bitcmp1_b32 s3, 0")
        a("s_cbranch_scc1 K1_PFX")
        a(f"v_mul_u32_u24 v{T}, 3840, v{T}")
        a(f"v_lshl_add_u32 v{PFO}, v{T+1}, 7, v{T}")
        a("s_lshl_b32 s58, s59, 2")
        a("s_add_u32 s58, s58, s6")
        a(f"s_mul_i32 s58, s58, {32*3840}")
        a("s_lshl_b32 s57, s7, 8")
        a("s_add_u32 s58, s58, s57")
        a(f"s_mov_b32 s57, {256*3840}")
        a("s_waitcnt lgkmcnt(0)")
        srd(a, 52, 18, 640 * 3840)
        a("s_branch K1_PFGO")
        a.label("K1_PFX")
        a(f"v_and_b32 v{T}, 15, v{T}")
        a(f"v_mul_u32_u24 v{T}, 1280, v{T}")
        a(f"v_lshl_add_u32 v{PFO}, v{T+1}, 7, v{T}")
        a("s_and_b32 s57, s4, 1")
        a("s_mul_i32 s57, s57, 7")
        a("s_sub_u32 s57, s7, s57")
        a("s_lshl_b32 s58, s8, 3")
        a("s_add_u32 s58, s58, s57")
        a(f"s_mul_i32 s58, s58, {16*1280}")
        a("s_lshl_b32 s57, s59, 8")
        a("s_add_u32 s58, s58, s57")
        a("s_mov_b32 s57, 512")
        a("s_waitcnt lgkmcnt(0)")
        srd(a, 52, 16, 2048 * 1280)
        a.label("K1_PFGO")
        pf()
        if PF == 3: pf()
    a("s_lshr_b32 s13, s3, 1")
    a("s_and_b32 s14, s3, 1")
    a(f"v_and_b32 v{T}, 31, v0")
    a(f"v_lshrrev_b32 v{T+1}, 5, v0")
    a(f"v_bfe_u32 v{T+2}, v0, 1, 3")
    a(f"v_xor_b32 v{T+2}, v{T+2}, v{T+1}")
    a(f"v_lshlrev_b32 v{T+2}, 4, v{T+2}")
    a(f"v_lshl_add_u32 v{T+2}, v{T}, 7, v{T+2}")
    a("s_lshl_b32 s12, s13, 13")
    a(f"v_add_u32 v{XA}, s12, v{T+2}")
    for ks in range(1, 4):
        a(f"v_xor_b32 v{XA+ks}, {ks*32}, v{XA}")
    for ks in range(4): a(f"v_mov_b32 v{XC+ks}, v{XA+ks}")
    a(f"v_bfe_u32 v{T+2}, v0, 2, 2")
    a(f"v_lshl_add_u32 v{T+3}, v{T+1}, 3, v{T+2}")
    a(f"v_lshlrev_b32 v{T+3}, 8, v{T+3}")
    a(f"v_and_b32 v{T+4}, 3, v0")
    a(f"v_lshl_add_u32 v{T+3}, v{T+4}, 3, v{T+3}")
    a(f"v_bfe_u32 v{T+4}, v0, 4, 1")
    a(f"v_lshl_add_u32 v{T+3}, v{T+4}, 5, v{T+3}")
    a(f"v_add_u32 v{T+3}, 49152, v{T+3}")
    a("s_lshl_b32 s12, s14, 1")
    a(f"v_xor_b32 v{T+4}, s12, v{T+2}")
    a(f"v_lshl_add_u32 v{WA}, v{T+4}, 6, v{T+3}")
    a(f"v_xor_b32 v{WA+1}, 64, v{WA}")
    for i in range(64): a(f"v_mov_b32 v{ACC+i}, 0")
    a("s_lshl_b32 s15, s8, 2")
    a("s_lshl_b32 s12, s13, 1")
    a("s_add_u32 s15, s15, s12")
    a("s_mul_i32 s15, s15, 1280")
    a("s_waitcnt lgkmcnt(0)")
    srd(a, 48, 46, WS_SIZE)
    a("s_mov_b32 s17, 0")
    a("s_cmp_ge_u32 s7, 10")
    a("s_cbranch_scc1 K1_GEMM_V")

    def reads(c, ks):
        buf = ks
        for rb in range(2):
            a(f"ds_read_b128 {v(XF+buf*8+rb*4,4)}, v{XC + 2*(c&1) + ks} offset:{rb*4096}")
        for cb in range(2):
            for s_ in range(2):
                a(f"ds_read_b64_tr_b16 {v(WF+buf*8+cb*4+s_*2,2)}, v{WA+cb} offset:{(c&3)*8192 + ks*4096 + s_*1024}")
    def mfmas(orient, buf):
        for rb in range(2):
            for cb in range(2):
                acc = v(ACC + (rb * 2 + cb) * 16, 16)
                x = v(XF + buf * 8 + rb * 4, 4); w = v(WF + buf * 8 + cb * 4, 4)
                A, B = (w, x) if orient == "qk" else (x, w)
                a(f"v_mfma_f32_32x32x16_bf16 {acc}, {A}, {B}, {acc}")
    def body(orient):
        a.stamp(0)
        a("s_barrier")
        a.stamp(1)
        reads(0, 0)
        a("s_mov_b32 s16, 5")
        a.label(f"K1_GL_{orient}")
        if PF in (1, 2):
            a(f"s_cmp_lg_u32 s16, {6 - PF}")
            a(f"s_cbranch_scc1 K1_NPF_{orient}")
            pf()
            a.label(f"K1_NPF_{orient}")
        for c in range(4):
            reads(c, 1)
            if c & 1:
                a("s_add_u32 s17, s17, 16384")
                a("s_cmp_eq_u32 s17, 49152")
                a("s_cselect_b32 s17, 0, s17")
                for ks in range(4): a(f"v_add_u32 v{XC+ks}, s17, v{XA+ks}")
            a("s_waitcnt lgkmcnt(6)")
            mfmas(orient, 0)
            a("s_waitcnt lgkmcnt(0)")
            a("s_barrier")
            reads(c + 1, 0)
            mfmas(orient, 1)
        a("s_sub_u32 s16, s16, 1")
        a("s_cmp_lg_u32 s16, 0")
        a(f"s_cbranch_scc1 K1_GL_{orient}")
        a.stamp(2)

    a("s_lshl_b32 s12, s7, 5")
    a("s_lshl_b32 s60, s14, 4")
    a("s_add_u32 s12, s12, s60")
    a(f"v_add_u32 v{T+2}, s12, v{T+1}")
    a(f"v_lshlrev_b32 v{T+6}, 4, v{T}")
    a(f"v_lshl_add_u32 v{T+7}, v{T}, 3, 0")
    a(f"v_add_u32 v{T+7}, 1024, v{T+7}")
    a(f"s_mov_b32 s61, {HS}")
    for cb in range(2):
        for qd in range(4):
            e = EA + cb * 4 + qd
            a(f"v_add_u32 v{T+3}, {8*cb+2*qd}, v{T+2}")
            a(f"v_mul_u32_u24 v{T+4}, 205, v{T+3}")
            a(f"v_lshrrev_b32 v{T+4}, 10, v{T+4}")
            a(f"v_mul_u32_u24 v{T+5}, 5, v{T+4}")
            a(f"v_sub_u32 v{T+3}, v{T+3}, v{T+5}")
            a(f"v_cmp_eq_u32 vcc, 4, v{T+3}")
            a(f"v_lshrrev_b32 v{T+5}, 1, v{T+3}")
            a(f"v_lshl_add_u32 v{T+5}, v{T+5}, 9, v{T+6}")
            a(f"v_and_b32 v{T+3}, 1, v{T+3}")
            a(f"v_lshl_add_u32 v{T+5}, v{T+3}, 3, v{T+5}")
            a(f"v_cndmask_b32 v{T+5}, v{T+5}, v{T+7}, vcc")
            a(f"v_mad_u32_u24 v{e}, v{T+4}, s61, v{T+5}")
    qs = (20 ** -0.5) * math.log2(math.e)
    a(f"s_mov_b32 s62, {f2u(qs)}")
    a("s_cmp_ge_u32 s7, 5")
    a("s_cselect_b32 s62, 1.0, s62")
    body("qk")
    for rb in range(2):
        for cb in range(2):
            ac = ACC + (rb * 2 + cb) * 16
            for qd in range(4):
                r = ac + qd * 4
                for i in range(4): a(f"v_mul_f32 v{r+i}, s62, v{r+i}")
                a(f"v_cvt_pk_bf16_f32 v{r}, v{r}, v{r+1}")
                a(f"v_cvt_pk_bf16_f32 v{r+1}, v{r+2}, v{r+3}")
                a(f"buffer_store_dwordx2 {v(r,2)}, v{EA+cb*4+qd}, {SWS}, s15 offen offset:{rb*1280}{SCQ}")
    a.end()
    a.label("K1_GEMM_V")
    a("s_sub_u32 s12, s7, 10")
    a("s_lshl_b32 s12, s12, 7")
    a("s_lshl_b32 s60, s14, 6")
    a("s_add_u32 s12, s12, s60")
    a(f"s_mov_b32 s61, {HS}")
    a(f"v_mul_u32_u24 v{T+6}, 320, v{T+1}")
    for cb in range(2):
        a(f"v_add_u32 v{T+3}, s12, v{T}")
        if cb: a(f"v_add_u32 v{T+3}, 32, v{T+3}")
        a(f"v_mul_u32_u24 v{T+4}, 3277, v{T+3}")
        a(f"v_lshrrev_b32 v{T+4}, 16, v{T+4}")
        a(f"v_mul_u32_u24 v{T+5}, 20, v{T+4}")
        a(f"v_sub_u32 v{T+3}, v{T+3}, v{T+5}")
        a(f"v_lshl_add_u32 v{T+5}, v{T+3}, 4, v{T+6}")
        a(f"v_mad_u32_u24 v{EA+cb}, v{T+4}, s61, v{T+5}")
    a(f"s_add_u32 s15, s15, {VF}")
    body("v")
    for rb in range(2):
        for cb in range(2):
            ac = ACC + (rb * 2 + cb) * 16
            for g in range(2):
                r = ac + g * 8
                for i in range(4): a(f"v_cvt_pk_bf16_f32 v{r+i}, v{r+2*i}, v{r+2*i+1}")
                a(f"buffer_store_dwordx4 {v(r,4)}, v{EA+cb}, {SWS}, s15 offen offset:{rb*1280+g*640}{SC}")
    a.end()

def gate_role(a):
    srd(a, 52, 16, 2048 * 1280)
    SX = "s[52:55]"
    G = 8; X = 32; ACC = 112; T = 2
    a(f"s_mul_i32 s5, s4, {32*1280}")
    a(f"v_and_b32 v{T}, 15, v0")
    a(f"v_lshlrev_b32 v{T+1}, 4, v{T}")
    for e in range(5):
        a(f"global_load_dwordx4 {v(G+4*e,4)}, v{T+1}, s[40:41] offset:{e*256}")
    a(f"v_lshrrev_b32 v{T+2}, 4, v0")
    a(f"v_mul_u32_u24 v{T+3}, 1280, v{T+2}")
    a(f"v_add_u32 v{T+3}, v{T+3}, v{T+1}")
    for grp in range(8):
        a(f"v_mov_b32 v{ACC+grp}, 0")
    def gl(grp):
        for e in range(5):
            a(f"buffer_load_dwordx4 {v(X+(grp&3)*20+e*4,4)}, v{T+3}, {SX}, s5 offen offset:{e*256}")
        if grp < 7: a(f"s_add_u32 s5, s5, {4*1280}")
    for grp in range(4): gl(grp)
    for grp in range(8):
        a(f"s_waitcnt vmcnt({min(3, 7-grp)*5})")
        for i in range(20):
            a(f"v_dot2c_f32_bf16 v{ACC+grp}, v{X+(grp&3)*20+i}, v{G+i}")
        if grp < 4: gl(grp + 4)
    for sh in (8, 4, 2, 1):
        for grp in range(8):
            a(f"v_add_f32_dpp v{ACC+grp}, v{ACC+grp}, v{ACC+grp} row_ror:{sh} row_mask:0xf bank_mask:0xf")
    for k in range(1, 8):
        a(f"v_cmp_eq_u32 vcc, {k}, v{T}")
        a(f"v_cndmask_b32 v{ACC}, v{ACC}, v{ACC+k}, vcc")
    R = ACC
    a(f"v_cvt_pk_bf16_f32 v{R}, v{R}, v{R}")
    a(f"v_lshlrev_b32 v{R}, 16, v{R}")
    a(f"v_mul_f32 v{R}, {f2u(-math.log2(math.e))}, v{R}")
    a(f"v_exp_f32 v{R}, v{R}")
    a(f"v_add_f32 v{R}, 1.0, v{R}")
    a(f"v_rcp_f32 v{R}, v{R}")
    a(f"v_cvt_pk_bf16_f32 v{R}, v{R}, v{R}")
    a(f"v_lshlrev_b32 v{R}, 16, v{R}")
    a(f"v_lshl_add_u32 v{T+3}, v{T}, 2, v{T+2}")
    a(f"v_lshlrev_b32 v{T+3}, 2, v{T+3}")
    a("s_lshl_b32 s5, s4, 7")
    a(f"s_add_u32 s5, s5, {GT}")
    a(f"v_cmp_gt_u32 vcc, 8, v{T}")
    a("s_and_saveexec_b64 s[6:7], vcc")
    a(f"buffer_store_dword v{R}, v{T+3}, {SWS}, s5 offen")
    a.end()

def cmul(a, d, x, y):
    a(f"v_pk_mul_f32 {v(d,2)}, {v(x,2)}, {v(y,2)} op_sel:[0,0] op_sel_hi:[0,1]")
    a(f"v_pk_fma_f32 {v(d,2)}, {v(x,2)}, {v(y,2)}, {v(d,2)} op_sel:[1,1,0] op_sel_hi:[1,0,1] neg_lo:[0,1,0]")

def cmul2(a, d, x, y):
    for o in (0, 2):
        a(f"v_pk_mul_f32 {v(d+o,2)}, {v(x+o,2)}, {v(y+o,2)} op_sel:[0,0] op_sel_hi:[0,1]")
    for o in (0, 2):
        a(f"v_pk_fma_f32 {v(d+o,2)}, {v(x+o,2)}, {v(y+o,2)}, {v(d+o,2)} op_sel:[1,1,0] op_sel_hi:[1,0,1] neg_lo:[0,1,0]")

def kgen_role(a):
    log2e = math.log2(math.e)
    a("s_lshl_b32 s5, s4, 8")
    T = 2
    P = 52
    DSK = 8
    a(f"v_lshl_add_u32 v{T}, v0, 2, s5")
    for i, pr in enumerate((24, 26, 28, 30, 32, 34)):
        a(f"global_load_dword v{P+i}, v{T}, s[{pr}:{pr+1}]")
    a("s_lshl_b32 s6, s4, 1")
    a(f"v_mov_b32 v{T+1}, s6")
    a(f"global_load_ushort v{P+6}, v{T+1}, s[36:37]")
    a(f"global_load_ushort v{DSK}, v{T+1}, s[38:39]")
    SL = 528
    a("s_mul_i32 s7, s3, 13312")
    WRA = 9; RDA = 10; TB0 = 11; TB1 = 12; TB2 = 13
    a(f"v_lshl_add_u32 v{WRA}, v0, 3, s7")
    a(f"v_and_b32 v{T+2}, 15, v0")
    a(f"v_lshrrev_b32 v{T+3}, 4, v0")
    a(f"v_mul_u32_u24 v{RDA}, {SL}, v{T+2}")
    a(f"v_lshl_add_u32 v{RDA}, v{T+3}, 4, v{RDA}")
    a(f"v_add_u32 v{RDA}, s7, v{RDA}")
    a("s_add_u32 s8, s7, 8448")
    a(f"v_lshlrev_b32 v{TB0}, 4, v{T+2}")
    a(f"v_lshl_add_u32 v{TB0}, v{T+3}, 2, v{TB0}")
    a(f"v_lshl_add_u32 v{TB0}, v{TB0}, 2, s8")
    a(f"v_lshlrev_b32 v{T+4}, 3, v{T+2}")
    a(f"v_lshl_add_u32 v{T+4}, v{T+3}, 2, v{T+4}")
    a(f"v_add_u32 v{T+4}, 256, v{T+4}")
    a(f"v_lshlrev_b32 v{T+5}, 2, v{T+2}")
    a(f"v_lshl_add_u32 v{T+5}, v{T+3}, 6, v{T+5}")
    a(f"v_add_u32 v{T+5}, 256, v{T+5}")
    a(f"v_cmp_gt_u32 vcc, 32, v0")
    a(f"v_cndmask_b32 v{TB1}, v{T+5}, v{T+4}, vcc")
    a(f"v_lshl_add_u32 v{TB1}, v{TB1}, 2, s8")
    a(f"v_lshlrev_b32 v{T+4}, 1, v{T+2}")
    a(f"v_lshl_add_u32 v{T+4}, v{T+3}, 6, v{T+4}")
    a(f"v_add_u32 v{T+4}, 512, v{T+4}")
    a(f"v_mov_b32 v{T+5}, 704")
    a(f"v_cmp_ge_u32 vcc, 32, v0")
    a(f"v_cndmask_b32 v{TB2}, v{T+5}, v{T+4}, vcc")
    a(f"v_lshl_add_u32 v{TB2}, v{TB2}, 2, s8")
    a("s_waitcnt vmcnt(0)")
    a.stamp(0)
    DT = 14
    hi = struct.unpack("<f", struct.pack("<f", log2e))[0]; lo = log2e - hi
    a(f"v_lshlrev_b32 v{T}, 16, v{P+6}")
    a(f"s_mov_b32 s9, {f2u(hi)}")
    a(f"v_mul_f32 v{T+1}, s9, v{T}")
    a(f"v_fma_f32 v{T+2}, v{T}, s9, -v{T+1}")
    a(f"v_mov_b32 v{T+3}, {f2u(lo)}")
    a(f"v_fmac_f32 v{T+2}, v{T}, v{T+3}")
    a(f"v_exp_f32 v{T+1}, v{T+1}")
    a(f"v_mul_f32 v{T+2}, {f2u(math.log(2.0))}, v{T+2}")
    a(f"v_fma_f32 v{T+1}, v{T+1}, v{T+2}, v{T+1}")
    a(f"v_cvt_pk_bf16_f32 v{DT}, v{T+1}, v{T+1}")
    a(f"v_lshlrev_b32 v{DT}, 16, v{DT}")
    A_ = 16; B_ = 20; C_ = 24; W_ = 28
    for grp, (re_, im_) in ((A_, (P, P + 1)), (B_, (P + 2, P + 3)), (C_, (P + 4, P + 5))):
        a(f"v_lshlrev_b32 v{grp}, 16, v{re_}")
        a(f"v_lshlrev_b32 v{grp+1}, 16, v{im_}")
        a(f"v_and_b32 v{grp+2}, 0xffff0000, v{re_}")
        a(f"v_and_b32 v{grp+3}, 0xffff0000, v{im_}")
    for i in range(4):
        a(f"v_mul_f32 v{A_+i}, v{DT}, v{A_+i}")
        a(f"v_mul_f32 v{B_+i}, v{DT}, v{B_+i}")
    cmul2(a, W_, C_, B_)
    a(f"s_mov_b32 s10, {f2u(1.0/(2*math.pi))}")
    for o in (0, 2):
        a(f"v_mul_f32 v{A_+o}, s9, v{A_+o}")
        a(f"v_mul_f32 v{A_+o+1}, s10, v{A_+o+1}")
    Z1 = 32; Z16 = 36; Z256 = 40
    def base(dst, n):
        E = 44
        a(f"s_mov_b32 s11, {f2u(float(n))}")
        for o in (0, 2):
            if n != 1:
                a(f"v_mul_f32 v{E+o}, s11, v{A_+o}")
                a(f"v_mul_f32 v{E+o+1}, s11, v{A_+o+1}")
                a(f"v_fract_f32 v{E+o+1}, v{E+o+1}")
                a(f"v_exp_f32 v{E+o}, v{E+o}")
            else:
                a(f"v_fract_f32 v{E+o+1}, v{A_+o+1}")
                a(f"v_exp_f32 v{E+o}, v{A_+o}")
        for o in (0, 2):
            a(f"v_cos_f32 v{dst+o}, v{E+o+1}")
            a(f"v_sin_f32 v{dst+o+1}, v{E+o+1}")
        for o in (0, 2):
            a(f"v_pk_mul_f32 {v(dst+o,2)}, {v(dst+o,2)}, {v(E+o,2)} op_sel:[0,0] op_sel_hi:[1,0]")
    base(Z16, 16)
    PK = 2
    cnt = [0]
    def put(src, slot, neg=False):
        p = PK + 2 * (cnt[0] & 1); cnt[0] += 1
        n = "-" if neg else ""
        a(f"v_cvt_pk_bf16_f32 v{p}, v{src}, {n}v{src+1}")
        a(f"v_cvt_pk_bf16_f32 v{p+1}, v{src+2}, {n}v{src+3}")
        a(f"ds_write_b64 v{WRA}, {v(p,2)} offset:{slot*SL}")
    CA = 44; CB = 48
    put(W_, 0, True)
    cur = W_
    for j in range(1, 16):
        nxt = CA if cur != CA else CB
        cmul2(a, nxt, cur, Z16)
        put(nxt, j, True)
        cur = nxt
    RF = 52
    for s_ in range(8):
        a(f"ds_read_b128 {v(RF+4*s_,4)}, v{RDA} offset:{64*s_}")
    base(Z1, 1)
    base(Z256, 256)
    EV = 84
    ONE = 6
    a(f"v_mov_b32 v{ONE}, 0x3f80")
    a(f"v_mov_b32 v{ONE+1}, 0x3f80")
    a(f"ds_write_b64 v{WRA}, {v(ONE,2)} offset:0")
    put(Z1, 1)
    cur = Z1
    for j in range(2, 16):
        nxt = EV + 4 * (j // 2 - 1) if j % 2 == 0 else CA
        cmul2(a, nxt, cur, Z1)
        put(nxt, j)
        cur = nxt
    LF = 112
    D = 16
    def tile(t):
        for s_ in range(4):
            a(f"ds_read_b128 {v(LF+4*s_,4)}, v{RDA} offset:{64*s_}")
    def tile_mfma(t):
        for s_ in range(4):
            a(f"s_waitcnt lgkmcnt({3-s_})")
            a(f"v_mfma_f32_16x16x32_bf16 {v(D+4*t,4)}, {v(LF+4*s_,4)}, {v(RF+4*s_,4)}, {'0' if s_==0 else v(D+4*t,4)}")
        for s_ in range(4, 8):
            a(f"ds_read_b128 {v(LF+4*(s_-4),4)}, v{RDA} offset:{64*s_}")
        for s_ in range(4, 8):
            a(f"s_waitcnt lgkmcnt({7-s_})")
            a(f"v_mfma_f32_16x16x32_bf16 {v(D+4*t,4)}, {v(LF+4*(s_-4),4)}, {v(RF+4*s_,4)}, {v(D+4*t,4)}")
    ev = lambda j: EV + 4 * (j // 2 - 1)
    tile(0)
    Z512 = 32; Z768 = 36
    cmul2(a, Z512, Z256, Z256)
    cmul2(a, Z768, Z512, Z256)
    tile_mfma(0)
    put(Z256, 0)
    for m in range(1, 8):
        cmul2(a, CA, Z256, ev(2 * m)); put(CA, m)
    for k, zb in ((8, Z512), (12, Z768)):
        put(zb, k)
        for i in range(1, 4):
            cmul2(a, CA, zb, ev(4 * i)); put(CA, k + i)
    tile(1)
    Z1024 = 88;
    cmul2(a, CB, Z512, Z512)
    tile_mfma(1)
    cur = CB
    oth = {CB: 36, 36: CB}
    for aa in range(4):
        put(cur, 2 * aa)
        cmul2(a, CA, cur, ev(8)); put(CA, 2 * aa + 1)
        nxt = oth[cur]
        cmul2(a, nxt, cur, Z256)
        cur = nxt
    put(cur, 8)
    tile(2)
    tile_mfma(2)
    a.stamp(1)
    a(f"v_lshlrev_b32 v{DSK}, 16, v{DSK}")
    a("s_mov_b64 exec, 1")
    a(f"v_add_f32 v{D}, v{D}, v{DSK}")
    a("s_mov_b64 exec, -1")
    TP = 52
    for t in range(3):
        for r in range(4):
            a(f"v_cvt_pk_bf16_f32 v{TP+4*t+r}, v{D+4*t+r}, v{D+4*t+r}")
    a(f"ds_write_b128 v{TB0}, {v(TP,4)}")
    a(f"ds_write_b128 v{TB1}, {v(TP+4,4)}")
    a(f"ds_write_b64 v{TB2}, {v(TP+8,2)}")
    a(f"ds_write_b64 v{TB2}, {v(TP+10,2)} offset:128")
    RA = 2
    a(f"v_lshlrev_b32 v{RA}, 3, v0")
    a(f"v_lshlrev_b32 v{RA+1}, 2, v0")
    a(f"v_add_u32 v{RA+2}, 128, v{RA+1}")
    a(f"v_cmp_gt_u32 vcc, 32, v0")
    a(f"v_cndmask_b32 v{RA}, v{RA+2}, v{RA}, vcc")
    a(f"v_lshl_add_u32 v{RA}, v{RA}, 2, s8")
    a(f"v_lshl_add_u32 v{RA+2}, v0, 3, s8")
    a(f"v_add_u32 v{RA+1}, s8, v{RA+1}")
    E0 = 64; E1 = 72; E2 = 76; E3 = 78
    a(f"ds_read_b128 {v(E0,4)}, v{RA}")
    a(f"ds_read_b128 {v(E0+4,4)}, v{RA} offset:16")
    a(f"ds_read_b64 {v(E1,2)}, v{RA+2} offset:{384*4}")
    a(f"ds_read_b32 v{E1+2}, v{RA+2} offset:{384*4+8}")
    a(f"ds_read_b32 v{E2}, v{RA+1} offset:{512*4}")
    a(f"ds_read_b32 v{E2+1}, v{RA+1} offset:{513*4}")
    a(f"ds_read_b32 v{E3}, v{RA+1} offset:{576*4}")
    a(f"ds_read_b32 v{E3+1}, v{RA+1} offset:{577*4}")
    a(f"v_lshlrev_b32 v{RA+3}, 4, v0")
    a(f"v_sub_u32 v{RA+3}, {63*16}, v{RA+3}")
    a(f"s_mul_i32 s12, s4, {KCS}")
    a(f"s_add_u32 s12, s12, {KC}")
    a("s_mov_b32 s13, 0xffff")
    a(f"v_and_b32 v{RA+4}, 1, v0")
    a(f"v_sub_u32 v{RA+4}, 0, v{RA+4}")
    a(f"v_or_b32 v{RA+4}, 0xffff, v{RA+4}")
    O = 84
    a("s_waitcnt lgkmcnt(0)")
    a(f"v_bfi_b32 v{O}, s13, v{E0+4}, v{E0+3}")
    a(f"v_mov_b32 v{O+1}, v{E0+2}")
    a(f"v_bfi_b32 v{O+2}, s13, v{E0+2}, v{E0+1}")
    a(f"v_mov_b32 v{O+3}, v{E0}")
    a("s_mov_b64 exec, 0xffffffff")
    for i in range(4):
        a(f"v_bfi_b32 v{O+i}, s13, v{E0+7-2*i}, v{E0+6-2*i}")
    a("s_mov_b64 exec, -1")
    a(f"buffer_store_dwordx4 {v(O,4)}, v{RA+3}, {SWS}, s12 offen offset:{192*16}{SC}")
    a(f"v_mov_b32 v{O+4}, v{E1+2}")
    a(f"v_mov_b32 v{O+5}, v{E1+1}")
    a(f"v_bfi_b32 v{O+6}, s13, v{E1+1}, v{E1}")
    a(f"v_mov_b32 v{O+7}, v{E1}")
    a(f"buffer_store_dwordx4 {v(O+4,4)}, v{RA+3}, {SWS}, s12 offen offset:{128*16}{SC}")
    for u, E in enumerate((E2, E3)):
        o = O + 8 + 4 * u
        a(f"v_mov_b32 v{o}, v{E+1}")
        a(f"v_bfi_b32 v{o+1}, v{RA+4}, v{E+1}, v{E}")
        a(f"v_mov_b32 v{o+2}, v{E}")
        a(f"v_mov_b32 v{o+3}, v{E}")
        a(f"buffer_store_dwordx4 {v(o,4)}, v{RA+3}, {SWS}, s12 offen offset:{(64-64*u)*16}{SC}")
    for i in range(4): a(f"v_mov_b32 v{O+16+i}, 0")
    a(f"v_mov_b32 v{RA}, 4096")
    a("s_mov_b64 exec, 1")
    a(f"buffer_store_dwordx4 {v(O+16,4)}, v{RA}, {SWS}, s12 offen")
    a.end()

def trans_role(a):
    a("s_mul_i32 s7, s3, 13312")
    srd(a, 52, 16, 2048 * 1280)
    SX = "s[52:55]"
    T = 2
    a("s_mul_i32 s5, s4, 205")
    a("s_lshr_b32 s5, s5, 10")
    a("s_mul_i32 s6, s5, 5")
    a("s_sub_u32 s6, s4, s6")
    a(f"s_mul_i32 s8, s5, {32*1280}")
    a("s_lshl_b32 s9, s6, 8")
    a("s_add_u32 s8, s8, s9")
    a(f"v_lshrrev_b32 v{T}, 4, v0")
    a(f"v_and_b32 v{T+1}, 15, v0")
    a(f"v_lshlrev_b32 v{T+2}, 1, v{T}")
    a(f"v_xor_b32 v{T+2}, v{T+2}, v{T+1}")
    a(f"v_mul_u32_u24 v{T+3}, 1280, v{T}")
    a(f"v_lshl_add_u32 v{T+4}, v{T+2}, 4, v{T+3}")
    a(f"v_xor_b32 v{T+2}, 8, v{T+2}")
    a(f"v_lshl_add_u32 v{T+5}, v{T+2}, 4, v{T+3}")
    for e in range(8):
        a(f"s_add_u32 m0, s7, {e*1024}")
        a(f"s_add_u32 s10, s8, {e*4*1280}")
        a(f"buffer_load_dwordx4 v{T+4+((e>>1)&1)}, {SX}, s10 offen lds")
    a(f"v_bfe_u32 v{T+6}, v0, 2, 2")
    a(f"v_lshl_add_u32 v{T+7}, v{T}, 3, v{T+6}")
    a(f"v_lshlrev_b32 v{T+7}, 8, v{T+7}")
    a(f"v_and_b32 v{T+8}, 3, v0")
    a(f"v_lshl_add_u32 v{T+7}, v{T+8}, 3, v{T+7}")
    a(f"v_bfe_u32 v{T+8}, v0, 4, 1")
    a(f"v_lshl_or_b32 v{T+8}, v{T+8}, 2, v{T+6}")
    a(f"v_lshl_add_u32 v{T+7}, v{T+8}, 5, v{T+7}")
    RA = 16
    for cg in range(8):
        a(f"v_xor_b32 v{RA+cg}, {cg*32}, v{T+7}")
        a(f"v_add_u32 v{RA+cg}, s7, v{RA+cg}")
    a(f"v_lshlrev_b32 v{T+9}, 12, v{T+1}")
    a(f"v_lshl_add_u32 v{T+9}, v{T}, 4, v{T+9}")
    a(f"s_lshl_b32 s10, s6, 19")
    a("s_lshl_b32 s11, s5, 6")
    a("s_add_u32 s10, s10, s11")
    a(f"s_add_u32 s10, s10, {XT}")
    a("s_waitcnt vmcnt(0)")
    D = 32
    for cg in range(8):
        for s_ in range(2):
            a(f"ds_read_b64_tr_b16 {v(D+4*cg+2*s_,2)}, v{RA+cg} offset:{s_*1024}")
    for cg in range(8):
        a(f"s_waitcnt lgkmcnt({(7-cg)*2})")
        a(f"buffer_store_dwordx4 {v(D+4*cg,4)}, v{T+9}, {SWS}, s10 offen{SC}")
        if cg < 7: a(f"s_add_u32 s10, s10, {16*4096}")
    a.end()
    a.label("K1_WOT")
    a("s_mul_i32 s7, s3, 13312")
    srd(a, 52, 20, 640 * 1280)
    a("s_mul_i32 s5, s4, 205")
    a("s_lshr_b32 s5, s5, 10")
    a("s_mul_i32 s6, s5, 5")
    a("s_sub_u32 s6, s4, s6")
    a(f"s_mul_i32 s8, s5, {40*1280}")
    a("s_lshl_b32 s9, s6, 8")
    a("s_add_u32 s8, s8, s9")
    a(f"v_lshrrev_b32 v{T}, 4, v0")
    a(f"v_and_b32 v{T+1}, 15, v0")
    a(f"v_lshlrev_b32 v{T+2}, 2, v{T}")
    a(f"v_xor_b32 v{T+2}, v{T+2}, v{T+1}")
    a(f"v_mul_u32_u24 v{T+3}, 1280, v{T}")
    a(f"v_lshl_add_u32 v{T+4}, v{T+2}, 4, v{T+3}")
    for e in range(10):
        a(f"s_add_u32 m0, s7, {e*1024}")
        a(f"s_add_u32 s10, s8, {e*4*1280}")
        a(f"buffer_load_dwordx4 v{T+4}, {SX}, s10 offen lds")
    a(f"v_bfe_u32 v{T+6}, v0, 2, 2")
    a(f"v_lshlrev_b32 v{T+7}, 8, v{T+6}")
    a(f"v_and_b32 v{T+8}, 3, v0")
    a(f"v_lshl_add_u32 v{T+7}, v{T+8}, 3, v{T+7}")
    a(f"v_bfe_u32 v{T+8}, v0, 4, 1")
    a(f"v_lshl_add_u32 v{T+7}, v{T+8}, 5, v{T+7}")
    a(f"v_lshrrev_b32 v{T+8}, 5, v0")
    a(f"v_xor_b32 v{T+8}, v{T+8}, v{T+6}")
    a(f"v_lshl_add_u32 v{T+7}, v{T+8}, 6, v{T+7}")
    a(f"v_xor_b32 v{RA+1}, 128, v{T+7}")
    a(f"v_add_u32 v{RA}, s7, v{T+7}")
    a(f"v_add_u32 v{RA+1}, s7, v{RA+1}")
    a("s_lshl_b32 s11, s6, 3")
    for cs in range(2):
        a(f"v_add_u32 v{T+10}, s11, v{T}")
        if cs: a(f"v_add_u32 v{T+10}, 4, v{T+10}")
        a(f"v_mul_u32_u24 v{T+11}, 205, v{T+10}")
        a(f"v_lshrrev_b32 v{T+11}, 10, v{T+11}")
        a(f"v_mul_u32_u24 v{T+11}, 95, v{T+11}")
        a(f"v_add_u32 v{T+10}, v{T+10}, v{T+11}")
        a(f"v_lshlrev_b32 v{T+10}, 10, v{T+10}")
        a(f"v_lshl_add_u32 v{RA+2+cs}, v{T+1}, 4, v{T+10}")
    a("s_lshr_b32 s9, s5, 2")
    a("s_mul_i32 s9, s9, 25600")
    a(f"s_add_u32 s9, s9, {WOF}")
    a("s_and_b32 s12, s5, 3")
    a("s_lshl_b32 s13, s12, 8")
    a("s_add_u32 s13, s13, s9")
    a("s_add_u32 s13, s13, 20480")
    a("s_mul_i32 s12, s12, 5120")
    a("s_add_u32 s9, s9, s12")
    a("s_waitcnt vmcnt(0)")
    rows = [(0, 8), (4, 12), (20, 28), (24, 32), (16, 36)]
    for gi in range(5):
        for cs in range(2):
            for s_ in range(2):
                a(f"ds_read_b64_tr_b16 {v(D+(gi*2+cs)*4+2*s_,2)}, v{RA+cs} offset:{rows[gi][s_]*256}")
        if gi == 2: a("s_waitcnt lgkmcnt(4)")
    a("s_waitcnt lgkmcnt(0)")
    for gi in range(5):
        for cs in range(2):
            a(f"buffer_store_dwordx4 {v(D+(gi*2+cs)*4,4)}, v{RA+2+cs}, {SWS}, s{9 if gi < 4 else 13} offen offset:{gi*256 if gi < 4 else 0}{SC}")
    a.end()

LAUNCH = "; @launch kernel=k1_kernel grid=(512,1,1) block=(512,1,1) lds=81920"
def k1(a, sc="", scq="", pf=0, only=""):
    global SC, SCQ, PF
    SC = sc; SCQ = scq; PF = pf
    kernel_header(a, "k1_kernel")
    a(f"s_cmp_ge_u32 s2, {240 if only == 'gemm' else 512}")
    a("s_cbranch_scc1 K1_EXIT")
    if only == "aux":
        a(f"s_cmp_lt_u32 s2, 240")
        a("s_cbranch_scc1 K1_EXIT")
    a.tstart()
    common_prologue(a)
    a("s_cmp_ge_u32 s2, 240")
    a("s_cbranch_scc1 K1_AUX")
    gemm_role(a)
    a.label("K1_AUX")
    a("s_cmp_ge_u32 s3, 6")
    a("s_cbranch_scc1 K1_EXIT")
    a("s_cmp_lt_u32 s2, 256")
    a("s_cbranch_scc1 K1_AUXA")
    a("s_cmp_ge_u32 s2, 496")
    a("s_cbranch_scc1 K1_AUXC")
    a("s_cmp_ge_u32 s3, 4")
    a("s_cbranch_scc1 K1_EXIT")
    aux_prologue(a)
    a("s_sub_u32 s5, s2, 256")
    a("s_lshl_b32 s4, s5, 1")
    a("s_add_u32 s4, s4, s3")
    a("s_cmp_lt_u32 s3, 2")
    a("s_cbranch_scc1 K1_KGEN")
    a("s_cmp_eq_u32 s3, 3")
    a("s_cbranch_scc1 K1_AUXB3")
    a("s_add_u32 s4, s5, 480")
    a("s_cmp_lt_u32 s5, 160")
    a("s_cbranch_scc1 K1_KGEN")
    a("s_sub_u32 s4, s5, 160")
    a("s_branch K1_TRANS")
    a.label("K1_AUXB3")
    a("s_add_u32 s4, s5, 80")
    a("s_cmp_lt_u32 s5, 192")
    a("s_cbranch_scc1 K1_TRANS")
    a("s_endpgm ")
    a.label("K1_AUXA")
    aux_prologue(a)
    a("s_sub_u32 s4, s2, 240")
    a("s_mul_i32 s4, s4, 6")
    a("s_add_u32 s4, s4, s3")
    a("s_cmp_lt_u32 s4, 64")
    a("s_cbranch_scc1 K1_GATE")
    a("s_sub_u32 s4, s4, 64")
    a("s_branch K1_WOT")
    a.label("K1_AUXC")
    aux_prologue(a)
    a("s_lshl_b32 s4, s2, 3")
    a("s_add_u32 s4, s4, s3")
    a("s_cmp_lg_u32 s4, 4088")
    a("s_cbranch_scc1 K1_NOZ")
    for i in range(4): a(f"v_mov_b32 v{4+i}, 0")
    a("v_lshlrev_b32 v2, 4, v0")
    a(f"s_mov_b32 s4, {FL}")
    a(f"buffer_store_dwordx4 v[4:7], v2, {SWS}, s4 offen sc1")
    a.label("K1_NOZ")
    a("s_sub_u32 s4, s2, 496")
    a("s_mul_i32 s4, s4, 6")
    a("s_add_u32 s4, s4, s3")
    a("s_add_u32 s4, s4, 32")
    a("s_cmp_lt_u32 s4, 80")
    a("s_cbranch_scc1 K1_WOT")
    a("s_add_u32 s4, s4, 192")
    a("s_branch K1_TRANS")
    a.label("K1_GATE"); gate_role(a)
    a.label("K1_KGEN"); kgen_role(a)
    a.label("K1_TRANS"); trans_role(a)
    a.label("K1_EXIT"); a("s_endpgm ")
    kernel_desc(a, "k1_kernel", 128)
```

```python
import re

def v(i, n=1):
    return f"v{i}" if n == 1 else f"v[{i}:{i+n-1}]"
def s(i, n=1):
    return f"s{i}" if n == 1 else f"s[{i}:{i+n-1}]"

_reg_re = re.compile(r"^(-|\|)?(abs\()?-?([vsa])(?:(\d+)|\[(\d+):(\d+)\])\)?\|?$")
def parse_reg(tok):
    tok = tok.strip()
    if tok in ("vcc",): return [("s", 106), ("s", 107)]
    if tok == "vcc_lo": return [("s", 106)]
    if tok == "vcc_hi": return [("s", 107)]
    if tok == "exec": return [("s", 126), ("s", 127)]
    if tok == "exec_lo": return [("s", 126)]
    if tok == "exec_hi": return [("s", 127)]
    if tok == "m0": return [("s", 124)]
    m = _reg_re.match(tok)
    if not m: return []
    k = m.group(3)
    if m.group(4) is not None:
        return [(k, int(m.group(4)))]
    return [(k, i) for i in range(int(m.group(5)), int(m.group(6)) + 1)]

TRANS = ("v_exp_f32", "v_log_f32", "v_rcp_f32", "v_rsq_f32", "v_sqrt_f32", "v_sin_f32", "v_cos_f32", "v_exp_f16", "v_rcp_iflag_f32")

class Ins:
    def __init__(self, text):
        self.text = text
        t = text.split(";")[0].strip()
        parts = t.split(None, 1)
        self.op = parts[0]
        rest = parts[1] if len(parts) > 1 else ""
        ops = []; cur = ""; depth = 0
        for ch in rest:
            if ch in "[(": depth += 1
            if ch in "])": depth -= 1
            if ch == "," and depth == 0:
                ops.append(cur.strip()); cur = ""
            else: cur += ch
        if cur.strip(): ops.append(cur.strip())
        self.mods = ""
        if ops:
            last = ops[-1].split(None, 1)
            ops[-1] = last[0]
            if len(last) > 1: self.mods = last[1]
        self.ops = ops
        op = self.op
        self.kind = "other"
        self.defs = []; self.uses = []; self.srcC = []; self.storedata = []
        R = [parse_reg(o) for o in ops]
        if op.startswith("v_mfma"):
            self.kind = "mfma"
            self.defs = R[0]; self.uses = R[1] + R[2] + R[3]; self.srcC = R[3]; self.srcAB = R[1] + R[2]
            self.passes = 4 if "16x16" in op else 8
        elif op.startswith("v_cmp"):
            self.kind = "valu"; self.defs = R[0]; self.uses = sum(R[1:], [])
        elif op in ("v_readfirstlane_b32", "v_readlane_b32"):
            self.kind = "valu"; self.defs = R[0]; self.uses = sum(R[1:], [])
        elif op.startswith("v_permlane32_swap") or op.startswith("v_permlane16_swap"):
            self.kind = "valu"; self.defs = R[0] + R[1]; self.uses = R[0] + R[1]
        elif op.startswith("v_"):
            self.kind = "valu"
            nd = 1
            if op.startswith(("v_add_co", "v_sub_co", "v_addc_co", "v_subb_co", "v_mad_u64", "v_div_scale")): nd = 2
            self.defs = sum(R[:nd], []); self.uses = sum(R[nd:], [])
            if op.startswith(("v_fmac", "v_dot2c", "v_pk_fmac")) or "UNUSED_PRESERVE" in self.mods or "row_" in self.mods or "quad_perm" in self.mods: self.uses += R[0]
            if op.startswith("v_cndmask") and len(ops) == 3: self.uses += parse_reg("vcc")
        elif op.startswith("ds_"):
            self.kind = "ds"
            if op.startswith(("ds_read", "ds_bpermute", "ds_swizzle")) :
                self.defs = R[0]; self.uses = sum(R[1:], [])
            else:
                self.uses = sum(R, [])
        elif op.startswith("buffer_") or op.startswith("global_"):
            self.kind = "vmem"
            isl = " lds" in (" " + self.mods) or "_lds_" in op
            if "load" in op and not isl:
                self.defs = R[0]; self.uses = sum(R[1:], [])
            else:
                self.uses = sum(R, [])
                if "store" in op and ("x4" in op or "x3" in op):
                    self.storedata = R[0] if op.startswith("buffer_") else R[1]
            if isl: self.uses += parse_reg("m0"); self.lds = True
        elif op.startswith("s_"):
            self.kind = "salu"
            if op in ("s_nop", "s_waitcnt", "s_barrier", "s_endpgm", "s_setprio", "s_branch", "s_sleep") or op.startswith(("s_cbranch", "s_cmp")):
                self.uses = sum(R, [])
            else:
                self.defs = R[0] if R else []
                self.uses = sum(R[1:], [])
                if "saveexec" in op: self.defs = self.defs + parse_reg("exec")
        self.lds = getattr(self, "lds", False)
        self.dpp = self.kind == "valu" and ("row_" in self.mods or "quad_perm" in self.mods or "wave_" in self.mods)
        self.ws = 1
        if op == "s_nop": self.ws = int(ops[0], 0) + 1

def need(p, c):
    n = 0
    pd = set(p.defs)
    cu = set(c.uses); cd = set(c.defs)
    if p.kind == "valu":
        vd = {r for r in pd if r[0] in "va"}
        sd = {r for r in pd if r[0] == "s"}
        if c.kind == "mfma" and vd & cu: n = max(n, 2)
        if p.op in TRANS and c.kind in ("valu",) and c.op not in TRANS and vd & cu: n = max(n, 1)
        if p.op in TRANS and c.kind == "valu" and vd & cu: n = max(n, 1)
        if c.op in ("v_readfirstlane_b32", "v_readlane_b32") and vd & cu: n = max(n, 1)
        if c.op.startswith("v_permlane") and vd & cu: n = max(n, 2)
        if c.dpp and vd & cu: n = max(n, 2)
        if sd:
            if c.kind == "vmem" and sd & cu: n = max(n, 5)
            if c.kind == "valu" and sd & cu: n = max(n, 2)
            if c.op in ("v_readlane_b32", "v_writelane_b32") and sd & cu: n = max(n, 4)
            if c.kind == "salu" and sd & cu: n = max(n, 1)
        if ("sdwa" in p.op or "op_sel" in p.mods) and not p.op.startswith("v_pk_") and c.kind == "valu" and vd & (cu | cd): n = max(n, 1)
    if p.op.startswith("v_dot") and c.op != p.op and pd & (cu | cd): n = max(n, 3)
    if p.kind == "mfma":
        big = {4: 8, 8: 12}[p.passes]
        if c.kind == "mfma":
            if pd & set(c.srcAB): n = max(n, big)
            if pd & set(c.srcC):
                if set(c.srcC) == pd and c.passes == p.passes: pass
                else: n = max(n, {4: 6, 8: 10}[p.passes])
            if pd & cd and not (set(c.srcC) == pd):
                n = max(n, 0)
        elif c.kind in ("valu", "vmem", "ds"):
            if pd & (cu | cd): n = max(n, big)
        if c.kind == "valu" and set(p.srcC) & cd: n = max(n, {4: 3, 8: 7}[p.passes])
    if p.storedata and c.kind in ("valu", "mfma", "ds", "vmem") and set(p.storedata) & cd: n = max(n, 2)
    if p.kind == "salu" and ("s", 124) in pd and c.lds: n = max(n, 1)
    return n

class Asm:
    def __init__(self):
        self.lines = []
        self.win = []
        self.nops = 0
        self.instr = False
        self.kidx = 0
        self.sizes = {}
        self.hop = None; self.hopn = {}; self.hoppos = 0; self.hops_enabled = True
    def size(self, i):
        if i.op.startswith(("s_cbranch", "s_branch", "s_nop", "s_waitcnt", "s_barrier")): return 4
        return self.sizes.get(i.text, 8)
    def _emit_hop(self):
        n = self.hopn.get(self.hop, 0)
        self.lines.append(("label", f"HOP_{self.hop}_{n}"))
        h = Ins(f"s_cbranch_execz HOP_{self.hop}_{n+1}")
        self.lines.append(("ins", h)); self.win.append(h)
        self.hopn[self.hop] = n + 1
        self.hoppos = 4
    def hop_on(self, chain):
        if not self.hops_enabled: return
        self.hop = chain; self._emit_hop()
    def hop_off(self):
        self.hop = None
    def hop_end(self, chain, target, parts):
        self.hop = None
        n = self.hopn.get(chain, 0)
        self.raw(f".set HOP_{chain}_{n}, {target}")
        for p in range(parts):
            self.raw(f".set HOPE_{chain}_{p}, " + (f"HOP_{chain}_{p*n//parts}" if n else target))
    def code_touch(self, start, end, sp, vo, vd):
        lab = f"CT_{len(self.lines)}"
        self(f"s_getpc_b64 s[{sp}:{sp+1}]")
        self.label(lab)
        self(f"s_sub_u32 s{sp}, s{sp}, {lab}-{start}")
        self(f"s_subb_u32 s{sp+1}, s{sp+1}, 0")
        self(f"v_lshlrev_b32 v{vo}, 7, v0")
        for n in range(self.touch_n):
            self(f"v_min_u32 v{vd+n}, {end}-{start}-4, v{vo}")
            self(f"global_load_dword v{vd+n}, v{vd+n}, s[{sp}:{sp+1}]")
            if n + 1 < self.touch_n: self(f"v_add_u32 v{vo}, 0x2000, v{vo}")
    def raw(self, text):
        self.lines.append(("raw", text))
    def label(self, name):
        self.lines.append(("label", name))
    def c(self, text):
        self.lines.append(("raw", "    ; " + text))
    def __call__(self, text):
        for ln in text.strip().split("\n"):
            ln = ln.strip()
            if not ln or ln.startswith(";"): continue
            if ln.endswith(":"):
                self.label(ln[:-1]); continue
            self.ins(ln)
    def tstart(self):
        if not self.instr: return
        self("s_load_dwordx2 s[84:85], s[0:1], 120")
        self("s_memrealtime s[88:89]")
        self("s_memtime s[90:91]")
        for k in range(8): self(f"s_mov_b32 s{64+2*k}, 0")
    def stamp(self, k):
        if self.instr: self(f"s_memtime s[{64+2*k}:{65+2*k}]")
    def dump(self):
        self("s_memrealtime s[92:93]")
        self("s_memtime s[94:95]")
        self("s_mov_b64 exec, 1")
        self("s_waitcnt lgkmcnt(0)")
        self("s_and_b32 s85, s85, 0xffff")
        self("s_mov_b32 s86, 0x1800000")
        self("s_mov_b32 s87, 0x20000")
        self("s_lshl_b32 s96, s2, 4")
        self("s_add_u32 s96, s96, s3")
        self("s_lshl_b32 s96, s96, 6")
        self(f"s_add_u32 s96, s96, {0x1500000 + self.kidx*0x90000}")
        self("v_mov_b32 v3, 0")
        regs = [88, 92, 90, 94] + [64+2*k for k in range(8)]
        for n in range(3):
            for i in range(4): self(f"v_mov_b32 v{4+i}, s{regs[4*n+i]}")
            self(f"buffer_store_dwordx4 v[4:7], v3, s[84:87], s96 offen offset:{16*n}")
            self("s_nop 1")
        self("s_mov_b64 exec, -1")
        self("s_mov_b64 s[88:89], s[92:93]")
        self("s_mov_b64 s[90:91], s[94:95]")
        for k in range(8): self(f"s_mov_b32 s{64+2*k}, 0")
    def end(self):
        if self.instr:
            self("s_waitcnt vmcnt(0)")
            self.dump()
        self("s_endpgm")
    def ins(self, text):
        i = Ins(text)
        dist = 0; req = 0
        for p in reversed(self.win):
            nd = need(p, i)
            if nd - dist > req: req = nd - dist
            dist += p.ws
            if dist >= 20: break
        if self.hop is not None:
            z = self.size(i) + (4 if req > 0 else 0)
            if self.hoppos + z > 64:
                self._emit_hop(); req -= 1
            self.hoppos += z
        if req > 0:
            nop = Ins(f"s_nop {req-1}")
            self.lines.append(("ins", nop)); self.win.append(nop); self.nops += 1
        self.lines.append(("ins", i)); self.win.append(i)
        if len(self.win) > 40: self.win = self.win[-40:]
        if i.op in ("s_endpgm", "s_branch"): self.win = []
    def check_branches(self):
        idx = {}
        for n, (t, p) in enumerate(self.lines):
            if t == "label": idx[p] = n
        errs = []
        for n, (t, p) in enumerate(self.lines):
            if t == "ins" and (p.op.startswith("s_cbranch") or p.op == "s_branch"):
                tgt = p.ops[0]
                if tgt.startswith("HOP"): continue
                pre = [q for (tt, q) in self.lines[max(0, n - 30):n + 1] if tt == "ins"]
                post = []
                for (tt, q) in self.lines[idx[tgt]:idx[tgt] + 40]:
                    if tt == "ins":
                        post.append(q)
                        if q.op in ("s_branch", "s_endpgm"): break
                for ci, cns in enumerate(post):
                    d0 = sum(q.ws for q in post[:ci])
                    if d0 >= 20: break
                    dist = d0
                    for pr in reversed(pre):
                        nd = need(pr, cns)
                        if nd > dist: errs.append((p.text, pr.text, cns.text, nd, dist))
                        dist += pr.ws
                        if dist >= 20: break
        return errs
    def text(self):
        out = []
        for t, p in self.lines:
            if t == "raw": out.append(p)
            elif t == "label": out.append(p + ":")
            else: out.append("    " + p.text)
        return "\n".join(out) + "\n"

def kernel_header(a, name):
    a.raw(".text"); a.raw(f".globl {name}"); a.raw(".p2align 8"); a.raw(f".type {name},@function")
    a.label(name); a.win = []

def kernel_desc(a, name, vgpr, sgpr=102):
    acc = (vgpr + 3) // 4 * 4
    a.raw(f""".section .rodata,"a"
.p2align 6
.amdhsa_kernel {name}
  .amdhsa_next_free_vgpr {vgpr}
  .amdhsa_next_free_sgpr {sgpr}
  .amdhsa_accum_offset {acc}
  .amdhsa_group_segment_fixed_size 0
  .amdhsa_kernarg_size 128
  .amdhsa_user_sgpr_count 2
  .amdhsa_user_sgpr_kernarg_segment_ptr 1
  .amdhsa_system_sgpr_workgroup_id_x 1
.end_amdhsa_kernel""")
```

```python
from asmlib import *
from layout import *
import struct, math

def f2u(x): return struct.unpack("<I", struct.pack("<f", x))[0]

def srd(a, d, ptr, size):
    a(f"s_mov_b32 s{d}, s{ptr}")
    a(f"s_and_b32 s{d+1}, s{ptr+1}, 0xffff")
    a(f"s_mov_b32 s{d+2}, {size}")
    a(f"s_mov_b32 s{d+3}, 0x20000")

def common_prologue(a):
    a("s_load_dwordx16 s[16:31], s[0:1], 0")
    a("s_load_dwordx16 s[32:47], s[0:1], 64")
    a("v_lshrrev_b32 v1, 6, v0")
    a("v_and_b32 v0, 63, v0")
    a("v_readfirstlane_b32 s3, v1")

def aux_prologue(a):
    a("s_waitcnt lgkmcnt(0)")
    a.stamp(7)
    srd(a, 48, 46, WS_SIZE)

SWS = "s[48:51]"
FUSED = 0
HSK = 163776
def fin(a):
    if FUSED:
        a("s_mov_b64 exec, -1")
        a("s_branch P2")
    else: a.end()

def gemm_role(a):
    a("s_and_b32 s4, s2, 7")
    a("s_lshr_b32 s5, s2, 3")
    a("s_and_b32 s6, s4, 1")
    a("s_mul_i32 s6, s6, 30")
    a("s_add_u32 s6, s6, s5")
    a("s_lshr_b32 s7, s6, 2")
    a("s_and_b32 s6, s6, 3")
    a("s_lshr_b32 s63, s4, 1")
    a("s_lshl_b32 s63, s63, 2")
    a("s_add_u32 s8, s63, s6")
    T = 32
    a("s_cmp_lt_u32 s3, 4")
    a("s_cbranch_scc1 K1_CONS")
    LO = 4
    a(f"v_lshrrev_b32 v{T+1}, 4, v0")
    a("s_and_b32 s11, s3, 1")
    a("s_lshl_b32 s12, s11, 12")
    a("s_cmp_ge_u32 s3, 6")
    a("s_cbranch_scc1 K1_LDW")
    a(f"v_lshrrev_b32 v{T}, 3, v0")
    a(f"v_mul_u32_u24 v{T}, 1280, v{T}")
    a(f"v_and_b32 v{T+2}, 7, v0")
    a(f"v_xor_b32 v{T+2}, v{T+2}, v{T+1}")
    a(f"v_lshl_add_u32 v{LO}, v{T+2}, 4, v{T}")
    a(f"v_xor_b32 v{T+2}, 4, v{T+2}")
    a(f"v_lshl_add_u32 v{LO+1}, v{T+2}, 4, v{T}")
    a(f"v_add_u32 v{LO+1}, {10240-1024}, v{LO+1}")
    a(f"v_add_u32 v{LO+2}, {2*(10240-1024)}, v{LO}")
    a(f"v_add_u32 v{LO+3}, {2*(10240-1024)}, v{LO+1}")
    a(f"s_mul_i32 s9, s8, {128*1280}")
    a(f"s_mul_i32 s11, s11, {32*1280}")
    a("s_add_u32 s9, s9, s11")
    a(f"s_mov_b32 s10, {64*1280}")
    a(f"s_mov_b32 s11, {(128 - 64*1280) & 0xffffffff}")
    a("s_mov_b32 s60, 49152")
    a("s_mov_b32 s61, 49152")
    a("s_mov_b32 s15, 4")
    a("s_mov_b32 s62, 16")
    a("s_mov_b32 s56, -2"); a("s_mov_b32 s57, 4")
    a("s_waitcnt lgkmcnt(0)")
    srd(a, 52, 16, 2048 * 1280)
    a("s_branch K1_LD0")
    a.label("K1_LDW")
    a(f"v_mul_u32_u24 v{T}, 3840, v{T+1}")
    a(f"v_and_b32 v{T+2}, 15, v0")
    a(f"v_lshlrev_b32 v{T+3}, 2, v{T+1}")
    a(f"v_xor_b32 v{T+2}, v{T+2}, v{T+3}")
    a(f"v_lshl_add_u32 v{LO}, v{T+2}, 4, v{T}")
    for e in range(1, 4): a(f"v_add_u32 v{LO+e}, {e*(15360-1024)}, v{LO}")
    a("s_lshl_b32 s9, s7, 8")
    a(f"s_mul_i32 s11, s11, {4*15360}")
    a("s_add_u32 s9, s9, s11")
    a(f"s_mov_b32 s10, {32*3840}")
    a(f"s_mov_b32 s11, {32*3840}")
    a("s_add_u32 s12, s12, 49152")
    a("s_mov_b32 s60, 81920")
    a("s_mov_b32 s61, 32768")
    a("s_mov_b32 s15, 3")
    a("s_mov_b32 s62, 17")
    a("s_mov_b32 s56, -1"); a("s_mov_b32 s57, 3")
    a("s_waitcnt lgkmcnt(0)")
    srd(a, 52, 18, 640 * 3840)
    def issue():
        a("s_mov_b32 m0, s12")
        a("s_add_u32 s12, s12, 8192")
        for e in range(4): a(f"buffer_load_dwordx4 v{LO+e}, s[52:55], s9 offen offset:{e*1024}{LDM} lds")
        a("s_add_u32 s9, s9, s10")
        a("s_mov_b32 s14, s10")
        a("s_mov_b32 s10, s11")
        a("s_mov_b32 s11, s14")
        a("s_sub_u32 s14, s12, s61")
        a("s_cmp_ge_u32 s12, s60")
        a("s_cselect_b32 s12, s14, s12")
    a.label("K1_LD0")
    if FUSED:
        a("s_mov_b32 s13, s15")
        a(f"v_mov_b32 v{T}, {HSK}")
        a("s_sub_u32 s14, s3, 4")
        a("s_lshl_b32 s14, s14, 2")
        a(f"v_add_u32 v{T+1}, s14, v{T}")
        a.label("K1_LD0F")
    issue()
    a("s_sub_u32 s15, s15, 1")
    a("s_cmp_lg_u32 s15, 0")
    a(f"s_cbranch_scc1 K1_LD0{'F' if FUSED else ''}")
    a.stamp(0)
    if FUSED:
        a("s_barrier")
        def freemin():
            a(f"v_min3_u32 v{T+4}, v{T+4}, v{T+5}, v{T+6}")
            a(f"v_min_u32 v{T+4}, v{T+4}, v{T+7}")
            a(f"v_readfirstlane_b32 s16, v{T+4}")
        a.label("K1_LD1")
        a(f"ds_read_b128 {v(T+4,4)}, v{T} offset:16")
        a("s_sub_u32 s14, s13, 2")
        a("s_and_b32 s14, s14, s56")
        a(f"v_mov_b32 v{T+2}, s14")
        a("s_and_b32 s17, s13, s56")
        a("s_sub_u32 s17, s17, s57")
        a("s_waitcnt vmcnt(8) lgkmcnt(0)")
        a(f"ds_write_b32 v{T+1}, v{T+2}")
        freemin()
        a("s_cmp_ge_u32 s16, s17")
        a("s_cbranch_scc1 K1_LDGO")
        a.label("K1_LDP")
        a(f"ds_read_b128 {v(T+4,4)}, v{T} offset:16")
        a("s_waitcnt lgkmcnt(0)")
        freemin()
        a("s_cmp_lt_u32 s16, s17")
        a("s_cbranch_scc1 K1_LDP")
        a.label("K1_LDGO")
        issue()
        a("s_add_u32 s13, s13, 1")
        a("s_cmp_lg_u32 s13, 20")
        a("s_cbranch_scc1 K1_LD1")
        for n, val in ((8, 18), (4, 19), (0, 20)):
            a(f"s_and_b32 s14, {val}, s56")
            a(f"v_mov_b32 v{T+2}, s14")
            a(f"s_waitcnt vmcnt({n})")
            a(f"ds_write_b32 v{T+1}, v{T+2}")
        a.stamp(1)
        fin(a)
    else:
        a("s_waitcnt vmcnt(8)")
        a("s_barrier")
        a.stamp(1)
        a.label("K1_LD1")
        issue()
        a("s_sub_u32 s62, s62, 1")
        a("s_cmp_lg_u32 s62, 0")
        a("s_waitcnt vmcnt(8)")
        a("s_barrier")
        a("s_cbranch_scc1 K1_LD1")
        for n in (4, 0):
            a(f"s_waitcnt vmcnt({n})")
            a("s_barrier")
        a.end()
    a.label("K1_CONS")
    XA = 12; XC = 16; WA = 20; EA = 24
    XF = 32; WF = 48; ACC = 64; PFO = 5
    def pf():
        if not PF: return
        a(f"buffer_load_dword v4, v{PFO}, s[52:55], s58 offen")
        a("s_add_u32 s58, s58, s57")
    if PF:
        a("s_lshr_b32 s59, s3, 1")
        a("s_add_u32 s59, s59, 1")
        a(f"v_lshrrev_b32 v{T}, 1, v0")
        a(f"v_and_b32 v{T+1}, 1, v0")
        a("s_bitcmp1_b32 s3, 0")
        a("s_cbranch_scc1 K1_PFX")
        a(f"v_mul_u32_u24 v{T}, 3840, v{T}")
        a(f"v_lshl_add_u32 v{PFO}, v{T+1}, 7, v{T}")
        a("s_lshl_b32 s58, s59, 2")
        a("s_add_u32 s58, s58, s6")
        a(f"s_mul_i32 s58, s58, {32*3840}")
        a("s_lshl_b32 s57, s7, 8")
        a("s_add_u32 s58, s58, s57")
        a(f"s_mov_b32 s57, {256*3840}")
        a("s_waitcnt lgkmcnt(0)")
        srd(a, 52, 18, 640 * 3840)
        a("s_branch K1_PFGO")
        a.label("K1_PFX")
        a(f"v_and_b32 v{T}, 15, v{T}")
        a(f"v_mul_u32_u24 v{T}, 1280, v{T}")
        a(f"v_lshl_add_u32 v{PFO}, v{T+1}, 7, v{T}")
        a("s_and_b32 s57, s4, 1")
        a("s_mul_i32 s57, s57, 7")
        a("s_sub_u32 s57, s7, s57")
        a("s_lshl_b32 s58, s8, 3")
        a("s_add_u32 s58, s58, s57")
        a(f"s_mul_i32 s58, s58, {16*1280}")
        a("s_lshl_b32 s57, s59, 8")
        a("s_add_u32 s58, s58, s57")
        a("s_mov_b32 s57, 512")
        a("s_waitcnt lgkmcnt(0)")
        srd(a, 52, 16, 2048 * 1280)
        a.label("K1_PFGO")
        pf()
        if PF == 3: pf()
    a("s_lshr_b32 s13, s3, 1")
    a("s_and_b32 s14, s3, 1")
    a(f"v_and_b32 v{T}, 31, v0")
    a(f"v_lshrrev_b32 v{T+1}, 5, v0")
    a(f"v_bfe_u32 v{T+2}, v0, 1, 3")
    a(f"v_xor_b32 v{T+2}, v{T+2}, v{T+1}")
    a(f"v_lshlrev_b32 v{T+2}, 4, v{T+2}")
    a(f"v_lshl_add_u32 v{T+2}, v{T}, 7, v{T+2}")
    a("s_lshl_b32 s12, s13, 13")
    a(f"v_add_u32 v{XA}, s12, v{T+2}")
    for ks in range(1, 4):
        a(f"v_xor_b32 v{XA+ks}, {ks*32}, v{XA}")
    for ks in range(4): a(f"v_mov_b32 v{XC+ks}, v{XA+ks}")
    a(f"v_bfe_u32 v{T+2}, v0, 2, 2")
    a(f"v_lshl_add_u32 v{T+3}, v{T+1}, 3, v{T+2}")
    a(f"v_lshlrev_b32 v{T+3}, 8, v{T+3}")
    a(f"v_and_b32 v{T+4}, 3, v0")
    a(f"v_lshl_add_u32 v{T+3}, v{T+4}, 3, v{T+3}")
    a(f"v_bfe_u32 v{T+4}, v0, 4, 1")
    a(f"v_lshl_add_u32 v{T+3}, v{T+4}, 5, v{T+3}")
    a(f"v_add_u32 v{T+3}, 49152, v{T+3}")
    a("s_lshl_b32 s12, s14, 1")
    a(f"v_xor_b32 v{T+4}, s12, v{T+2}")
    a(f"v_lshl_add_u32 v{WA}, v{T+4}, 6, v{T+3}")
    a(f"v_xor_b32 v{WA+1}, 64, v{WA}")
    for i in range(64): a(f"v_mov_b32 v{ACC+i}, 0")
    a("s_lshl_b32 s15, s8, 2")
    a("s_lshl_b32 s12, s13, 1")
    a("s_add_u32 s15, s15, s12")
    a("s_mul_i32 s15, s15, 1280")
    a("s_waitcnt lgkmcnt(0)")
    srd(a, 48, 46, WS_SIZE)
    a("s_mov_b32 s17, 0")
    a("s_cmp_ge_u32 s7, 10")
    a("s_cbranch_scc1 K1_GEMM_V")

    def reads(c, ks):
        buf = ks
        for rb in range(2):
            a(f"ds_read_b128 {v(XF+buf*8+rb*4,4)}, v{XC + 2*(c&1) + ks} offset:{rb*4096}")
        for cb in range(2):
            for s_ in range(2):
                a(f"ds_read_b64_tr_b16 {v(WF+buf*8+cb*4+s_*2,2)}, v{WA+cb} offset:{(c&3)*8192 + ks*4096 + s_*1024}")
    def mfmas(orient, buf):
        for rb in range(2):
            for cb in range(2):
                acc = v(ACC + (rb * 2 + cb) * 16, 16)
                x = v(XF + buf * 8 + rb * 4, 4); w = v(WF + buf * 8 + cb * 4, 4)
                A, B = (w, x) if orient == "qk" else (x, w)
                a(f"v_mfma_f32_32x32x16_bf16 {acc}, {A}, {B}, {acc}")
    HW = 8; HA = 6; HF = 7
    def fullchk():
        a(f"v_min3_u32 v{HW}, v{HW}, v{HW+1}, v{HW+2}")
        a(f"v_min_u32 v{HW}, v{HW}, v{HW+3}")
        a(f"v_cmp_gt_u32 vcc, s18, v{HW}")
    def poll(lab):
        a.label(lab)
        a(f"ds_read_b128 {v(HW,4)}, v{HA}")
        a("s_waitcnt lgkmcnt(0)")
        fullchk()
        a(f"s_cbranch_vccnz {lab}")
    def body(orient):
        a.stamp(0)
        if FUSED:
            a(f"v_mov_b32 v{HA}, {HSK}")
            a("s_lshl_b32 s18, s3, 2")
            a(f"v_add_u32 v{HF}, s18, v{HA}")
            a("v_mov_b32 v5, 0")
            a("s_mov_b32 s18, 1")
        a("s_barrier")
        if FUSED: poll(f"K1_P0_{orient}")
        a.stamp(1)
        reads(0, 0)
        a("s_mov_b32 s16, 5")
        a.label(f"K1_GL_{orient}")
        if PF in (1, 2):
            a(f"s_cmp_lg_u32 s16, {6 - PF}")
            a(f"s_cbranch_scc1 K1_NPF_{orient}")
            pf()
            a.label(f"K1_NPF_{orient}")
        for c in range(4):
            if FUSED:
                a(f"ds_read_b128 {v(HW,4)}, v{HA}")
                a("s_add_u32 s18, s18, 1")
                a("s_min_u32 s18, s18, 20")
                a("v_add_u32 v5, 1, v5")
            reads(c, 1)
            if c & 1:
                a("s_add_u32 s17, s17, 16384")
                a("s_cmp_eq_u32 s17, 49152")
                a("s_cselect_b32 s17, 0, s17")
                for ks in range(4): a(f"v_add_u32 v{XC+ks}, s17, v{XA+ks}")
            a("s_waitcnt lgkmcnt(6)")
            mfmas(orient, 0)
            if FUSED:
                fullchk()
                a("s_waitcnt lgkmcnt(0)")
                a(f"ds_write_b32 v{HF}, v5 offset:16")
                a(f"s_cbranch_vccnz K1_SL_{orient}{c}")
            else:
                a("s_waitcnt lgkmcnt(0)")
                a("s_barrier")
            reads(c + 1, 0)
            mfmas(orient, 1)
            if FUSED: a.label(f"K1_SD_{orient}{c}")
        a("s_sub_u32 s16, s16, 1")
        a("s_cmp_lg_u32 s16, 0")
        a(f"s_cbranch_scc1 K1_GL_{orient}")
        a.stamp(2)
    def slow(orient):
        if not FUSED: return
        for c in range(4):
            a.label(f"K1_SL_{orient}{c}")
            mfmas(orient, 1)
            poll(f"K1_PP_{orient}{c}")
            reads(c + 1, 0)
            a(f"s_branch K1_SD_{orient}{c}")

    a("s_lshl_b32 s12, s7, 4")
    a("s_lshl_b32 s60, s14, 3")
    a("s_add_u32 s12, s12, s60")
    a(f"v_add_u32 v{T+2}, s12, v{T+1}")
    a(f"v_lshlrev_b32 v{T+6}, 4, v{T}")
    a(f"v_lshl_add_u32 v{T+7}, v{T}, 3, 0")
    a(f"v_add_u32 v{T+7}, 1024, v{T+7}")
    a(f"s_mov_b32 s61, {HS}")
    a(f"s_add_u32 s63, s15, {HS}")
    for cb in range(2):
        for p in range(2):
            e = EA + cb * 2 + p
            mk = 36 + 2 * (cb * 2 + p)
            a(f"v_add_u32 v{T+3}, {4*cb+2*p}, v{T+2}")
            a(f"v_mul_u32_u24 v{T+4}, 205, v{T+3}")
            a(f"v_lshrrev_b32 v{T+4}, 10, v{T+4}")
            a(f"v_mul_u32_u24 v{T+5}, 5, v{T+4}")
            a(f"v_sub_u32 v{T+3}, v{T+3}, v{T+5}")
            a(f"v_lshlrev_b32 v{T+4}, 1, v{T+4}")
            a(f"v_cmp_lt_u32 vcc, 2, v{T+3}")
            a(f"v_subrev_u32 v{T+5}, 3, v{T+3}")
            a(f"v_cndmask_b32 v{T+5}, v{T+3}, v{T+5}, vcc")
            a(f"v_addc_co_u32 v{T+4}, vcc, 0, v{T+4}, vcc")
            a(f"v_cmp_eq_u32 s[{mk}:{mk+1}], 2, v{T+3}")
            a(f"v_lshl_add_u32 v{T+5}, v{T+5}, 9, v{T+6}")
            a(f"v_cndmask_b32 v{T+5}, v{T+5}, v{T+7}, s[{mk}:{mk+1}]")
            a(f"v_mad_u32_u24 v{e}, v{T+4}, s61, v{T+5}")
    qs = (20 ** -0.5) * math.log2(math.e)
    a(f"s_mov_b32 s62, {f2u(qs)}")
    a("s_cmp_ge_u32 s7, 5")
    a("s_cselect_b32 s62, 1.0, s62")
    body("qk")
    for rb in range(2):
        for cb in range(2):
            ac = ACC + (rb * 2 + cb) * 16
            for p in range(2):
                r = ac + p * 8
                mk = 36 + 2 * (cb * 2 + p)
                for i in range(0, 8, 2): a(f"v_pk_mul_f32 {v(r+i,2)}, {v(r+i,2)}, s[62:63] op_sel_hi:[1,0]")
                for i in range(4): a(f"v_cvt_pk_bf16_f32 v{r+i}, v{r+2*i}, v{r+2*i+1}")
                a(f"v_permlane32_swap_b32 v{r}, v{r+2}")
                a(f"v_permlane32_swap_b32 v{r+1}, v{r+3}")
                a(f"s_andn2_b64 exec, -1, s[{mk}:{mk+1}]")
                a(f"buffer_store_dwordx4 {v(r,4)}, v{EA+cb*2+p}, {SWS}, s15 offen offset:{rb*1280}{SC}")
                a(f"s_cmp_eq_u64 s[{mk}:{mk+1}], 0")
                a(f"s_cbranch_scc1 K1_NM{rb}{cb}{p}")
                a(f"s_mov_b64 exec, s[{mk}:{mk+1}]")
                a(f"buffer_store_dwordx2 {v(r,2)}, v{EA+cb*2+p}, {SWS}, s15 offen offset:{rb*1280}{SC}")
                a(f"buffer_store_dwordx2 {v(r+2,2)}, v{EA+cb*2+p}, {SWS}, s63 offen offset:{rb*1280}{SC}")
                a.label(f"K1_NM{rb}{cb}{p}")
                a("s_mov_b64 exec, -1")
    fin(a)
    slow("qk")
    a.label("K1_GEMM_V")
    a("s_sub_u32 s12, s7, 10")
    a("s_lshl_b32 s12, s12, 7")
    a("s_lshl_b32 s60, s14, 6")
    a("s_add_u32 s12, s12, s60")
    a(f"s_mov_b32 s61, {HS}")
    a(f"v_lshlrev_b32 v{T+6}, 4, v{T+1}")
    for cb in range(2):
        a(f"v_add_u32 v{T+3}, s12, v{T}")
        if cb: a(f"v_add_u32 v{T+3}, 32, v{T+3}")
        a(f"v_mul_u32_u24 v{T+4}, 3277, v{T+3}")
        a(f"v_lshrrev_b32 v{T+4}, 16, v{T+4}")
        a(f"v_mul_u32_u24 v{T+5}, 20, v{T+4}")
        a(f"v_sub_u32 v{T+3}, v{T+3}, v{T+5}")
        a(f"v_lshl_add_u32 v{T+5}, v{T+3}, 5, v{T+6}")
        a(f"v_mad_u32_u24 v{EA+cb}, v{T+4}, s61, v{T+5}")
    a(f"s_add_u32 s15, s15, {VF}")
    body("v")
    for rb in range(2):
        for cb in range(2):
            ac = ACC + (rb * 2 + cb) * 16
            for g in range(2):
                r = ac + g * 8
                for i in range(4): a(f"v_cvt_pk_bf16_f32 v{r+i}, v{r+2*i}, v{r+2*i+1}")
                a(f"buffer_store_dwordx4 {v(r,4)}, v{EA+cb}, {SWS}, s15 offen offset:{rb*1280+g*640}{SC}")
    fin(a)
    slow("v")

def gate_role(a):
    srd(a, 52, 16, 2048 * 1280)
    SX = "s[52:55]"
    G = 8; X = 32; ACC = 112; T = 2
    if FUSED: a.label("K1_GATE2")
    a(f"s_mul_i32 s5, s4, {32*1280}")
    a(f"v_and_b32 v{T}, 15, v0")
    a(f"v_lshlrev_b32 v{T+1}, 4, v{T}")
    for e in range(5):
        a(f"global_load_dwordx4 {v(G+4*e,4)}, v{T+1}, s[40:41] offset:{e*256}")
    a(f"v_lshrrev_b32 v{T+2}, 4, v0")
    a(f"v_mul_u32_u24 v{T+3}, 1280, v{T+2}")
    a(f"v_add_u32 v{T+3}, v{T+3}, v{T+1}")
    for grp in range(8):
        a(f"v_mov_b32 v{ACC+grp}, 0")
    def gl(grp):
        for e in range(5):
            a(f"buffer_load_dwordx4 {v(X+(grp&3)*20+e*4,4)}, v{T+3}, {SX}, s5 offen offset:{e*256}")
        if grp < 7: a(f"s_add_u32 s5, s5, {4*1280}")
    for grp in range(4): gl(grp)
    for grp in range(8):
        a(f"s_waitcnt vmcnt({min(3, 7-grp)*5})")
        for i in range(20):
            a(f"v_dot2c_f32_bf16 v{ACC+grp}, v{X+(grp&3)*20+i}, v{G+i}")
        if grp < 4: gl(grp + 4)
    for sh in (8, 4, 2, 1):
        for grp in range(8):
            a(f"v_add_f32_dpp v{ACC+grp}, v{ACC+grp}, v{ACC+grp} row_ror:{sh} row_mask:0xf bank_mask:0xf")
    for k in range(1, 8):
        a(f"v_cmp_eq_u32 vcc, {k}, v{T}")
        a(f"v_cndmask_b32 v{ACC}, v{ACC}, v{ACC+k}, vcc")
    R = ACC
    a(f"v_cvt_pk_bf16_f32 v{R}, v{R}, v{R}")
    a(f"v_lshlrev_b32 v{R}, 16, v{R}")
    a(f"v_mul_f32 v{R}, {f2u(-math.log2(math.e))}, v{R}")
    a(f"v_exp_f32 v{R}, v{R}")
    a(f"v_add_f32 v{R}, 1.0, v{R}")
    a(f"v_rcp_f32 v{R}, v{R}")
    a(f"v_cvt_pk_bf16_f32 v{R}, v{R}, v{R}")
    a(f"v_lshlrev_b32 v{R}, 16, v{R}")
    a(f"v_lshl_add_u32 v{T+3}, v{T}, 2, v{T+2}")
    a(f"v_lshlrev_b32 v{T+3}, 2, v{T+3}")
    a("s_lshl_b32 s5, s4, 7")
    a(f"s_add_u32 s5, s5, {GT}")
    a(f"v_cmp_gt_u32 vcc, 8, v{T}")
    a("s_and_saveexec_b64 s[6:7], vcc")
    a(f"buffer_store_dword v{R}, v{T+3}, {SWS}, s5 offen{SC}")
    if FUSED:
        a("s_mov_b64 exec, -1")
        a("s_add_u32 s4, s4, 3")
        a("s_cmp_lt_u32 s4, s60")
        a("s_cbranch_scc1 K1_GATE2")
    fin(a)

def cmul(a, d, x, y):
    a(f"v_pk_mul_f32 {v(d,2)}, {v(x,2)}, {v(y,2)} op_sel:[0,0] op_sel_hi:[0,1]")
    a(f"v_pk_fma_f32 {v(d,2)}, {v(x,2)}, {v(y,2)}, {v(d,2)} op_sel:[1,1,0] op_sel_hi:[1,0,1] neg_lo:[0,1,0]")

def cmul2(a, d, x, y):
    for o in (0, 2):
        a(f"v_pk_mul_f32 {v(d+o,2)}, {v(x+o,2)}, {v(y+o,2)} op_sel:[0,0] op_sel_hi:[0,1]")
    for o in (0, 2):
        a(f"v_pk_fma_f32 {v(d+o,2)}, {v(x+o,2)}, {v(y+o,2)}, {v(d+o,2)} op_sel:[1,1,0] op_sel_hi:[1,0,1] neg_lo:[0,1,0]")

def kgen_role(a):
    log2e = math.log2(math.e)
    a("s_lshl_b32 s5, s4, 8")
    T = 2
    P = 52
    DSK = 8
    a(f"v_lshl_add_u32 v{T}, v0, 2, s5")
    for i, pr in enumerate((24, 26, 28, 30, 32, 34)):
        a(f"global_load_dword v{P+i}, v{T}, s[{pr}:{pr+1}]")
    a("s_lshl_b32 s6, s4, 1")
    a(f"v_mov_b32 v{T+1}, s6")
    a(f"global_load_ushort v{P+6}, v{T+1}, s[36:37]")
    a(f"global_load_ushort v{DSK}, v{T+1}, s[38:39]")
    SL = 528
    if not FUSED: a("s_mul_i32 s7, s3, 13312")
    WRA = 9; RDA = 10; TB0 = 11; TB1 = 12; TB2 = 13
    a(f"v_lshl_add_u32 v{WRA}, v0, 3, s7")
    a(f"v_and_b32 v{T+2}, 15, v0")
    a(f"v_lshrrev_b32 v{T+3}, 4, v0")
    a(f"v_mul_u32_u24 v{RDA}, {SL}, v{T+2}")
    a(f"v_lshl_add_u32 v{RDA}, v{T+3}, 4, v{RDA}")
    a(f"v_add_u32 v{RDA}, s7, v{RDA}")
    a("s_add_u32 s8, s7, 8448")
    a(f"v_lshlrev_b32 v{TB0}, 4, v{T+2}")
    a(f"v_lshl_add_u32 v{TB0}, v{T+3}, 2, v{TB0}")
    a(f"v_lshl_add_u32 v{TB0}, v{TB0}, 2, s8")
    a(f"v_lshlrev_b32 v{T+4}, 3, v{T+2}")
    a(f"v_lshl_add_u32 v{T+4}, v{T+3}, 2, v{T+4}")
    a(f"v_add_u32 v{T+4}, 256, v{T+4}")
    a(f"v_lshlrev_b32 v{T+5}, 2, v{T+2}")
    a(f"v_lshl_add_u32 v{T+5}, v{T+3}, 6, v{T+5}")
    a(f"v_add_u32 v{T+5}, 256, v{T+5}")
    a(f"v_cmp_gt_u32 vcc, 32, v0")
    a(f"v_cndmask_b32 v{TB1}, v{T+5}, v{T+4}, vcc")
    a(f"v_lshl_add_u32 v{TB1}, v{TB1}, 2, s8")
    a(f"v_lshlrev_b32 v{T+4}, 1, v{T+2}")
    a(f"v_lshl_add_u32 v{T+4}, v{T+3}, 6, v{T+4}")
    a(f"v_add_u32 v{T+4}, 512, v{T+4}")
    a(f"v_mov_b32 v{T+5}, 704")
    a(f"v_cmp_ge_u32 vcc, 32, v0")
    a(f"v_cndmask_b32 v{TB2}, v{T+5}, v{T+4}, vcc")
    a(f"v_lshl_add_u32 v{TB2}, v{TB2}, 2, s8")
    if FUSED: a("s_barrier")
    a("s_waitcnt vmcnt(0)")
    a.stamp(0)
    DT = 14
    hi = struct.unpack("<f", struct.pack("<f", log2e))[0]; lo = log2e - hi
    a(f"v_lshlrev_b32 v{T}, 16, v{P+6}")
    a(f"s_mov_b32 s9, {f2u(hi)}")
    a(f"v_mul_f32 v{T+1}, s9, v{T}")
    a(f"v_fma_f32 v{T+2}, v{T}, s9, -v{T+1}")
    a(f"v_mov_b32 v{T+3}, {f2u(lo)}")
    a(f"v_fmac_f32 v{T+2}, v{T}, v{T+3}")
    a(f"v_exp_f32 v{T+1}, v{T+1}")
    a(f"v_mul_f32 v{T+2}, {f2u(math.log(2.0))}, v{T+2}")
    a(f"v_fma_f32 v{T+1}, v{T+1}, v{T+2}, v{T+1}")
    a(f"v_cvt_pk_bf16_f32 v{DT}, v{T+1}, v{T+1}")
    a(f"v_lshlrev_b32 v{DT}, 16, v{DT}")
    A_ = 16; B_ = 20; C_ = 24; W_ = 28
    for grp, (re_, im_) in ((A_, (P, P + 1)), (B_, (P + 2, P + 3)), (C_, (P + 4, P + 5))):
        a(f"v_lshlrev_b32 v{grp}, 16, v{re_}")
        a(f"v_lshlrev_b32 v{grp+1}, 16, v{im_}")
        a(f"v_and_b32 v{grp+2}, 0xffff0000, v{re_}")
        a(f"v_and_b32 v{grp+3}, 0xffff0000, v{im_}")
    for i in range(4):
        a(f"v_mul_f32 v{A_+i}, v{DT}, v{A_+i}")
        a(f"v_mul_f32 v{B_+i}, v{DT}, v{B_+i}")
    cmul2(a, W_, C_, B_)
    a(f"s_mov_b32 s10, {f2u(1.0/(2*math.pi))}")
    for o in (0, 2):
        a(f"v_mul_f32 v{A_+o}, s9, v{A_+o}")
        a(f"v_mul_f32 v{A_+o+1}, s10, v{A_+o+1}")
    Z1 = 32; Z16 = 36; Z256 = 40
    def base(dst, n):
        E = 44
        a(f"s_mov_b32 s11, {f2u(float(n))}")
        for o in (0, 2):
            if n != 1:
                a(f"v_mul_f32 v{E+o}, s11, v{A_+o}")
                a(f"v_mul_f32 v{E+o+1}, s11, v{A_+o+1}")
                a(f"v_fract_f32 v{E+o+1}, v{E+o+1}")
                a(f"v_exp_f32 v{E+o}, v{E+o}")
            else:
                a(f"v_fract_f32 v{E+o+1}, v{A_+o+1}")
                a(f"v_exp_f32 v{E+o}, v{A_+o}")
        for o in (0, 2):
            a(f"v_cos_f32 v{dst+o}, v{E+o+1}")
            a(f"v_sin_f32 v{dst+o+1}, v{E+o+1}")
        for o in (0, 2):
            a(f"v_pk_mul_f32 {v(dst+o,2)}, {v(dst+o,2)}, {v(E+o,2)} op_sel:[0,0] op_sel_hi:[1,0]")
    base(Z16, 16)
    PK = 2
    cnt = [0]
    def put(src, slot, neg=False):
        p = PK + 2 * (cnt[0] & 1); cnt[0] += 1
        n = "-" if neg else ""
        a(f"v_cvt_pk_bf16_f32 v{p}, v{src}, {n}v{src+1}")
        a(f"v_cvt_pk_bf16_f32 v{p+1}, v{src+2}, {n}v{src+3}")
        a(f"ds_write_b64 v{WRA}, {v(p,2)} offset:{slot*SL}")
    CA = 44; CB = 48
    put(W_, 0, True)
    cur = W_
    for j in range(1, 16):
        nxt = CA if cur != CA else CB
        cmul2(a, nxt, cur, Z16)
        put(nxt, j, True)
        cur = nxt
    RF = 52
    for s_ in range(8):
        a(f"ds_read_b128 {v(RF+4*s_,4)}, v{RDA} offset:{64*s_}")
    base(Z1, 1)
    base(Z256, 256)
    EV = 84
    ONE = 6
    a(f"v_mov_b32 v{ONE}, 0x3f80")
    a(f"v_mov_b32 v{ONE+1}, 0x3f80")
    a(f"ds_write_b64 v{WRA}, {v(ONE,2)} offset:0")
    put(Z1, 1)
    cur = Z1
    for j in range(2, 16):
        nxt = EV + 4 * (j // 2 - 1) if j % 2 == 0 else CA
        cmul2(a, nxt, cur, Z1)
        put(nxt, j)
        cur = nxt
    LF = 112
    D = 16
    def tile(t):
        for s_ in range(4):
            a(f"ds_read_b128 {v(LF+4*s_,4)}, v{RDA} offset:{64*s_}")
    def tile_mfma(t):
        for s_ in range(4):
            a(f"s_waitcnt lgkmcnt({3-s_})")
            a(f"v_mfma_f32_16x16x32_bf16 {v(D+4*t,4)}, {v(LF+4*s_,4)}, {v(RF+4*s_,4)}, {'0' if s_==0 else v(D+4*t,4)}")
        for s_ in range(4, 8):
            a(f"ds_read_b128 {v(LF+4*(s_-4),4)}, v{RDA} offset:{64*s_}")
        for s_ in range(4, 8):
            a(f"s_waitcnt lgkmcnt({7-s_})")
            a(f"v_mfma_f32_16x16x32_bf16 {v(D+4*t,4)}, {v(LF+4*(s_-4),4)}, {v(RF+4*s_,4)}, {v(D+4*t,4)}")
    ev = lambda j: EV + 4 * (j // 2 - 1)
    tile(0)
    Z512 = 32; Z768 = 36
    cmul2(a, Z512, Z256, Z256)
    cmul2(a, Z768, Z512, Z256)
    tile_mfma(0)
    put(Z256, 0)
    for m in range(1, 8):
        cmul2(a, CA, Z256, ev(2 * m)); put(CA, m)
    for k, zb in ((8, Z512), (12, Z768)):
        put(zb, k)
        for i in range(1, 4):
            cmul2(a, CA, zb, ev(4 * i)); put(CA, k + i)
    tile(1)
    Z1024 = 88;
    cmul2(a, CB, Z512, Z512)
    tile_mfma(1)
    cur = CB
    oth = {CB: 36, 36: CB}
    for aa in range(4):
        put(cur, 2 * aa)
        cmul2(a, CA, cur, ev(8)); put(CA, 2 * aa + 1)
        nxt = oth[cur]
        cmul2(a, nxt, cur, Z256)
        cur = nxt
    put(cur, 8)
    tile(2)
    tile_mfma(2)
    a.stamp(1)
    a(f"v_lshlrev_b32 v{DSK}, 16, v{DSK}")
    a("s_mov_b64 exec, 1")
    a(f"v_add_f32 v{D}, v{D}, v{DSK}")
    a("s_mov_b64 exec, -1")
    TP = 52
    for t in range(3):
        for r in range(4):
            a(f"v_cvt_pk_bf16_f32 v{TP+4*t+r}, v{D+4*t+r}, v{D+4*t+r}")
    a(f"ds_write_b128 v{TB0}, {v(TP,4)}")
    a(f"ds_write_b128 v{TB1}, {v(TP+4,4)}")
    a(f"ds_write_b64 v{TB2}, {v(TP+8,2)}")
    a(f"ds_write_b64 v{TB2}, {v(TP+10,2)} offset:128")
    RA = 2
    a(f"v_lshlrev_b32 v{RA}, 3, v0")
    a(f"v_lshlrev_b32 v{RA+1}, 2, v0")
    a(f"v_add_u32 v{RA+2}, 128, v{RA+1}")
    a(f"v_cmp_gt_u32 vcc, 32, v0")
    a(f"v_cndmask_b32 v{RA}, v{RA+2}, v{RA}, vcc")
    a(f"v_lshl_add_u32 v{RA}, v{RA}, 2, s8")
    a(f"v_lshl_add_u32 v{RA+2}, v0, 3, s8")
    a(f"v_add_u32 v{RA+1}, s8, v{RA+1}")
    E0 = 64; E1 = 72; E2 = 76; E3 = 78
    a(f"ds_read_b128 {v(E0,4)}, v{RA}")
    a(f"ds_read_b128 {v(E0+4,4)}, v{RA} offset:16")
    a(f"ds_read_b64 {v(E1,2)}, v{RA+2} offset:{384*4}")
    a(f"ds_read_b32 v{E1+2}, v{RA+2} offset:{384*4+8}")
    a(f"ds_read_b32 v{E2}, v{RA+1} offset:{512*4}")
    a(f"ds_read_b32 v{E2+1}, v{RA+1} offset:{513*4}")
    a(f"ds_read_b32 v{E3}, v{RA+1} offset:{576*4}")
    a(f"ds_read_b32 v{E3+1}, v{RA+1} offset:{577*4}")
    a(f"v_lshlrev_b32 v{RA+3}, 4, v0")
    a(f"v_sub_u32 v{RA+3}, {63*16}, v{RA+3}")
    if FUSED:
        a(f"v_add_u32 v{RA+3}, s7, v{RA+3}")
    else:
        a(f"s_mul_i32 s12, s4, {KCS}")
        a(f"s_add_u32 s12, s12, {KC}")
    def kst(r, off):
        if FUSED: a(f"ds_write_b128 v{RA+3}, {v(r,4)} offset:{off}")
        else: a(f"buffer_store_dwordx4 {v(r,4)}, v{RA+3}, {SWS}, s12 offen offset:{off}{SC}")
    a("s_mov_b32 s13, 0xffff")
    a(f"v_and_b32 v{RA+4}, 1, v0")
    a(f"v_sub_u32 v{RA+4}, 0, v{RA+4}")
    a(f"v_or_b32 v{RA+4}, 0xffff, v{RA+4}")
    O = 84
    a("s_waitcnt lgkmcnt(0)")
    a(f"v_bfi_b32 v{O}, s13, v{E0+4}, v{E0+3}")
    a(f"v_mov_b32 v{O+1}, v{E0+2}")
    a(f"v_bfi_b32 v{O+2}, s13, v{E0+2}, v{E0+1}")
    a(f"v_mov_b32 v{O+3}, v{E0}")
    a("s_mov_b64 exec, 0xffffffff")
    for i in range(4):
        a(f"v_bfi_b32 v{O+i}, s13, v{E0+7-2*i}, v{E0+6-2*i}")
    a("s_mov_b64 exec, -1")
    kst(O, 192*16)
    a(f"v_mov_b32 v{O+4}, v{E1+2}")
    a(f"v_mov_b32 v{O+5}, v{E1+1}")
    a(f"v_bfi_b32 v{O+6}, s13, v{E1+1}, v{E1}")
    a(f"v_mov_b32 v{O+7}, v{E1}")
    kst(O+4, 128*16)
    for u, E in enumerate((E2, E3)):
        o = O + 8 + 4 * u
        a(f"v_mov_b32 v{o}, v{E+1}")
        a(f"v_bfi_b32 v{o+1}, v{RA+4}, v{E+1}, v{E}")
        a(f"v_mov_b32 v{o+2}, v{E}")
        a(f"v_mov_b32 v{o+3}, v{E}")
        kst(o, (64-64*u)*16)
    for i in range(4): a(f"v_mov_b32 v{O+16+i}, 0")
    if FUSED:
        a(f"v_lshl_add_u32 v{RA}, v0, 4, s7")
        a("s_mov_b64 exec, 0xf")
        for c in range(4): a(f"ds_write_b128 v{RA}, {v(O+16,4)} offset:{c*4160 + 4096}")
        a("s_mov_b64 exec, -1")
        for g in range(4):
            a(f"ds_read_b128 {v(16+8*g,4)}, v{RA} offset:{g*1024}")
            a(f"ds_read_b64 {v(20+8*g,2)}, v{RA} offset:{g*1024+16}")
        for g in range(4):
            d = 16 + 8*g; w = 52 + 12*(g & 1)
            if g == 0: a("s_waitcnt lgkmcnt(6)")
            if g == 1: a("s_waitcnt lgkmcnt(7)")
            if g == 2: a("s_waitcnt lgkmcnt(8)")
            if g == 3: a("s_waitcnt lgkmcnt(3)")
            for i in range(4): a(f"v_alignbit_b32 v{w+i}, v{d+i+1}, v{d+i}, 16")
            for i in range(4): a(f"v_mov_b32 v{w+4+i}, v{d+i+1}")
            for i in range(4): a(f"v_alignbit_b32 v{w+8+i}, v{d+i+2}, v{d+i+1}, 16")
            for c in range(1, 4): a(f"ds_write_b128 v{RA}, {v(w+4*(c-1),4)} offset:{c*4160 + g*1024}")
        fin(a)
        return
    a(f"v_mov_b32 v{RA}, 4096")
    a("s_mov_b64 exec, 1")
    a(f"buffer_store_dwordx4 {v(O+16,4)}, v{RA}, {SWS}, s12 offen")
    a.end()

def trans_role(a):
    SX = "s[52:55]"
    T = 2; RA = 16; D = 32
    if not FUSED: xt_role(a)
    wof_role(a)

def xt_role(a):
    a("s_mul_i32 s7, s3, 13312")
    srd(a, 52, 16, 2048 * 1280)
    SX = "s[52:55]"
    T = 2
    a("s_mul_i32 s5, s4, 205")
    a("s_lshr_b32 s5, s5, 10")
    a("s_mul_i32 s6, s5, 5")
    a("s_sub_u32 s6, s4, s6")
    a(f"s_mul_i32 s8, s5, {32*1280}")
    a("s_lshl_b32 s9, s6, 8")
    a("s_add_u32 s8, s8, s9")
    a(f"v_lshrrev_b32 v{T}, 4, v0")
    a(f"v_and_b32 v{T+1}, 15, v0")
    a(f"v_lshlrev_b32 v{T+2}, 1, v{T}")
    a(f"v_xor_b32 v{T+2}, v{T+2}, v{T+1}")
    a(f"v_mul_u32_u24 v{T+3}, 1280, v{T}")
    a(f"v_lshl_add_u32 v{T+4}, v{T+2}, 4, v{T+3}")
    a(f"v_xor_b32 v{T+2}, 8, v{T+2}")
    a(f"v_lshl_add_u32 v{T+5}, v{T+2}, 4, v{T+3}")
    for e in range(8):
        a(f"s_add_u32 m0, s7, {e*1024}")
        a(f"s_add_u32 s10, s8, {e*4*1280}")
        a(f"buffer_load_dwordx4 v{T+4+((e>>1)&1)}, {SX}, s10 offen lds")
    a(f"v_bfe_u32 v{T+6}, v0, 2, 2")
    a(f"v_lshl_add_u32 v{T+7}, v{T}, 3, v{T+6}")
    a(f"v_lshlrev_b32 v{T+7}, 8, v{T+7}")
    a(f"v_and_b32 v{T+8}, 3, v0")
    a(f"v_lshl_add_u32 v{T+7}, v{T+8}, 3, v{T+7}")
    a(f"v_bfe_u32 v{T+8}, v0, 4, 1")
    a(f"v_lshl_or_b32 v{T+8}, v{T+8}, 2, v{T+6}")
    a(f"v_lshl_add_u32 v{T+7}, v{T+8}, 5, v{T+7}")
    RA = 16
    for cg in range(8):
        a(f"v_xor_b32 v{RA+cg}, {cg*32}, v{T+7}")
        a(f"v_add_u32 v{RA+cg}, s7, v{RA+cg}")
    a(f"v_lshlrev_b32 v{T+9}, 12, v{T+1}")
    a(f"v_lshl_add_u32 v{T+9}, v{T}, 4, v{T+9}")
    a(f"s_lshl_b32 s10, s6, 19")
    a("s_lshl_b32 s11, s5, 6")
    a("s_add_u32 s10, s10, s11")
    a(f"s_add_u32 s10, s10, {XT}")
    a("s_waitcnt vmcnt(0)")
    D = 32
    for cg in range(8):
        for s_ in range(2):
            a(f"ds_read_b64_tr_b16 {v(D+4*cg+2*s_,2)}, v{RA+cg} offset:{s_*1024}")
    for cg in range(8):
        a(f"s_waitcnt lgkmcnt({(7-cg)*2})")
        a(f"buffer_store_dwordx4 {v(D+4*cg,4)}, v{T+9}, {SWS}, s10 offen{SC}")
        if cg < 7: a(f"s_add_u32 s10, s10, {16*4096}")
    a.end()

def wof_role(a):
    SX = "s[52:55]"
    T = 2; RA = 16; D = 32
    a.label("K1_WOT")
    a("s_mul_i32 s7, s3, 13312")
    srd(a, 52, 20, 640 * 1280)
    a("s_mul_i32 s5, s4, 205")
    a("s_lshr_b32 s5, s5, 10")
    a("s_mul_i32 s6, s5, 5")
    a("s_sub_u32 s6, s4, s6")
    a(f"s_mul_i32 s8, s5, {40*1280}")
    a("s_lshl_b32 s9, s6, 8")
    a("s_add_u32 s8, s8, s9")
    a(f"v_lshrrev_b32 v{T}, 4, v0")
    a(f"v_and_b32 v{T+1}, 15, v0")
    a(f"v_lshlrev_b32 v{T+2}, 2, v{T}")
    a(f"v_xor_b32 v{T+2}, v{T+2}, v{T+1}")
    a(f"v_mul_u32_u24 v{T+3}, 1280, v{T}")
    a(f"v_lshl_add_u32 v{T+4}, v{T+2}, 4, v{T+3}")
    for e in range(10):
        a(f"s_add_u32 m0, s7, {e*1024}")
        a(f"s_add_u32 s10, s8, {e*4*1280}")
        a(f"buffer_load_dwordx4 v{T+4}, {SX}, s10 offen lds")
    a(f"v_bfe_u32 v{T+6}, v0, 2, 2")
    a(f"v_lshlrev_b32 v{T+7}, 8, v{T+6}")
    a(f"v_and_b32 v{T+8}, 3, v0")
    a(f"v_lshl_add_u32 v{T+7}, v{T+8}, 3, v{T+7}")
    a(f"v_bfe_u32 v{T+8}, v0, 4, 1")
    a(f"v_lshl_add_u32 v{T+7}, v{T+8}, 5, v{T+7}")
    a(f"v_lshrrev_b32 v{T+8}, 5, v0")
    a(f"v_xor_b32 v{T+8}, v{T+8}, v{T+6}")
    a(f"v_lshl_add_u32 v{T+7}, v{T+8}, 6, v{T+7}")
    a(f"v_xor_b32 v{RA+1}, 128, v{T+7}")
    a(f"v_add_u32 v{RA}, s7, v{T+7}")
    a(f"v_add_u32 v{RA+1}, s7, v{RA+1}")
    a("s_lshl_b32 s11, s6, 3")
    for cs in range(2):
        a(f"v_add_u32 v{T+10}, s11, v{T}")
        if cs: a(f"v_add_u32 v{T+10}, 4, v{T+10}")
        a(f"v_mul_u32_u24 v{T+11}, 205, v{T+10}")
        a(f"v_lshrrev_b32 v{T+11}, 10, v{T+11}")
        a(f"v_mul_u32_u24 v{T+11}, 95, v{T+11}")
        a(f"v_add_u32 v{T+10}, v{T+10}, v{T+11}")
        a(f"v_lshlrev_b32 v{T+10}, 10, v{T+10}")
        a(f"v_lshl_add_u32 v{RA+2+cs}, v{T+1}, 4, v{T+10}")
    a("s_lshr_b32 s9, s5, 2")
    a("s_mul_i32 s9, s9, 25600")
    a(f"s_add_u32 s9, s9, {WOF}")
    a("s_and_b32 s12, s5, 3")
    a("s_lshl_b32 s13, s12, 8")
    a("s_add_u32 s13, s13, s9")
    a("s_add_u32 s13, s13, 20480")
    a("s_mul_i32 s12, s12, 5120")
    a("s_add_u32 s9, s9, s12")
    a("s_waitcnt vmcnt(0)")
    rows = [(0, 8), (4, 12), (20, 28), (24, 32), (16, 36)]
    for gi in range(5):
        for cs in range(2):
            for s_ in range(2):
                a(f"ds_read_b64_tr_b16 {v(D+(gi*2+cs)*4+2*s_,2)}, v{RA+cs} offset:{rows[gi][s_]*256}")
        if gi == 2: a("s_waitcnt lgkmcnt(4)")
    a("s_waitcnt lgkmcnt(0)")
    for gi in range(5):
        for cs in range(2):
            a(f"buffer_store_dwordx4 {v(D+(gi*2+cs)*4,4)}, v{RA+2+cs}, {SWS}, s{9 if gi < 4 else 13} offen offset:{gi*256 if gi < 4 else 0}{SC}")
    fin(a)

LAUNCH = "; @launch kernel=k1_kernel grid=(512,1,1) block=(512,1,1) lds=81920"
def k1(a, sc="", scq="", pf=0, only="", ldm=""):
    global SC, SCQ, PF, LDM
    LDM = ldm
    SC = sc; SCQ = scq; PF = pf
    kernel_header(a, "k1_kernel")
    a(f"s_cmp_ge_u32 s2, {240 if only == 'gemm' else 512}")
    a("s_cbranch_scc1 K1_EXIT")
    if only == "aux":
        a(f"s_cmp_lt_u32 s2, 240")
        a("s_cbranch_scc1 K1_EXIT")
    a.tstart()
    common_prologue(a)
    a("s_cmp_ge_u32 s2, 240")
    a("s_cbranch_scc1 K1_AUX")
    gemm_role(a)
    a.label("K1_AUX")
    a("s_cmp_ge_u32 s3, 6")
    a("s_cbranch_scc1 K1_EXIT")
    a("s_cmp_lt_u32 s2, 256")
    a("s_cbranch_scc1 K1_AUXA")
    a("s_cmp_ge_u32 s2, 496")
    a("s_cbranch_scc1 K1_AUXC")
    a("s_cmp_ge_u32 s3, 4")
    a("s_cbranch_scc1 K1_EXIT")
    aux_prologue(a)
    a("s_sub_u32 s5, s2, 256")
    a("s_lshl_b32 s4, s5, 1")
    a("s_add_u32 s4, s4, s3")
    a("s_cmp_lt_u32 s3, 2")
    a("s_cbranch_scc1 K1_KGEN")
    a("s_cmp_eq_u32 s3, 3")
    a("s_cbranch_scc1 K1_AUXB3")
    a("s_add_u32 s4, s5, 480")
    a("s_cmp_lt_u32 s5, 160")
    a("s_cbranch_scc1 K1_KGEN")
    a("s_sub_u32 s4, s5, 160")
    a("s_branch K1_TRANS")
    a.label("K1_AUXB3")
    a("s_add_u32 s4, s5, 80")
    a("s_cmp_lt_u32 s5, 192")
    a("s_cbranch_scc1 K1_TRANS")
    a("s_endpgm ")
    a.label("K1_AUXA")
    aux_prologue(a)
    a("s_sub_u32 s4, s2, 240")
    a("s_mul_i32 s4, s4, 6")
    a("s_add_u32 s4, s4, s3")
    a("s_cmp_lt_u32 s4, 64")
    a("s_cbranch_scc1 K1_GATE")
    a("s_sub_u32 s4, s4, 64")
    a("s_branch K1_WOT")
    a.label("K1_AUXC")
    aux_prologue(a)
    a("s_lshl_b32 s4, s2, 3")
    a("s_add_u32 s4, s4, s3")
    a("s_cmp_lg_u32 s4, 4088")
    a("s_cbranch_scc1 K1_NOZ")
    for i in range(4): a(f"v_mov_b32 v{4+i}, 0")
    a("v_lshlrev_b32 v2, 4, v0")
    a(f"s_mov_b32 s4, {FL}")
    a(f"buffer_store_dwordx4 v[4:7], v2, {SWS}, s4 offen sc1")
    a.label("K1_NOZ")
    a("s_sub_u32 s4, s2, 496")
    a("s_mul_i32 s4, s4, 6")
    a("s_add_u32 s4, s4, s3")
    a("s_add_u32 s4, s4, 32")
    a("s_cmp_lt_u32 s4, 80")
    a("s_cbranch_scc1 K1_WOT")
    a("s_add_u32 s4, s4, 192")
    a("s_branch K1_TRANS")
    a.label("K1_GATE"); gate_role(a)
    a.label("K1_KGEN"); kgen_role(a)
    a.label("K1_TRANS"); trans_role(a)
    a.label("K1_EXIT"); a("s_endpgm ")
    kernel_desc(a, "k1_kernel", 128)
```

```python
from asmlib import *
from layout import *
import struct, math

def f2u(x): return struct.unpack("<I", struct.pack("<f", x))[0]

def srd(a, d, ptr, size):
    a(f"s_mov_b32 s{d}, s{ptr}")
    a(f"s_and_b32 s{d+1}, s{ptr+1}, 0xffff")
    a(f"s_mov_b32 s{d+2}, {size}")
    a(f"s_mov_b32 s{d+3}, 0x20000")

def common_prologue(a):
    a("s_load_dwordx16 s[16:31], s[0:1], 0")
    a("s_load_dwordx16 s[32:47], s[0:1], 64")
    a("v_lshrrev_b32 v1, 6, v0")
    a("v_and_b32 v0, 63, v0")
    a("v_readfirstlane_b32 s3, v1")

def aux_prologue(a):
    a("s_waitcnt lgkmcnt(0)")
    a.stamp(7)
    srd(a, 48, 46, WS_SIZE)

SWS = "s[48:51]"
FUSED = 0
HSK = 163776
def fin(a):
    if FUSED:
        a("s_mov_b64 exec, -1")
        a("s_branch P2")
    else: a.end()

def gemm_role(a):
    a("s_and_b32 s4, s2, 7")
    a("s_lshr_b32 s5, s2, 3")
    a("s_and_b32 s6, s4, 1")
    a("s_mul_i32 s6, s6, 30")
    a("s_add_u32 s6, s6, s5")
    a("s_lshr_b32 s7, s6, 2")
    a("s_and_b32 s6, s6, 3")
    a("s_lshr_b32 s63, s4, 1")
    a("s_lshl_b32 s63, s63, 2")
    a("s_add_u32 s8, s63, s6")
    T = 32
    a("s_cmp_lt_u32 s3, 4")
    a("s_cbranch_scc1 K1_CONS")
    LO = 4
    a(f"v_lshrrev_b32 v{T+1}, 4, v0")
    a("s_and_b32 s11, s3, 1")
    a("s_lshl_b32 s12, s11, 12")
    a("s_cmp_ge_u32 s3, 6")
    a("s_cbranch_scc1 K1_LDW")
    a(f"v_lshrrev_b32 v{T}, 3, v0")
    a(f"v_mul_u32_u24 v{T}, 1280, v{T}")
    a(f"v_and_b32 v{T+2}, 7, v0")
    a(f"v_xor_b32 v{T+2}, v{T+2}, v{T+1}")
    a(f"v_lshl_add_u32 v{LO}, v{T+2}, 4, v{T}")
    a(f"v_xor_b32 v{T+2}, 4, v{T+2}")
    a(f"v_lshl_add_u32 v{LO+1}, v{T+2}, 4, v{T}")
    a(f"v_add_u32 v{LO+1}, {10240-1024}, v{LO+1}")
    a(f"v_add_u32 v{LO+2}, {2*(10240-1024)}, v{LO}")
    a(f"v_add_u32 v{LO+3}, {2*(10240-1024)}, v{LO+1}")
    a(f"s_mul_i32 s9, s8, {128*1280}")
    a(f"s_mul_i32 s11, s11, {32*1280}")
    a("s_add_u32 s9, s9, s11")
    a(f"s_mov_b32 s10, {64*1280}")
    a(f"s_mov_b32 s11, {(128 - 64*1280) & 0xffffffff}")
    a(f"s_mov_b32 s60, {NX*16384}")
    a(f"s_mov_b32 s61, {NX*16384}")
    a(f"s_mov_b32 s15, {2*NX-2}")
    a(f"s_mov_b32 s62, {20-(2*NX-2)}")
    a("s_mov_b32 s56, -2"); a("s_mov_b32 s57, 4")
    a("s_waitcnt lgkmcnt(0)")
    srd(a, 52, 16, 2048 * 1280)
    a("s_branch K1_LD0")
    a.label("K1_LDW")
    a(f"v_mul_u32_u24 v{T}, 3840, v{T+1}")
    a(f"v_and_b32 v{T+2}, 15, v0")
    a(f"v_lshlrev_b32 v{T+3}, 2, v{T+1}")
    a(f"v_xor_b32 v{T+2}, v{T+2}, v{T+3}")
    a(f"v_lshl_add_u32 v{LO}, v{T+2}, 4, v{T}")
    for e in range(1, 4): a(f"v_add_u32 v{LO+e}, {e*(15360-1024)}, v{LO}")
    a("s_lshl_b32 s9, s7, 8")
    a(f"s_mul_i32 s11, s11, {4*15360}")
    a("s_add_u32 s9, s9, s11")
    a(f"s_mov_b32 s10, {32*3840}")
    a(f"s_mov_b32 s11, {32*3840}")
    a(f"s_add_u32 s12, s12, {NX*16384}")
    a(f"s_mov_b32 s60, {NX*16384+NW*8192}")
    a(f"s_mov_b32 s61, {NW*8192}")
    a(f"s_mov_b32 s15, {NW-1}")
    a(f"s_mov_b32 s62, {20-(NW-1)}")
    a("s_mov_b32 s56, -1"); a("s_mov_b32 s57, 3")
    a("s_waitcnt lgkmcnt(0)")
    srd(a, 52, 18, 640 * 3840)
    def issue():
        a("s_mov_b32 m0, s12")
        a("s_add_u32 s12, s12, 8192")
        for e in range(4): a(f"buffer_load_dwordx4 v{LO+e}, s[52:55], s9 offen offset:{e*1024}{LDM} lds")
        a("s_add_u32 s9, s9, s10")
        a("s_mov_b32 s14, s10")
        a("s_mov_b32 s10, s11")
        a("s_mov_b32 s11, s14")
        a("s_sub_u32 s14, s12, s61")
        a("s_cmp_ge_u32 s12, s60")
        a("s_cselect_b32 s12, s14, s12")
    a.label("K1_LD0")
    if FUSED:
        a("s_mov_b32 s13, s15")
        a(f"v_mov_b32 v{T}, {HSK}")
        a("s_sub_u32 s14, s3, 4")
        a("s_lshl_b32 s14, s14, 2")
        a(f"v_add_u32 v{T+1}, s14, v{T}")
        a.label("K1_LD0F")
    issue()
    a("s_sub_u32 s15, s15, 1")
    a("s_cmp_lg_u32 s15, 0")
    a(f"s_cbranch_scc1 K1_LD0{'F' if FUSED else ''}")
    a.stamp(0)
    if FUSED:
        a("s_barrier")
        def freemin():
            a(f"v_min3_u32 v{T+4}, v{T+4}, v{T+5}, v{T+6}")
            a(f"v_min_u32 v{T+4}, v{T+4}, v{T+7}")
            a(f"v_readfirstlane_b32 s16, v{T+4}")
        a.label("K1_LD1")
        a(f"ds_read_b128 {v(T+4,4)}, v{T} offset:16")
        a("s_sub_u32 s14, s13, 2")
        a("s_and_b32 s14, s14, s56")
        a(f"v_mov_b32 v{T+2}, s14")
        a("s_and_b32 s17, s13, s56")
        a("s_sub_u32 s17, s17, s57")
        a("s_waitcnt vmcnt(8) lgkmcnt(0)")
        a(f"ds_write_b32 v{T+1}, v{T+2}")
        freemin()
        a("s_cmp_ge_u32 s16, s17")
        a("s_cbranch_scc1 K1_LDGO")
        a.label("K1_LDP")
        a(f"ds_read_b128 {v(T+4,4)}, v{T} offset:16")
        a("s_waitcnt lgkmcnt(0)")
        freemin()
        a("s_cmp_lt_u32 s16, s17")
        a("s_cbranch_scc1 K1_LDP")
        a.label("K1_LDGO")
        issue()
        a("s_add_u32 s13, s13, 1")
        a("s_cmp_lg_u32 s13, 20")
        a("s_cbranch_scc1 K1_LD1")
        for n, val in ((8, 18), (4, 19), (0, 20)):
            a(f"s_and_b32 s14, {val}, s56")
            a(f"v_mov_b32 v{T+2}, s14")
            a(f"s_waitcnt vmcnt({n})")
            a(f"ds_write_b32 v{T+1}, v{T+2}")
        a.stamp(1)
        fin(a)
    else:
        a("s_cmp_ge_u32 s3, 6")
        a("s_cbranch_scc1 K1_LDW1")
        for nm, fl in (("X", 2*NX-4), ("W", NW-2)):
            if nm == "W": a.label("K1_LDW1")
            a(f"s_waitcnt vmcnt({4*fl})")
            a("s_barrier")
            a.stamp(1)
            a.label(f"K1_LD1{nm}")
            issue()
            a("s_sub_u32 s62, s62, 1")
            a("s_cmp_lg_u32 s62, 0")
            a(f"s_waitcnt vmcnt({4*fl})")
            a("s_barrier")
            a(f"s_cbranch_scc1 K1_LD1{nm}")
            for n in range(fl-1, -1, -1):
                a(f"s_waitcnt vmcnt({4*n})")
                a("s_barrier")
            a.end()
    a.label("K1_CONS")
    XA = 12; XC = 16; WA = 20; WC = 22; EA = 24
    XF = 32; WF = 48; ACC = 64; PFO = 5
    def pf():
        if not PF: return
        a(f"buffer_load_dword v4, v{PFO}, s[52:55], s58 offen")
        a("s_add_u32 s58, s58, s57")
    if PF:
        a("s_lshr_b32 s59, s3, 1")
        a("s_add_u32 s59, s59, 1")
        a(f"v_lshrrev_b32 v{T}, 1, v0")
        a(f"v_and_b32 v{T+1}, 1, v0")
        a("s_bitcmp1_b32 s3, 0")
        a("s_cbranch_scc1 K1_PFX")
        a(f"v_mul_u32_u24 v{T}, 3840, v{T}")
        a(f"v_lshl_add_u32 v{PFO}, v{T+1}, 7, v{T}")
        a("s_lshl_b32 s58, s59, 2")
        a("s_add_u32 s58, s58, s6")
        a(f"s_mul_i32 s58, s58, {32*3840}")
        a("s_lshl_b32 s57, s7, 8")
        a("s_add_u32 s58, s58, s57")
        a(f"s_mov_b32 s57, {256*3840}")
        a("s_waitcnt lgkmcnt(0)")
        srd(a, 52, 18, 640 * 3840)
        a("s_branch K1_PFGO")
        a.label("K1_PFX")
        a(f"v_and_b32 v{T}, 15, v{T}")
        a(f"v_mul_u32_u24 v{T}, 1280, v{T}")
        a(f"v_lshl_add_u32 v{PFO}, v{T+1}, 7, v{T}")
        a("s_and_b32 s57, s4, 1")
        a("s_mul_i32 s57, s57, 7")
        a("s_sub_u32 s57, s7, s57")
        a("s_lshl_b32 s58, s8, 3")
        a("s_add_u32 s58, s58, s57")
        a(f"s_mul_i32 s58, s58, {16*1280}")
        a("s_lshl_b32 s57, s59, 8")
        a("s_add_u32 s58, s58, s57")
        a("s_mov_b32 s57, 512")
        a("s_waitcnt lgkmcnt(0)")
        srd(a, 52, 16, 2048 * 1280)
        a.label("K1_PFGO")
        pf()
        if PF == 3: pf()
    a("s_lshr_b32 s13, s3, 1")
    a("s_and_b32 s14, s3, 1")
    a(f"v_and_b32 v{T}, 31, v0")
    a(f"v_lshrrev_b32 v{T+1}, 5, v0")
    a(f"v_bfe_u32 v{T+2}, v0, 1, 3")
    a(f"v_xor_b32 v{T+2}, v{T+2}, v{T+1}")
    a(f"v_lshlrev_b32 v{T+2}, 4, v{T+2}")
    a(f"v_lshl_add_u32 v{T+2}, v{T}, 7, v{T+2}")
    a("s_lshl_b32 s12, s13, 13")
    a(f"v_add_u32 v{XA}, s12, v{T+2}")
    for ks in range(1, 4):
        a(f"v_xor_b32 v{XA+ks}, {ks*32}, v{XA}")
    for ks in range(4): a(f"v_mov_b32 v{XC+ks}, v{XA+ks}")
    a(f"v_bfe_u32 v{T+2}, v0, 2, 2")
    a(f"v_lshl_add_u32 v{T+3}, v{T+1}, 3, v{T+2}")
    a(f"v_lshlrev_b32 v{T+3}, 8, v{T+3}")
    a(f"v_and_b32 v{T+4}, 3, v0")
    a(f"v_lshl_add_u32 v{T+3}, v{T+4}, 3, v{T+3}")
    a(f"v_bfe_u32 v{T+4}, v0, 4, 1")
    a(f"v_lshl_add_u32 v{T+3}, v{T+4}, 5, v{T+3}")
    a(f"v_add_u32 v{T+3}, {NX*16384}, v{T+3}")
    a("s_lshl_b32 s12, s14, 1")
    a(f"v_xor_b32 v{T+4}, s12, v{T+2}")
    a(f"v_lshl_add_u32 v{WA}, v{T+4}, 6, v{T+3}")
    a(f"v_xor_b32 v{WA+1}, 64, v{WA}")
    for i in range(2): a(f"v_mov_b32 v{WC+i}, v{WA+i}")
    a("s_mov_b32 s59, 0")
    for i in range(64): a(f"v_mov_b32 v{ACC+i}, 0")
    a("s_lshl_b32 s15, s8, 2")
    a("s_lshl_b32 s12, s13, 1")
    a("s_add_u32 s15, s15, s12")
    a("s_mul_i32 s15, s15, 1280")
    a("s_waitcnt lgkmcnt(0)")
    srd(a, 48, 46, WS_SIZE)
    a("s_mov_b32 s17, 0")
    a("s_cmp_ge_u32 s7, 10")
    a("s_cbranch_scc1 K1_GEMM_V")

    def reads(c, ks):
        buf = ks
        for rb in range(2):
            a(f"ds_read_b128 {v(XF+buf*8+rb*4,4)}, v{XC + 2*(c&1) + ks} offset:{rb*4096}")
        for cb in range(2):
            for s_ in range(2):
                a(f"ds_read_b64_tr_b16 {v(WF+buf*8+cb*4+s_*2,2)}, v{WC+cb} offset:{ks*4096 + s_*1024}")
    def mfmas(orient, buf):
        for rb in range(2):
            for cb in range(2):
                acc = v(ACC + (rb * 2 + cb) * 16, 16)
                x = v(XF + buf * 8 + rb * 4, 4); w = v(WF + buf * 8 + cb * 4, 4)
                A, B = (w, x) if orient == "qk" else (x, w)
                a(f"v_mfma_f32_32x32x16_bf16 {acc}, {A}, {B}, {acc}")
    HW = 8; HA = 6; HF = 7
    def fullchk():
        a(f"v_min3_u32 v{HW}, v{HW}, v{HW+1}, v{HW+2}")
        a(f"v_min_u32 v{HW}, v{HW}, v{HW+3}")
        a(f"v_cmp_gt_u32 vcc, s18, v{HW}")
    def poll(lab):
        a.label(lab)
        a(f"ds_read_b128 {v(HW,4)}, v{HA}")
        a("s_waitcnt lgkmcnt(0)")
        fullchk()
        a(f"s_cbranch_vccnz {lab}")
    def body(orient):
        a.stamp(0)
        if FUSED:
            a(f"v_mov_b32 v{HA}, {HSK}")
            a("s_lshl_b32 s18, s3, 2")
            a(f"v_add_u32 v{HF}, s18, v{HA}")
            a("v_mov_b32 v5, 0")
            a("s_mov_b32 s18, 1")
        a("s_barrier")
        if FUSED: poll(f"K1_P0_{orient}")
        a.stamp(1)
        if IL and not FUSED:
            def rx(c, ks, rb): a(f"ds_read_b128 {v(XF+ks*8+rb*4,4)}, v{XC + 2*(c&1) + ks} offset:{rb*4096}")
            def rw(ks, cb):
                for s_ in range(2): a(f"ds_read_b64_tr_b16 {v(WF+ks*8+cb*4+s_*2,2)}, v{WC+cb} offset:{ks*4096 + s_*1024}")
            def m(buf, rb, cb):
                acc = v(ACC + (rb * 2 + cb) * 16, 16)
                x = v(XF + buf * 8 + rb * 4, 4); w = v(WF + buf * 8 + cb * 4, 4)
                A, B = (w, x) if orient == "qk" else (x, w)
                a(f"v_mfma_f32_32x32x16_bf16 {acc}, {A}, {B}, {acc}")
            reads(0, 0); reads(0, 1)
            a("s_mov_b32 s16, 10")
            a("s_waitcnt lgkmcnt(6)")
            a.label(f"K1_GL_{orient}")
            for c in range(2):
                m(0, 0, 0)
                a("s_add_u32 s59, s59, 8192")
                a(f"s_cmp_eq_u32 s59, {NW*8192}")
                a("s_cselect_b32 s59, 0, s59")
                for i in range(2): a(f"v_add_u32 v{WC+i}, s59, v{WA+i}")
                if c & 1:
                    a("s_add_u32 s17, s17, 16384")
                    a(f"s_cmp_eq_u32 s17, {NX*16384}")
                    a("s_cselect_b32 s17, 0, s17")
                    for ks in range(2): a(f"v_add_u32 v{XC+ks}, s17, v{XA+ks}")
                else:
                    for ks in range(2, 4): a(f"v_add_u32 v{XC+ks}, s17, v{XA+ks}")
                m(0, 0, 1)
                a("s_waitcnt lgkmcnt(0)")
                a("s_barrier")
                rx(c+1, 0, 0); m(0, 1, 0); rw(0, 0); m(0, 1, 1); rx(c+1, 0, 1); rw(0, 1)
                m(1, 0, 0)
                if c == 1:
                    a("s_sub_u32 s16, s16, 1")
                    a("s_cmp_lg_u32 s16, 0")
                m(1, 0, 1); rx(c+1, 1, 0); m(1, 1, 0); rw(1, 0); m(1, 1, 1); rx(c+1, 1, 1); rw(1, 1)
                a("s_waitcnt lgkmcnt(6)")
            a(f"s_cbranch_scc1 K1_GL_{orient}")
            a.stamp(2)
            return
        reads(0, 0)
        a("s_mov_b32 s16, 5")
        a.label(f"K1_GL_{orient}")
        if PF in (1, 2):
            a(f"s_cmp_lg_u32 s16, {6 - PF}")
            a(f"s_cbranch_scc1 K1_NPF_{orient}")
            pf()
            a.label(f"K1_NPF_{orient}")
        for c in range(4):
            if FUSED:
                a(f"ds_read_b128 {v(HW,4)}, v{HA}")
                a("s_add_u32 s18, s18, 1")
                a("s_min_u32 s18, s18, 20")
                a("v_add_u32 v5, 1, v5")
            reads(c, 1)
            if c & 1:
                a("s_add_u32 s17, s17, 16384")
                a(f"s_cmp_eq_u32 s17, {NX*16384}")
                a("s_cselect_b32 s17, 0, s17")
                for ks in range(4): a(f"v_add_u32 v{XC+ks}, s17, v{XA+ks}")
            a("s_add_u32 s59, s59, 8192")
            a(f"s_cmp_eq_u32 s59, {NW*8192}")
            a("s_cselect_b32 s59, 0, s59")
            for i in range(2): a(f"v_add_u32 v{WC+i}, s59, v{WA+i}")
            a("s_waitcnt lgkmcnt(6)")
            mfmas(orient, 0)
            if FUSED:
                fullchk()
                a("s_waitcnt lgkmcnt(0)")
                a(f"ds_write_b32 v{HF}, v5 offset:16")
                a(f"s_cbranch_vccnz K1_SL_{orient}{c}")
            else:
                a("s_waitcnt lgkmcnt(0)")
                a("s_barrier")
            reads(c + 1, 0)
            mfmas(orient, 1)
            if FUSED: a.label(f"K1_SD_{orient}{c}")
        a("s_sub_u32 s16, s16, 1")
        a("s_cmp_lg_u32 s16, 0")
        a(f"s_cbranch_scc1 K1_GL_{orient}")
        a.stamp(2)
    def slow(orient):
        if not FUSED: return
        for c in range(4):
            a.label(f"K1_SL_{orient}{c}")
            mfmas(orient, 1)
            poll(f"K1_PP_{orient}{c}")
            reads(c + 1, 0)
            a(f"s_branch K1_SD_{orient}{c}")

    a("s_lshl_b32 s12, s7, 4")
    a("s_lshl_b32 s60, s14, 3")
    a("s_add_u32 s12, s12, s60")
    a(f"v_add_u32 v{T+2}, s12, v{T+1}")
    a(f"v_lshlrev_b32 v{T+6}, 4, v{T}")
    a(f"v_lshl_add_u32 v{T+7}, v{T}, 3, 0")
    a(f"v_add_u32 v{T+7}, 1024, v{T+7}")
    a(f"s_mov_b32 s61, {HS}")
    a(f"s_add_u32 s63, s15, {HS}")
    for cb in range(2):
        for p in range(2):
            e = EA + cb * 2 + p
            mk = 36 + 2 * (cb * 2 + p)
            a(f"v_add_u32 v{T+3}, {4*cb+2*p}, v{T+2}")
            a(f"v_mul_u32_u24 v{T+4}, 205, v{T+3}")
            a(f"v_lshrrev_b32 v{T+4}, 10, v{T+4}")
            a(f"v_mul_u32_u24 v{T+5}, 5, v{T+4}")
            a(f"v_sub_u32 v{T+3}, v{T+3}, v{T+5}")
            a(f"v_lshlrev_b32 v{T+4}, 1, v{T+4}")
            a(f"v_cmp_lt_u32 vcc, 2, v{T+3}")
            a(f"v_subrev_u32 v{T+5}, 3, v{T+3}")
            a(f"v_cndmask_b32 v{T+5}, v{T+3}, v{T+5}, vcc")
            a(f"v_addc_co_u32 v{T+4}, vcc, 0, v{T+4}, vcc")
            a(f"v_cmp_eq_u32 s[{mk}:{mk+1}], 2, v{T+3}")
            a(f"v_lshl_add_u32 v{T+5}, v{T+5}, 9, v{T+6}")
            a(f"v_cndmask_b32 v{T+5}, v{T+5}, v{T+7}, s[{mk}:{mk+1}]")
            a(f"v_mad_u32_u24 v{e}, v{T+4}, s61, v{T+5}")
    qs = (20 ** -0.5) * math.log2(math.e)
    a(f"s_mov_b32 s62, {f2u(qs)}")
    a("s_cmp_ge_u32 s7, 5")
    a("s_cselect_b32 s62, 1.0, s62")
    body("qk")
    for rb in range(2):
        for cb in range(2):
            ac = ACC + (rb * 2 + cb) * 16
            for p in range(2):
                r = ac + p * 8
                mk = 36 + 2 * (cb * 2 + p)
                for i in range(0, 8, 2): a(f"v_pk_mul_f32 {v(r+i,2)}, {v(r+i,2)}, s[62:63] op_sel_hi:[1,0]")
                for i in range(4): a(f"v_cvt_pk_bf16_f32 v{r+i}, v{r+2*i}, v{r+2*i+1}")
                a(f"v_permlane32_swap_b32 v{r}, v{r+2}")
                a(f"v_permlane32_swap_b32 v{r+1}, v{r+3}")
                a(f"s_andn2_b64 exec, -1, s[{mk}:{mk+1}]")
                a(f"buffer_store_dwordx4 {v(r,4)}, v{EA+cb*2+p}, {SWS}, s15 offen offset:{rb*1280}{SC}")
                a(f"s_cmp_eq_u64 s[{mk}:{mk+1}], 0")
                a(f"s_cbranch_scc1 K1_NM{rb}{cb}{p}")
                a(f"s_mov_b64 exec, s[{mk}:{mk+1}]")
                a(f"buffer_store_dwordx2 {v(r,2)}, v{EA+cb*2+p}, {SWS}, s15 offen offset:{rb*1280}{SC}")
                a(f"buffer_store_dwordx2 {v(r+2,2)}, v{EA+cb*2+p}, {SWS}, s63 offen offset:{rb*1280}{SC}")
                a.label(f"K1_NM{rb}{cb}{p}")
                a("s_mov_b64 exec, -1")
    fin(a)
    slow("qk")
    a.label("K1_GEMM_V")
    a("s_sub_u32 s12, s7, 10")
    a("s_lshl_b32 s12, s12, 7")
    a("s_lshl_b32 s60, s14, 6")
    a("s_add_u32 s12, s12, s60")
    a(f"s_mov_b32 s61, {HS}")
    a(f"v_lshlrev_b32 v{T+6}, 4, v{T+1}")
    for cb in range(2):
        a(f"v_add_u32 v{T+3}, s12, v{T}")
        if cb: a(f"v_add_u32 v{T+3}, 32, v{T+3}")
        a(f"v_mul_u32_u24 v{T+4}, 3277, v{T+3}")
        a(f"v_lshrrev_b32 v{T+4}, 16, v{T+4}")
        a(f"v_mul_u32_u24 v{T+5}, 20, v{T+4}")
        a(f"v_sub_u32 v{T+3}, v{T+3}, v{T+5}")
        a(f"v_lshl_add_u32 v{T+5}, v{T+3}, 5, v{T+6}")
        a(f"v_mad_u32_u24 v{EA+cb}, v{T+4}, s61, v{T+5}")
    a(f"s_add_u32 s15, s15, {VF}")
    body("v")
    for rb in range(2):
        for cb in range(2):
            ac = ACC + (rb * 2 + cb) * 16
            for g in range(2):
                r = ac + g * 8
                for i in range(4): a(f"v_cvt_pk_bf16_f32 v{r+i}, v{r+2*i}, v{r+2*i+1}")
                a(f"buffer_store_dwordx4 {v(r,4)}, v{EA+cb}, {SWS}, s15 offen offset:{rb*1280+g*640}{SC}")
    fin(a)
    slow("v")

def gate_role(a):
    srd(a, 52, 16, 2048 * 1280)
    SX = "s[52:55]"
    G = 8; X = 32; ACC = 112; T = 2
    if FUSED: a.label("K1_GATE2")
    a(f"s_mul_i32 s5, s4, {32*1280}")
    a(f"v_and_b32 v{T}, 15, v0")
    a(f"v_lshlrev_b32 v{T+1}, 4, v{T}")
    for e in range(5):
        a(f"global_load_dwordx4 {v(G+4*e,4)}, v{T+1}, s[40:41] offset:{e*256}")
    a(f"v_lshrrev_b32 v{T+2}, 4, v0")
    a(f"v_mul_u32_u24 v{T+3}, 1280, v{T+2}")
    a(f"v_add_u32 v{T+3}, v{T+3}, v{T+1}")
    for grp in range(8):
        a(f"v_mov_b32 v{ACC+grp}, 0")
    def gl(grp):
        for e in range(5):
            a(f"buffer_load_dwordx4 {v(X+(grp&3)*20+e*4,4)}, v{T+3}, {SX}, s5 offen offset:{e*256}")
        if grp < 7: a(f"s_add_u32 s5, s5, {4*1280}")
    for grp in range(4): gl(grp)
    for grp in range(8):
        a(f"s_waitcnt vmcnt({min(3, 7-grp)*5})")
        for i in range(20):
            a(f"v_dot2c_f32_bf16 v{ACC+grp}, v{X+(grp&3)*20+i}, v{G+i}")
        if grp < 4: gl(grp + 4)
    for sh in (8, 4, 2, 1):
        for grp in range(8):
            a(f"v_add_f32_dpp v{ACC+grp}, v{ACC+grp}, v{ACC+grp} row_ror:{sh} row_mask:0xf bank_mask:0xf")
    for k in range(1, 8):
        a(f"v_cmp_eq_u32 vcc, {k}, v{T}")
        a(f"v_cndmask_b32 v{ACC}, v{ACC}, v{ACC+k}, vcc")
    R = ACC
    a(f"v_cvt_pk_bf16_f32 v{R}, v{R}, v{R}")
    a(f"v_lshlrev_b32 v{R}, 16, v{R}")
    a(f"v_mul_f32 v{R}, {f2u(-math.log2(math.e))}, v{R}")
    a(f"v_exp_f32 v{R}, v{R}")
    a(f"v_add_f32 v{R}, 1.0, v{R}")
    a(f"v_rcp_f32 v{R}, v{R}")
    a(f"v_cvt_pk_bf16_f32 v{R}, v{R}, v{R}")
    a(f"v_lshlrev_b32 v{R}, 16, v{R}")
    a(f"v_lshl_add_u32 v{T+3}, v{T}, 2, v{T+2}")
    a(f"v_lshlrev_b32 v{T+3}, 2, v{T+3}")
    a("s_lshl_b32 s5, s4, 7")
    a(f"s_add_u32 s5, s5, {GT}")
    a(f"v_cmp_gt_u32 vcc, 8, v{T}")
    a("s_and_saveexec_b64 s[6:7], vcc")
    a(f"buffer_store_dword v{R}, v{T+3}, {SWS}, s5 offen{SC}")
    if FUSED:
        a("s_mov_b64 exec, -1")
        a("s_add_u32 s4, s4, 3")
        a("s_cmp_lt_u32 s4, s60")
        a("s_cbranch_scc1 K1_GATE2")
    fin(a)

def cmul(a, d, x, y):
    a(f"v_pk_mul_f32 {v(d,2)}, {v(x,2)}, {v(y,2)} op_sel:[0,0] op_sel_hi:[0,1]")
    a(f"v_pk_fma_f32 {v(d,2)}, {v(x,2)}, {v(y,2)}, {v(d,2)} op_sel:[1,1,0] op_sel_hi:[1,0,1] neg_lo:[0,1,0]")

def cmul2(a, d, x, y):
    for o in (0, 2):
        a(f"v_pk_mul_f32 {v(d+o,2)}, {v(x+o,2)}, {v(y+o,2)} op_sel:[0,0] op_sel_hi:[0,1]")
    for o in (0, 2):
        a(f"v_pk_fma_f32 {v(d+o,2)}, {v(x+o,2)}, {v(y+o,2)}, {v(d+o,2)} op_sel:[1,1,0] op_sel_hi:[1,0,1] neg_lo:[0,1,0]")

def kgen_role(a):
    log2e = math.log2(math.e)
    a("s_lshl_b32 s5, s4, 8")
    T = 2
    P = 52
    DSK = 8
    a(f"v_lshl_add_u32 v{T}, v0, 2, s5")
    for i, pr in enumerate((24, 26, 28, 30, 32, 34)):
        a(f"global_load_dword v{P+i}, v{T}, s[{pr}:{pr+1}]")
    a("s_lshl_b32 s6, s4, 1")
    a(f"v_mov_b32 v{T+1}, s6")
    a(f"global_load_ushort v{P+6}, v{T+1}, s[36:37]")
    a(f"global_load_ushort v{DSK}, v{T+1}, s[38:39]")
    SL = 528
    if not FUSED: a("s_mul_i32 s7, s3, 13312")
    WRA = 9; RDA = 10; TB0 = 11; TB1 = 12; TB2 = 13
    a(f"v_lshl_add_u32 v{WRA}, v0, 3, s7")
    a(f"v_and_b32 v{T+2}, 15, v0")
    a(f"v_lshrrev_b32 v{T+3}, 4, v0")
    a(f"v_mul_u32_u24 v{RDA}, {SL}, v{T+2}")
    a(f"v_lshl_add_u32 v{RDA}, v{T+3}, 4, v{RDA}")
    a(f"v_add_u32 v{RDA}, s7, v{RDA}")
    a("s_add_u32 s8, s7, 8448")
    a(f"v_lshlrev_b32 v{TB0}, 4, v{T+2}")
    a(f"v_lshl_add_u32 v{TB0}, v{T+3}, 2, v{TB0}")
    a(f"v_lshl_add_u32 v{TB0}, v{TB0}, 2, s8")
    a(f"v_lshlrev_b32 v{T+4}, 3, v{T+2}")
    a(f"v_lshl_add_u32 v{T+4}, v{T+3}, 2, v{T+4}")
    a(f"v_add_u32 v{T+4}, 256, v{T+4}")
    a(f"v_lshlrev_b32 v{T+5}, 2, v{T+2}")
    a(f"v_lshl_add_u32 v{T+5}, v{T+3}, 6, v{T+5}")
    a(f"v_add_u32 v{T+5}, 256, v{T+5}")
    a(f"v_cmp_gt_u32 vcc, 32, v0")
    a(f"v_cndmask_b32 v{TB1}, v{T+5}, v{T+4}, vcc")
    a(f"v_lshl_add_u32 v{TB1}, v{TB1}, 2, s8")
    a(f"v_lshlrev_b32 v{T+4}, 1, v{T+2}")
    a(f"v_lshl_add_u32 v{T+4}, v{T+3}, 6, v{T+4}")
    a(f"v_add_u32 v{T+4}, 512, v{T+4}")
    a(f"v_mov_b32 v{T+5}, 704")
    a(f"v_cmp_ge_u32 vcc, 32, v0")
    a(f"v_cndmask_b32 v{TB2}, v{T+5}, v{T+4}, vcc")
    a(f"v_lshl_add_u32 v{TB2}, v{TB2}, 2, s8")
    if FUSED: a("s_barrier")
    a("s_waitcnt vmcnt(0)")
    a.stamp(0)
    DT = 14
    hi = struct.unpack("<f", struct.pack("<f", log2e))[0]; lo = log2e - hi
    a(f"v_lshlrev_b32 v{T}, 16, v{P+6}")
    a(f"s_mov_b32 s9, {f2u(hi)}")
    a(f"v_mul_f32 v{T+1}, s9, v{T}")
    a(f"v_fma_f32 v{T+2}, v{T}, s9, -v{T+1}")
    a(f"v_mov_b32 v{T+3}, {f2u(lo)}")
    a(f"v_fmac_f32 v{T+2}, v{T}, v{T+3}")
    a(f"v_exp_f32 v{T+1}, v{T+1}")
    a(f"v_mul_f32 v{T+2}, {f2u(math.log(2.0))}, v{T+2}")
    a(f"v_fma_f32 v{T+1}, v{T+1}, v{T+2}, v{T+1}")
    a(f"v_cvt_pk_bf16_f32 v{DT}, v{T+1}, v{T+1}")
    a(f"v_lshlrev_b32 v{DT}, 16, v{DT}")
    A_ = 16; B_ = 20; C_ = 24; W_ = 28
    for grp, (re_, im_) in ((A_, (P, P + 1)), (B_, (P + 2, P + 3)), (C_, (P + 4, P + 5))):
        a(f"v_lshlrev_b32 v{grp}, 16, v{re_}")
        a(f"v_lshlrev_b32 v{grp+1}, 16, v{im_}")
        a(f"v_and_b32 v{grp+2}, 0xffff0000, v{re_}")
        a(f"v_and_b32 v{grp+3}, 0xffff0000, v{im_}")
    for i in range(4):
        a(f"v_mul_f32 v{A_+i}, v{DT}, v{A_+i}")
        a(f"v_mul_f32 v{B_+i}, v{DT}, v{B_+i}")
    cmul2(a, W_, C_, B_)
    a(f"s_mov_b32 s10, {f2u(1.0/(2*math.pi))}")
    for o in (0, 2):
        a(f"v_mul_f32 v{A_+o}, s9, v{A_+o}")
        a(f"v_mul_f32 v{A_+o+1}, s10, v{A_+o+1}")
    Z1 = 32; Z16 = 36; Z256 = 40
    def base(dst, n):
        E = 44
        a(f"s_mov_b32 s11, {f2u(float(n))}")
        for o in (0, 2):
            if n != 1:
                a(f"v_mul_f32 v{E+o}, s11, v{A_+o}")
                a(f"v_mul_f32 v{E+o+1}, s11, v{A_+o+1}")
                a(f"v_fract_f32 v{E+o+1}, v{E+o+1}")
                a(f"v_exp_f32 v{E+o}, v{E+o}")
            else:
                a(f"v_fract_f32 v{E+o+1}, v{A_+o+1}")
                a(f"v_exp_f32 v{E+o}, v{A_+o}")
        for o in (0, 2):
            a(f"v_cos_f32 v{dst+o}, v{E+o+1}")
            a(f"v_sin_f32 v{dst+o+1}, v{E+o+1}")
        for o in (0, 2):
            a(f"v_pk_mul_f32 {v(dst+o,2)}, {v(dst+o,2)}, {v(E+o,2)} op_sel:[0,0] op_sel_hi:[1,0]")
    base(Z16, 16)
    PK = 2
    cnt = [0]
    def put(src, slot, neg=False):
        p = PK + 2 * (cnt[0] & 1); cnt[0] += 1
        n = "-" if neg else ""
        a(f"v_cvt_pk_bf16_f32 v{p}, v{src}, {n}v{src+1}")
        a(f"v_cvt_pk_bf16_f32 v{p+1}, v{src+2}, {n}v{src+3}")
        a(f"ds_write_b64 v{WRA}, {v(p,2)} offset:{slot*SL}")
    CA = 44; CB = 48
    put(W_, 0, True)
    cur = W_
    for j in range(1, 16):
        nxt = CA if cur != CA else CB
        cmul2(a, nxt, cur, Z16)
        put(nxt, j, True)
        cur = nxt
    RF = 52
    for s_ in range(8):
        a(f"ds_read_b128 {v(RF+4*s_,4)}, v{RDA} offset:{64*s_}")
    base(Z1, 1)
    base(Z256, 256)
    EV = 84
    ONE = 6
    a(f"v_mov_b32 v{ONE}, 0x3f80")
    a(f"v_mov_b32 v{ONE+1}, 0x3f80")
    a(f"ds_write_b64 v{WRA}, {v(ONE,2)} offset:0")
    put(Z1, 1)
    cur = Z1
    for j in range(2, 16):
        nxt = EV + 4 * (j // 2 - 1) if j % 2 == 0 else CA
        cmul2(a, nxt, cur, Z1)
        put(nxt, j)
        cur = nxt
    LF = 112
    D = 16
    def tile(t):
        for s_ in range(4):
            a(f"ds_read_b128 {v(LF+4*s_,4)}, v{RDA} offset:{64*s_}")
    def tile_mfma(t):
        for s_ in range(4):
            a(f"s_waitcnt lgkmcnt({3-s_})")
            a(f"v_mfma_f32_16x16x32_bf16 {v(D+4*t,4)}, {v(LF+4*s_,4)}, {v(RF+4*s_,4)}, {'0' if s_==0 else v(D+4*t,4)}")
        for s_ in range(4, 8):
            a(f"ds_read_b128 {v(LF+4*(s_-4),4)}, v{RDA} offset:{64*s_}")
        for s_ in range(4, 8):
            a(f"s_waitcnt lgkmcnt({7-s_})")
            a(f"v_mfma_f32_16x16x32_bf16 {v(D+4*t,4)}, {v(LF+4*(s_-4),4)}, {v(RF+4*s_,4)}, {v(D+4*t,4)}")
    ev = lambda j: EV + 4 * (j // 2 - 1)
    tile(0)
    Z512 = 32; Z768 = 36
    cmul2(a, Z512, Z256, Z256)
    cmul2(a, Z768, Z512, Z256)
    tile_mfma(0)
    put(Z256, 0)
    for m in range(1, 8):
        cmul2(a, CA, Z256, ev(2 * m)); put(CA, m)
    for k, zb in ((8, Z512), (12, Z768)):
        put(zb, k)
        for i in range(1, 4):
            cmul2(a, CA, zb, ev(4 * i)); put(CA, k + i)
    tile(1)
    Z1024 = 88;
    cmul2(a, CB, Z512, Z512)
    tile_mfma(1)
    cur = CB
    oth = {CB: 36, 36: CB}
    for aa in range(4):
        put(cur, 2 * aa)
        cmul2(a, CA, cur, ev(8)); put(CA, 2 * aa + 1)
        nxt = oth[cur]
        cmul2(a, nxt, cur, Z256)
        cur = nxt
    put(cur, 8)
    tile(2)
    tile_mfma(2)
    a.stamp(1)
    a(f"v_lshlrev_b32 v{DSK}, 16, v{DSK}")
    a("s_mov_b64 exec, 1")
    a(f"v_add_f32 v{D}, v{D}, v{DSK}")
    a("s_mov_b64 exec, -1")
    TP = 52
    for t in range(3):
        for r in range(4):
            a(f"v_cvt_pk_bf16_f32 v{TP+4*t+r}, v{D+4*t+r}, v{D+4*t+r}")
    a(f"ds_write_b128 v{TB0}, {v(TP,4)}")
    a(f"ds_write_b128 v{TB1}, {v(TP+4,4)}")
    a(f"ds_write_b64 v{TB2}, {v(TP+8,2)}")
    a(f"ds_write_b64 v{TB2}, {v(TP+10,2)} offset:128")
    RA = 2
    a(f"v_lshlrev_b32 v{RA}, 3, v0")
    a(f"v_lshlrev_b32 v{RA+1}, 2, v0")
    a(f"v_add_u32 v{RA+2}, 128, v{RA+1}")
    a(f"v_cmp_gt_u32 vcc, 32, v0")
    a(f"v_cndmask_b32 v{RA}, v{RA+2}, v{RA}, vcc")
    a(f"v_lshl_add_u32 v{RA}, v{RA}, 2, s8")
    a(f"v_lshl_add_u32 v{RA+2}, v0, 3, s8")
    a(f"v_add_u32 v{RA+1}, s8, v{RA+1}")
    E0 = 64; E1 = 72; E2 = 76; E3 = 78
    a(f"ds_read_b128 {v(E0,4)}, v{RA}")
    a(f"ds_read_b128 {v(E0+4,4)}, v{RA} offset:16")
    a(f"ds_read_b64 {v(E1,2)}, v{RA+2} offset:{384*4}")
    a(f"ds_read_b32 v{E1+2}, v{RA+2} offset:{384*4+8}")
    a(f"ds_read_b32 v{E2}, v{RA+1} offset:{512*4}")
    a(f"ds_read_b32 v{E2+1}, v{RA+1} offset:{513*4}")
    a(f"ds_read_b32 v{E3}, v{RA+1} offset:{576*4}")
    a(f"ds_read_b32 v{E3+1}, v{RA+1} offset:{577*4}")
    a(f"v_lshlrev_b32 v{RA+3}, 4, v0")
    a(f"v_sub_u32 v{RA+3}, {63*16}, v{RA+3}")
    if FUSED:
        a(f"v_add_u32 v{RA+3}, s7, v{RA+3}")
    else:
        a(f"s_mul_i32 s12, s4, {KCS}")
        a(f"s_add_u32 s12, s12, {KC}")
    def kst(r, off):
        if FUSED: a(f"ds_write_b128 v{RA+3}, {v(r,4)} offset:{off}")
        else: a(f"buffer_store_dwordx4 {v(r,4)}, v{RA+3}, {SWS}, s12 offen offset:{off}{SC}")
    a("s_mov_b32 s13, 0xffff")
    a(f"v_and_b32 v{RA+4}, 1, v0")
    a(f"v_sub_u32 v{RA+4}, 0, v{RA+4}")
    a(f"v_or_b32 v{RA+4}, 0xffff, v{RA+4}")
    O = 84
    a("s_waitcnt lgkmcnt(0)")
    a(f"v_bfi_b32 v{O}, s13, v{E0+4}, v{E0+3}")
    a(f"v_mov_b32 v{O+1}, v{E0+2}")
    a(f"v_bfi_b32 v{O+2}, s13, v{E0+2}, v{E0+1}")
    a(f"v_mov_b32 v{O+3}, v{E0}")
    a("s_mov_b64 exec, 0xffffffff")
    for i in range(4):
        a(f"v_bfi_b32 v{O+i}, s13, v{E0+7-2*i}, v{E0+6-2*i}")
    a("s_mov_b64 exec, -1")
    kst(O, 192*16)
    a(f"v_mov_b32 v{O+4}, v{E1+2}")
    a(f"v_mov_b32 v{O+5}, v{E1+1}")
    a(f"v_bfi_b32 v{O+6}, s13, v{E1+1}, v{E1}")
    a(f"v_mov_b32 v{O+7}, v{E1}")
    kst(O+4, 128*16)
    for u, E in enumerate((E2, E3)):
        o = O + 8 + 4 * u
        a(f"v_mov_b32 v{o}, v{E+1}")
        a(f"v_bfi_b32 v{o+1}, v{RA+4}, v{E+1}, v{E}")
        a(f"v_mov_b32 v{o+2}, v{E}")
        a(f"v_mov_b32 v{o+3}, v{E}")
        kst(o, (64-64*u)*16)
    for i in range(4): a(f"v_mov_b32 v{O+16+i}, 0")
    if FUSED:
        a(f"v_lshl_add_u32 v{RA}, v0, 4, s7")
        a("s_mov_b64 exec, 0xf")
        for c in range(4): a(f"ds_write_b128 v{RA}, {v(O+16,4)} offset:{c*4160 + 4096}")
        a("s_mov_b64 exec, -1")
        for g in range(4):
            a(f"ds_read_b128 {v(16+8*g,4)}, v{RA} offset:{g*1024}")
            a(f"ds_read_b64 {v(20+8*g,2)}, v{RA} offset:{g*1024+16}")
        for g in range(4):
            d = 16 + 8*g; w = 52 + 12*(g & 1)
            if g == 0: a("s_waitcnt lgkmcnt(6)")
            if g == 1: a("s_waitcnt lgkmcnt(7)")
            if g == 2: a("s_waitcnt lgkmcnt(8)")
            if g == 3: a("s_waitcnt lgkmcnt(3)")
            for i in range(4): a(f"v_alignbit_b32 v{w+i}, v{d+i+1}, v{d+i}, 16")
            for i in range(4): a(f"v_mov_b32 v{w+4+i}, v{d+i+1}")
            for i in range(4): a(f"v_alignbit_b32 v{w+8+i}, v{d+i+2}, v{d+i+1}, 16")
            for c in range(1, 4): a(f"ds_write_b128 v{RA}, {v(w+4*(c-1),4)} offset:{c*4160 + g*1024}")
        fin(a)
        return
    a(f"v_mov_b32 v{RA}, 4096")
    a("s_mov_b64 exec, 1")
    a(f"buffer_store_dwordx4 {v(O+16,4)}, v{RA}, {SWS}, s12 offen")
    a.end()

def trans_role(a):
    SX = "s[52:55]"
    T = 2; RA = 16; D = 32
    if not FUSED: xt_role(a)
    wof_role(a)

def xt_role(a):
    a("s_mul_i32 s7, s3, 13312")
    srd(a, 52, 16, 2048 * 1280)
    SX = "s[52:55]"
    T = 2
    a("s_mul_i32 s5, s4, 205")
    a("s_lshr_b32 s5, s5, 10")
    a("s_mul_i32 s6, s5, 5")
    a("s_sub_u32 s6, s4, s6")
    a(f"s_mul_i32 s8, s5, {32*1280}")
    a("s_lshl_b32 s9, s6, 8")
    a("s_add_u32 s8, s8, s9")
    a(f"v_lshrrev_b32 v{T}, 4, v0")
    a(f"v_and_b32 v{T+1}, 15, v0")
    a(f"v_lshlrev_b32 v{T+2}, 1, v{T}")
    a(f"v_xor_b32 v{T+2}, v{T+2}, v{T+1}")
    a(f"v_mul_u32_u24 v{T+3}, 1280, v{T}")
    a(f"v_lshl_add_u32 v{T+4}, v{T+2}, 4, v{T+3}")
    a(f"v_xor_b32 v{T+2}, 8, v{T+2}")
    a(f"v_lshl_add_u32 v{T+5}, v{T+2}, 4, v{T+3}")
    for e in range(8):
        a(f"s_add_u32 m0, s7, {e*1024}")
        a(f"s_add_u32 s10, s8, {e*4*1280}")
        a(f"buffer_load_dwordx4 v{T+4+((e>>1)&1)}, {SX}, s10 offen lds")
    a(f"v_bfe_u32 v{T+6}, v0, 2, 2")
    a(f"v_lshl_add_u32 v{T+7}, v{T}, 3, v{T+6}")
    a(f"v_lshlrev_b32 v{T+7}, 8, v{T+7}")
    a(f"v_and_b32 v{T+8}, 3, v0")
    a(f"v_lshl_add_u32 v{T+7}, v{T+8}, 3, v{T+7}")
    a(f"v_bfe_u32 v{T+8}, v0, 4, 1")
    a(f"v_lshl_or_b32 v{T+8}, v{T+8}, 2, v{T+6}")
    a(f"v_lshl_add_u32 v{T+7}, v{T+8}, 5, v{T+7}")
    RA = 16
    for cg in range(8):
        a(f"v_xor_b32 v{RA+cg}, {cg*32}, v{T+7}")
        a(f"v_add_u32 v{RA+cg}, s7, v{RA+cg}")
    a(f"v_lshlrev_b32 v{T+9}, 12, v{T+1}")
    a(f"v_lshl_add_u32 v{T+9}, v{T}, 4, v{T+9}")
    a(f"s_lshl_b32 s10, s6, 19")
    a("s_lshl_b32 s11, s5, 6")
    a("s_add_u32 s10, s10, s11")
    a(f"s_add_u32 s10, s10, {XT}")
    a("s_waitcnt vmcnt(0)")
    D = 32
    for cg in range(8):
        for s_ in range(2):
            a(f"ds_read_b64_tr_b16 {v(D+4*cg+2*s_,2)}, v{RA+cg} offset:{s_*1024}")
    for cg in range(8):
        a(f"s_waitcnt lgkmcnt({(7-cg)*2})")
        a(f"buffer_store_dwordx4 {v(D+4*cg,4)}, v{T+9}, {SWS}, s10 offen{SC}")
        if cg < 7: a(f"s_add_u32 s10, s10, {16*4096}")
    a.end()

def wof_role(a):
    SX = "s[52:55]"
    T = 2; RA = 16; D = 32
    a.label("K1_WOT")
    a("s_mul_i32 s7, s3, 13312")
    srd(a, 52, 20, 640 * 1280)
    a("s_mul_i32 s5, s4, 205")
    a("s_lshr_b32 s5, s5, 10")
    a("s_mul_i32 s6, s5, 5")
    a("s_sub_u32 s6, s4, s6")
    a(f"s_mul_i32 s8, s5, {40*1280}")
    a("s_lshl_b32 s9, s6, 8")
    a("s_add_u32 s8, s8, s9")
    a(f"v_lshrrev_b32 v{T}, 4, v0")
    a(f"v_and_b32 v{T+1}, 15, v0")
    a(f"v_lshlrev_b32 v{T+2}, 2, v{T}")
    a(f"v_xor_b32 v{T+2}, v{T+2}, v{T+1}")
    a(f"v_mul_u32_u24 v{T+3}, 1280, v{T}")
    a(f"v_lshl_add_u32 v{T+4}, v{T+2}, 4, v{T+3}")
    for e in range(10):
        a(f"s_add_u32 m0, s7, {e*1024}")
        a(f"s_add_u32 s10, s8, {e*4*1280}")
        a(f"buffer_load_dwordx4 v{T+4}, {SX}, s10 offen lds")
    a(f"v_bfe_u32 v{T+6}, v0, 2, 2")
    a(f"v_lshlrev_b32 v{T+7}, 8, v{T+6}")
    a(f"v_and_b32 v{T+8}, 3, v0")
    a(f"v_lshl_add_u32 v{T+7}, v{T+8}, 3, v{T+7}")
    a(f"v_bfe_u32 v{T+8}, v0, 4, 1")
    a(f"v_lshl_add_u32 v{T+7}, v{T+8}, 5, v{T+7}")
    a(f"v_lshrrev_b32 v{T+8}, 5, v0")
    a(f"v_xor_b32 v{T+8}, v{T+8}, v{T+6}")
    a(f"v_lshl_add_u32 v{T+7}, v{T+8}, 6, v{T+7}")
    a(f"v_xor_b32 v{RA+1}, 128, v{T+7}")
    a(f"v_add_u32 v{RA}, s7, v{T+7}")
    a(f"v_add_u32 v{RA+1}, s7, v{RA+1}")
    a("s_lshl_b32 s11, s6, 3")
    for cs in range(2):
        a(f"v_add_u32 v{T+10}, s11, v{T}")
        if cs: a(f"v_add_u32 v{T+10}, 4, v{T+10}")
        a(f"v_mul_u32_u24 v{T+11}, 205, v{T+10}")
        a(f"v_lshrrev_b32 v{T+11}, 10, v{T+11}")
        a(f"v_mul_u32_u24 v{T+11}, 95, v{T+11}")
        a(f"v_add_u32 v{T+10}, v{T+10}, v{T+11}")
        a(f"v_lshlrev_b32 v{T+10}, 10, v{T+10}")
        a(f"v_lshl_add_u32 v{RA+2+cs}, v{T+1}, 4, v{T+10}")
    a("s_lshr_b32 s9, s5, 2")
    a("s_mul_i32 s9, s9, 25600")
    a(f"s_add_u32 s9, s9, {WOF}")
    a("s_and_b32 s12, s5, 3")
    a("s_lshl_b32 s13, s12, 8")
    a("s_add_u32 s13, s13, s9")
    a("s_add_u32 s13, s13, 20480")
    a("s_mul_i32 s12, s12, 5120")
    a("s_add_u32 s9, s9, s12")
    a("s_waitcnt vmcnt(0)")
    rows = [(0, 8), (4, 12), (20, 28), (24, 32), (16, 36)]
    for gi in range(5):
        for cs in range(2):
            for s_ in range(2):
                a(f"ds_read_b64_tr_b16 {v(D+(gi*2+cs)*4+2*s_,2)}, v{RA+cs} offset:{rows[gi][s_]*256}")
        if gi == 2: a("s_waitcnt lgkmcnt(4)")
    a("s_waitcnt lgkmcnt(0)")
    for gi in range(5):
        for cs in range(2):
            a(f"buffer_store_dwordx4 {v(D+(gi*2+cs)*4,4)}, v{RA+2+cs}, {SWS}, s{9 if gi < 4 else 13} offen offset:{gi*256 if gi < 4 else 0}{SC}")
    fin(a)

LAUNCH = "; @launch kernel=k1_kernel grid=(512,1,1) block=(512,1,1) lds=81920"
NX = 3; NW = 4; IL = 0
def k1(a, sc="", scq="", pf=0, only="", ldm="", nx=3, nw=4, gp=0, il=1, ap=0):
    global SC, SCQ, PF, LDM, NX, NW, IL
    IL = il
    NX = nx; NW = nw
    LDM = ldm
    SC = sc; SCQ = scq; PF = pf
    kernel_header(a, "k1_kernel")
    a(f"s_cmp_ge_u32 s2, {240 if only == 'gemm' else 512}")
    a("s_cbranch_scc1 K1_EXIT")
    if only == "aux":
        a(f"s_cmp_lt_u32 s2, 240")
        a("s_cbranch_scc1 K1_EXIT")
    a.tstart()
    common_prologue(a)
    a("s_cmp_ge_u32 s2, 240")
    a("s_cbranch_scc1 K1_AUX")
    if gp: a(f"s_setprio {gp}")
    gemm_role(a)
    a.label("K1_AUX")
    if ap: a(f"s_setprio {ap}")
    a("s_cmp_ge_u32 s3, 6")
    a("s_cbranch_scc1 K1_EXIT")
    a("s_cmp_lt_u32 s2, 256")
    a("s_cbranch_scc1 K1_AUXA")
    a("s_cmp_ge_u32 s2, 496")
    a("s_cbranch_scc1 K1_AUXC")
    a("s_cmp_ge_u32 s3, 4")
    a("s_cbranch_scc1 K1_EXIT")
    aux_prologue(a)
    a("s_sub_u32 s5, s2, 256")
    a("s_lshl_b32 s4, s5, 1")
    a("s_add_u32 s4, s4, s3")
    a("s_cmp_lt_u32 s3, 2")
    a("s_cbranch_scc1 K1_KGEN")
    a("s_cmp_eq_u32 s3, 3")
    a("s_cbranch_scc1 K1_AUXB3")
    a("s_add_u32 s4, s5, 480")
    a("s_cmp_lt_u32 s5, 160")
    a("s_cbranch_scc1 K1_KGEN")
    a("s_sub_u32 s4, s5, 160")
    a("s_branch K1_TRANS")
    a.label("K1_AUXB3")
    a("s_add_u32 s4, s5, 80")
    a("s_cmp_lt_u32 s5, 192")
    a("s_cbranch_scc1 K1_TRANS")
    a("s_endpgm ")
    a.label("K1_AUXA")
    aux_prologue(a)
    a("s_sub_u32 s4, s2, 240")
    a("s_mul_i32 s4, s4, 6")
    a("s_add_u32 s4, s4, s3")
    a("s_cmp_lt_u32 s4, 64")
    a("s_cbranch_scc1 K1_GATE")
    a("s_sub_u32 s4, s4, 64")
    a("s_branch K1_WOT")
    a.label("K1_AUXC")
    aux_prologue(a)
    a("s_lshl_b32 s4, s2, 3")
    a("s_add_u32 s4, s4, s3")
    a("s_cmp_lg_u32 s4, 4088")
    a("s_cbranch_scc1 K1_NOZ")
    for i in range(4): a(f"v_mov_b32 v{4+i}, 0")
    a("v_lshlrev_b32 v2, 4, v0")
    a(f"s_mov_b32 s4, {FL}")
    a(f"buffer_store_dwordx4 v[4:7], v2, {SWS}, s4 offen sc1")
    a.label("K1_NOZ")
    a("s_sub_u32 s4, s2, 496")
    a("s_mul_i32 s4, s4, 6")
    a("s_add_u32 s4, s4, s3")
    a("s_add_u32 s4, s4, 32")
    a("s_cmp_lt_u32 s4, 80")
    a("s_cbranch_scc1 K1_WOT")
    a("s_add_u32 s4, s4, 192")
    a("s_branch K1_TRANS")
    a.label("K1_GATE"); gate_role(a)
    a.label("K1_KGEN")
    if 'K' in only: a("s_endpgm ")
    kgen_role(a)
    a.label("K1_TRANS")
    if 'T' in only: a("s_endpgm ")
    trans_role(a)
    a.label("K1_EXIT"); a("s_endpgm ")
    kernel_desc(a, "k1_kernel", 128)
```

```python
from asmlib import *
from layout import *
import struct, math

def f2u(x): return struct.unpack("<I", struct.pack("<f", x))[0]

def srd(a, d, ptr, size):
    a(f"s_mov_b32 s{d}, s{ptr}")
    a(f"s_and_b32 s{d+1}, s{ptr+1}, 0xffff")
    a(f"s_mov_b32 s{d+2}, {size}")
    a(f"s_mov_b32 s{d+3}, 0x20000")

def common_prologue(a):
    a("s_load_dwordx16 s[16:31], s[0:1], 0")
    a("s_load_dwordx16 s[32:47], s[0:1], 64")
    a("v_lshrrev_b32 v1, 6, v0")
    a("v_and_b32 v0, 63, v0")
    a("v_readfirstlane_b32 s3, v1")

def aux_prologue(a):
    a("s_waitcnt lgkmcnt(0)")
    a.stamp(7)
    srd(a, 48, 46, WS_SIZE)

SWS = "s[48:51]"
FUSED = 0
HSK = 163776
def fin(a):
    if FUSED:
        a("s_mov_b64 exec, -1")
        a("s_branch P2")
    else: a.end()

def gemm_role(a):
    a("s_and_b32 s4, s2, 7")
    a("s_lshr_b32 s5, s2, 3")
    a("s_and_b32 s6, s4, 1")
    a("s_mul_i32 s6, s6, 30")
    a("s_add_u32 s6, s6, s5")
    a("s_lshr_b32 s7, s6, 2")
    a("s_and_b32 s6, s6, 3")
    a("s_lshr_b32 s63, s4, 1")
    a("s_lshl_b32 s63, s63, 2")
    a("s_add_u32 s8, s63, s6")
    T = 32
    a("s_cmp_lt_u32 s3, 4")
    a("s_cbranch_scc1 K1_CONS")
    LO = 4
    if ROT:
        a("s_and_b32 s58, s4, 1")
        a("s_mul_i32 s58, s58, 7")
        a("s_sub_u32 s58, s7, s58")
        a("s_mul_i32 s58, s58, 5")
        a("s_lshr_b32 s58, s58, 2")
        a("s_mul_i32 s59, s6, 5")
        a("s_add_u32 s59, s59, 1")
        a("s_lshr_b32 s59, s59, 1")
        a("s_add_u32 s13, s58, s59")
        a("s_sub_u32 s58, s13, 10")
        a("s_cmp_ge_u32 s13, 10")
        a("s_cselect_b32 s13, s58, s13")
        a("s_lshl_b32 s58, s13, 1")
        a("s_sub_u32 s58, 20, s58")
    a(f"v_lshrrev_b32 v{T+1}, 4, v0")
    a("s_and_b32 s11, s3, 1")
    a("s_lshl_b32 s12, s11, 12")
    a("s_cmp_ge_u32 s3, 6")
    a("s_cbranch_scc1 K1_LDW")
    a(f"v_lshrrev_b32 v{T}, 3, v0")
    a(f"v_mul_u32_u24 v{T}, 1280, v{T}")
    a(f"v_and_b32 v{T+2}, 7, v0")
    a(f"v_xor_b32 v{T+2}, v{T+2}, v{T+1}")
    a(f"v_lshl_add_u32 v{LO}, v{T+2}, 4, v{T}")
    a(f"v_xor_b32 v{T+2}, 4, v{T+2}")
    a(f"v_lshl_add_u32 v{LO+1}, v{T+2}, 4, v{T}")
    a(f"v_add_u32 v{LO+1}, {10240-1024}, v{LO+1}")
    a(f"v_add_u32 v{LO+2}, {2*(10240-1024)}, v{LO}")
    a(f"v_add_u32 v{LO+3}, {2*(10240-1024)}, v{LO+1}")
    a(f"s_mul_i32 s9, s8, {128*1280}")
    a(f"s_mul_i32 s11, s11, {32*1280}")
    a("s_add_u32 s9, s9, s11")
    a(f"s_mov_b32 s10, {64*1280}")
    a(f"s_mov_b32 s11, {(128 - 64*1280) & 0xffffffff}")
    a(f"s_mov_b32 s60, {NX*16384}")
    a(f"s_mov_b32 s61, {NX*16384}")
    a(f"s_mov_b32 s15, {2*NX-2}")
    a(f"s_mov_b32 s62, {20-(2*NX-2)}")
    a("s_mov_b32 s56, -2"); a("s_mov_b32 s57, 4")
    if ROT:
        a("s_lshl_b32 s13, s13, 7")
        a("s_add_u32 s9, s9, s13")
        a("s_mov_b32 s59, 1280")
    a("s_waitcnt lgkmcnt(0)")
    srd(a, 52, 16, 2048 * 1280)
    a("s_branch K1_LD0")
    a.label("K1_LDW")
    a(f"v_mul_u32_u24 v{T}, 3840, v{T+1}")
    a(f"v_and_b32 v{T+2}, 15, v0")
    a(f"v_lshlrev_b32 v{T+3}, 2, v{T+1}")
    a(f"v_xor_b32 v{T+2}, v{T+2}, v{T+3}")
    a(f"v_lshl_add_u32 v{LO}, v{T+2}, 4, v{T}")
    for e in range(1, 4): a(f"v_add_u32 v{LO+e}, {e*(15360-1024)}, v{LO}")
    a("s_lshl_b32 s9, s7, 8")
    a(f"s_mul_i32 s11, s11, {4*15360}")
    a("s_add_u32 s9, s9, s11")
    a(f"s_mov_b32 s10, {32*3840}")
    a(f"s_mov_b32 s11, {32*3840}")
    a(f"s_add_u32 s12, s12, {NX*16384}")
    a(f"s_mov_b32 s60, {NX*16384+NW*8192}")
    a(f"s_mov_b32 s61, {NW*8192}")
    a(f"s_mov_b32 s15, {NW-1}")
    a(f"s_mov_b32 s62, {20-(NW-1)}")
    a("s_mov_b32 s56, -1"); a("s_mov_b32 s57, 3")
    if ROT:
        a(f"s_mul_i32 s13, s13, {64*3840}")
        a("s_add_u32 s9, s9, s13")
        a(f"s_mov_b32 s59, {640*3840}")
    a("s_waitcnt lgkmcnt(0)")
    srd(a, 52, 18, 640 * 3840)
    def issue():
        a("s_mov_b32 m0, s12")
        a("s_add_u32 s12, s12, 8192")
        for e in range(4): a(f"buffer_load_dwordx4 v{LO+e}, s[52:55], s9 offen offset:{e*1024}{LDM} lds")
        a("s_add_u32 s9, s9, s10")
        if ROT:
            a("s_sub_u32 s58, s58, 1")
            a("s_cmp_eq_u32 s58, 0")
            a("s_cselect_b32 s14, s59, 0")
            a("s_sub_u32 s9, s9, s14")
        a("s_mov_b32 s14, s10")
        a("s_mov_b32 s10, s11")
        a("s_mov_b32 s11, s14")
        a("s_sub_u32 s14, s12, s61")
        a("s_cmp_ge_u32 s12, s60")
        a("s_cselect_b32 s12, s14, s12")
    a.label("K1_LD0")
    if FUSED:
        a("s_mov_b32 s13, s15")
        a(f"v_mov_b32 v{T}, {HSK}")
        a("s_sub_u32 s14, s3, 4")
        a("s_lshl_b32 s14, s14, 2")
        a(f"v_add_u32 v{T+1}, s14, v{T}")
        a.label("K1_LD0F")
    issue()
    a("s_sub_u32 s15, s15, 1")
    a("s_cmp_lg_u32 s15, 0")
    a(f"s_cbranch_scc1 K1_LD0{'F' if FUSED else ''}")
    a.stamp(0)
    if FUSED:
        a("s_barrier")
        def freemin():
            a(f"v_min3_u32 v{T+4}, v{T+4}, v{T+5}, v{T+6}")
            a(f"v_min_u32 v{T+4}, v{T+4}, v{T+7}")
            a(f"v_readfirstlane_b32 s16, v{T+4}")
        a.label("K1_LD1")
        a(f"ds_read_b128 {v(T+4,4)}, v{T} offset:16")
        a("s_sub_u32 s14, s13, 2")
        a("s_and_b32 s14, s14, s56")
        a(f"v_mov_b32 v{T+2}, s14")
        a("s_and_b32 s17, s13, s56")
        a("s_sub_u32 s17, s17, s57")
        a("s_waitcnt vmcnt(8) lgkmcnt(0)")
        a(f"ds_write_b32 v{T+1}, v{T+2}")
        freemin()
        a("s_cmp_ge_u32 s16, s17")
        a("s_cbranch_scc1 K1_LDGO")
        a.label("K1_LDP")
        a(f"ds_read_b128 {v(T+4,4)}, v{T} offset:16")
        a("s_waitcnt lgkmcnt(0)")
        freemin()
        a("s_cmp_lt_u32 s16, s17")
        a("s_cbranch_scc1 K1_LDP")
        a.label("K1_LDGO")
        issue()
        a("s_add_u32 s13, s13, 1")
        a("s_cmp_lg_u32 s13, 20")
        a("s_cbranch_scc1 K1_LD1")
        for n, val in ((8, 18), (4, 19), (0, 20)):
            a(f"s_and_b32 s14, {val}, s56")
            a(f"v_mov_b32 v{T+2}, s14")
            a(f"s_waitcnt vmcnt({n})")
            a(f"ds_write_b32 v{T+1}, v{T+2}")
        a.stamp(1)
        fin(a)
    else:
        a("s_cmp_ge_u32 s3, 6")
        a("s_cbranch_scc1 K1_LDW1")
        for nm, fl in (("X", 2*NX-4), ("W", NW-2)):
            if nm == "W": a.label("K1_LDW1")
            a(f"s_waitcnt vmcnt({4*fl})")
            a("s_barrier")
            a.stamp(1)
            a.label(f"K1_LD1{nm}")
            issue()
            a("s_sub_u32 s62, s62, 1")
            a("s_cmp_lg_u32 s62, 0")
            a(f"s_waitcnt vmcnt({4*fl})")
            a("s_barrier")
            a(f"s_cbranch_scc1 K1_LD1{nm}")
            for n in range(fl-1, -1, -1):
                a(f"s_waitcnt vmcnt({4*n})")
                a("s_barrier")
            a.end()
    a.label("K1_CONS")
    XA = 12; XC = 16; WA = 20; WC = 22; EA = 24
    XF = 32; WF = 48; ACC = 64; PFO = 5
    def pf():
        if not PF: return
        a(f"buffer_load_dword v4, v{PFO}, s[52:55], s58 offen")
        a("s_add_u32 s58, s58, s57")
    if PF:
        a("s_lshr_b32 s59, s3, 1")
        a("s_add_u32 s59, s59, 1")
        a(f"v_lshrrev_b32 v{T}, 1, v0")
        a(f"v_and_b32 v{T+1}, 1, v0")
        a("s_bitcmp1_b32 s3, 0")
        a("s_cbranch_scc1 K1_PFX")
        a(f"v_mul_u32_u24 v{T}, 3840, v{T}")
        a(f"v_lshl_add_u32 v{PFO}, v{T+1}, 7, v{T}")
        a("s_lshl_b32 s58, s59, 2")
        a("s_add_u32 s58, s58, s6")
        a(f"s_mul_i32 s58, s58, {32*3840}")
        a("s_lshl_b32 s57, s7, 8")
        a("s_add_u32 s58, s58, s57")
        a(f"s_mov_b32 s57, {256*3840}")
        a("s_waitcnt lgkmcnt(0)")
        srd(a, 52, 18, 640 * 3840)
        a("s_branch K1_PFGO")
        a.label("K1_PFX")
        a(f"v_and_b32 v{T}, 15, v{T}")
        a(f"v_mul_u32_u24 v{T}, 1280, v{T}")
        a(f"v_lshl_add_u32 v{PFO}, v{T+1}, 7, v{T}")
        a("s_and_b32 s57, s4, 1")
        a("s_mul_i32 s57, s57, 7")
        a("s_sub_u32 s57, s7, s57")
        a("s_lshl_b32 s58, s8, 3")
        a("s_add_u32 s58, s58, s57")
        a(f"s_mul_i32 s58, s58, {16*1280}")
        a("s_lshl_b32 s57, s59, 8")
        a("s_add_u32 s58, s58, s57")
        a("s_mov_b32 s57, 512")
        a("s_waitcnt lgkmcnt(0)")
        srd(a, 52, 16, 2048 * 1280)
        a.label("K1_PFGO")
        pf()
        if PF == 3: pf()
    a("s_lshr_b32 s13, s3, 1")
    a("s_and_b32 s14, s3, 1")
    a(f"v_and_b32 v{T}, 31, v0")
    a(f"v_lshrrev_b32 v{T+1}, 5, v0")
    a(f"v_bfe_u32 v{T+2}, v0, 1, 3")
    a(f"v_xor_b32 v{T+2}, v{T+2}, v{T+1}")
    a(f"v_lshlrev_b32 v{T+2}, 4, v{T+2}")
    a(f"v_lshl_add_u32 v{T+2}, v{T}, 7, v{T+2}")
    a("s_lshl_b32 s12, s13, 13")
    a(f"v_add_u32 v{XA}, s12, v{T+2}")
    for ks in range(1, 4):
        a(f"v_xor_b32 v{XA+ks}, {ks*32}, v{XA}")
    for ks in range(4): a(f"v_mov_b32 v{XC+ks}, v{XA+ks}")
    a(f"v_bfe_u32 v{T+2}, v0, 2, 2")
    a(f"v_lshl_add_u32 v{T+3}, v{T+1}, 3, v{T+2}")
    a(f"v_lshlrev_b32 v{T+3}, 8, v{T+3}")
    a(f"v_and_b32 v{T+4}, 3, v0")
    a(f"v_lshl_add_u32 v{T+3}, v{T+4}, 3, v{T+3}")
    a(f"v_bfe_u32 v{T+4}, v0, 4, 1")
    a(f"v_lshl_add_u32 v{T+3}, v{T+4}, 5, v{T+3}")
    a(f"v_add_u32 v{T+3}, {NX*16384}, v{T+3}")
    a("s_lshl_b32 s12, s14, 1")
    a(f"v_xor_b32 v{T+4}, s12, v{T+2}")
    a(f"v_lshl_add_u32 v{WA}, v{T+4}, 6, v{T+3}")
    a(f"v_xor_b32 v{WA+1}, 64, v{WA}")
    for i in range(2): a(f"v_mov_b32 v{WC+i}, v{WA+i}")
    a("s_mov_b32 s59, 0")
    for i in range(64): a(f"v_mov_b32 v{ACC+i}, 0")
    a("s_lshl_b32 s15, s8, 2")
    a("s_lshl_b32 s12, s13, 1")
    a("s_add_u32 s15, s15, s12")
    a("s_mul_i32 s15, s15, 1280")
    a("s_waitcnt lgkmcnt(0)")
    srd(a, 48, 46, WS_SIZE)
    a("s_mov_b32 s17, 0")
    a("s_cmp_ge_u32 s7, 10")
    a("s_cbranch_scc1 K1_GEMM_V")

    def reads(c, ks):
        buf = ks
        for rb in range(2):
            a(f"ds_read_b128 {v(XF+buf*8+rb*4,4)}, v{XC + 2*(c&1) + ks} offset:{rb*4096}")
        for cb in range(2):
            for s_ in range(2):
                a(f"ds_read_b64_tr_b16 {v(WF+buf*8+cb*4+s_*2,2)}, v{WC+cb} offset:{ks*4096 + s_*1024}")
    def mfmas(orient, buf):
        for rb in range(2):
            for cb in range(2):
                acc = v(ACC + (rb * 2 + cb) * 16, 16)
                x = v(XF + buf * 8 + rb * 4, 4); w = v(WF + buf * 8 + cb * 4, 4)
                A, B = (w, x) if orient == "qk" else (x, w)
                a(f"v_mfma_f32_32x32x16_bf16 {acc}, {A}, {B}, {acc}")
    HW = 8; HA = 6; HF = 7
    def fullchk():
        a(f"v_min3_u32 v{HW}, v{HW}, v{HW+1}, v{HW+2}")
        a(f"v_min_u32 v{HW}, v{HW}, v{HW+3}")
        a(f"v_cmp_gt_u32 vcc, s18, v{HW}")
    def poll(lab):
        a.label(lab)
        a(f"ds_read_b128 {v(HW,4)}, v{HA}")
        a("s_waitcnt lgkmcnt(0)")
        fullchk()
        a(f"s_cbranch_vccnz {lab}")
    def body(orient):
        a.stamp(0)
        if FUSED:
            a(f"v_mov_b32 v{HA}, {HSK}")
            a("s_lshl_b32 s18, s3, 2")
            a(f"v_add_u32 v{HF}, s18, v{HA}")
            a("v_mov_b32 v5, 0")
            a("s_mov_b32 s18, 1")
        a("s_barrier")
        if FUSED: poll(f"K1_P0_{orient}")
        a.stamp(1)
        if IL and not FUSED:
            def rx(c, ks, rb): a(f"ds_read_b128 {v(XF+ks*8+rb*4,4)}, v{XC + 2*(c&1) + ks} offset:{rb*4096}")
            def rw(ks, cb):
                for s_ in range(2): a(f"ds_read_b64_tr_b16 {v(WF+ks*8+cb*4+s_*2,2)}, v{WC+cb} offset:{ks*4096 + s_*1024}")
            def m(buf, rb, cb):
                acc = v(ACC + (rb * 2 + cb) * 16, 16)
                x = v(XF + buf * 8 + rb * 4, 4); w = v(WF + buf * 8 + cb * 4, 4)
                A, B = (w, x) if orient == "qk" else (x, w)
                a(f"v_mfma_f32_32x32x16_bf16 {acc}, {A}, {B}, {acc}")
            reads(0, 0); reads(0, 1)
            a("s_mov_b32 s16, 10")
            a("s_waitcnt lgkmcnt(6)")
            a.label(f"K1_GL_{orient}")
            for c in range(2):
                m(0, 0, 0)
                a("s_add_u32 s59, s59, 8192")
                a(f"s_cmp_eq_u32 s59, {NW*8192}")
                a("s_cselect_b32 s59, 0, s59")
                for i in range(2): a(f"v_add_u32 v{WC+i}, s59, v{WA+i}")
                if c & 1:
                    a("s_add_u32 s17, s17, 16384")
                    a(f"s_cmp_eq_u32 s17, {NX*16384}")
                    a("s_cselect_b32 s17, 0, s17")
                    for ks in range(2): a(f"v_add_u32 v{XC+ks}, s17, v{XA+ks}")
                else:
                    for ks in range(2, 4): a(f"v_add_u32 v{XC+ks}, s17, v{XA+ks}")
                m(0, 0, 1)
                a("s_waitcnt lgkmcnt(0)")
                a("s_barrier")
                rx(c+1, 0, 0); m(0, 1, 0); rw(0, 0); m(0, 1, 1); rx(c+1, 0, 1); rw(0, 1)
                m(1, 0, 0)
                if c == 1:
                    a("s_sub_u32 s16, s16, 1")
                    a("s_cmp_lg_u32 s16, 0")
                m(1, 0, 1); rx(c+1, 1, 0); m(1, 1, 0); rw(1, 0); m(1, 1, 1); rx(c+1, 1, 1); rw(1, 1)
                a("s_waitcnt lgkmcnt(6)")
            a(f"s_cbranch_scc1 K1_GL_{orient}")
            a.stamp(2)
            return
        reads(0, 0)
        a("s_mov_b32 s16, 5")
        a.label(f"K1_GL_{orient}")
        if PF in (1, 2):
            a(f"s_cmp_lg_u32 s16, {6 - PF}")
            a(f"s_cbranch_scc1 K1_NPF_{orient}")
            pf()
            a.label(f"K1_NPF_{orient}")
        for c in range(4):
            if FUSED:
                a(f"ds_read_b128 {v(HW,4)}, v{HA}")
                a("s_add_u32 s18, s18, 1")
                a("s_min_u32 s18, s18, 20")
                a("v_add_u32 v5, 1, v5")
            reads(c, 1)
            if c & 1:
                a("s_add_u32 s17, s17, 16384")
                a(f"s_cmp_eq_u32 s17, {NX*16384}")
                a("s_cselect_b32 s17, 0, s17")
                for ks in range(4): a(f"v_add_u32 v{XC+ks}, s17, v{XA+ks}")
            a("s_add_u32 s59, s59, 8192")
            a(f"s_cmp_eq_u32 s59, {NW*8192}")
            a("s_cselect_b32 s59, 0, s59")
            for i in range(2): a(f"v_add_u32 v{WC+i}, s59, v{WA+i}")
            a("s_waitcnt lgkmcnt(6)")
            mfmas(orient, 0)
            if FUSED:
                fullchk()
                a("s_waitcnt lgkmcnt(0)")
                a(f"ds_write_b32 v{HF}, v5 offset:16")
                a(f"s_cbranch_vccnz K1_SL_{orient}{c}")
            else:
                a("s_waitcnt lgkmcnt(0)")
                a("s_barrier")
            reads(c + 1, 0)
            mfmas(orient, 1)
            if FUSED: a.label(f"K1_SD_{orient}{c}")
        a("s_sub_u32 s16, s16, 1")
        a("s_cmp_lg_u32 s16, 0")
        a(f"s_cbranch_scc1 K1_GL_{orient}")
        a.stamp(2)
    def slow(orient):
        if not FUSED: return
        for c in range(4):
            a.label(f"K1_SL_{orient}{c}")
            mfmas(orient, 1)
            poll(f"K1_PP_{orient}{c}")
            reads(c + 1, 0)
            a(f"s_branch K1_SD_{orient}{c}")

    a("s_lshl_b32 s12, s7, 4")
    a("s_lshl_b32 s60, s14, 3")
    a("s_add_u32 s12, s12, s60")
    a(f"v_add_u32 v{T+2}, s12, v{T+1}")
    a(f"v_lshlrev_b32 v{T+6}, 4, v{T}")
    a(f"v_lshl_add_u32 v{T+7}, v{T}, 3, 0")
    a(f"v_add_u32 v{T+7}, 1024, v{T+7}")
    a(f"s_mov_b32 s61, {HS}")
    a(f"s_add_u32 s63, s15, {HS}")
    for cb in range(2):
        for p in range(2):
            e = EA + cb * 2 + p
            mk = 36 + 2 * (cb * 2 + p)
            a(f"v_add_u32 v{T+3}, {4*cb+2*p}, v{T+2}")
            a(f"v_mul_u32_u24 v{T+4}, 205, v{T+3}")
            a(f"v_lshrrev_b32 v{T+4}, 10, v{T+4}")
            a(f"v_mul_u32_u24 v{T+5}, 5, v{T+4}")
            a(f"v_sub_u32 v{T+3}, v{T+3}, v{T+5}")
            a(f"v_lshlrev_b32 v{T+4}, 1, v{T+4}")
            a(f"v_cmp_lt_u32 vcc, 2, v{T+3}")
            a(f"v_subrev_u32 v{T+5}, 3, v{T+3}")
            a(f"v_cndmask_b32 v{T+5}, v{T+3}, v{T+5}, vcc")
            a(f"v_addc_co_u32 v{T+4}, vcc, 0, v{T+4}, vcc")
            a(f"v_cmp_eq_u32 s[{mk}:{mk+1}], 2, v{T+3}")
            a(f"v_lshl_add_u32 v{T+5}, v{T+5}, 9, v{T+6}")
            a(f"v_cndmask_b32 v{T+5}, v{T+5}, v{T+7}, s[{mk}:{mk+1}]")
            a(f"v_mad_u32_u24 v{e}, v{T+4}, s61, v{T+5}")
    qs = (20 ** -0.5) * math.log2(math.e)
    a(f"s_mov_b32 s62, {f2u(qs)}")
    a("s_cmp_ge_u32 s7, 5")
    a("s_cselect_b32 s62, 1.0, s62")
    body("qk")
    for rb in range(2):
        for cb in range(2):
            ac = ACC + (rb * 2 + cb) * 16
            for p in range(2):
                r = ac + p * 8
                mk = 36 + 2 * (cb * 2 + p)
                for i in range(0, 8, 2): a(f"v_pk_mul_f32 {v(r+i,2)}, {v(r+i,2)}, s[62:63] op_sel_hi:[1,0]")
                for i in range(4): a(f"v_cvt_pk_bf16_f32 v{r+i}, v{r+2*i}, v{r+2*i+1}")
                a(f"v_permlane32_swap_b32 v{r}, v{r+2}")
                a(f"v_permlane32_swap_b32 v{r+1}, v{r+3}")
                a(f"s_andn2_b64 exec, -1, s[{mk}:{mk+1}]")
                a(f"buffer_store_dwordx4 {v(r,4)}, v{EA+cb*2+p}, {SWS}, s15 offen offset:{rb*1280}{SC}")
                a(f"s_cmp_eq_u64 s[{mk}:{mk+1}], 0")
                a(f"s_cbranch_scc1 K1_NM{rb}{cb}{p}")
                a(f"s_mov_b64 exec, s[{mk}:{mk+1}]")
                a(f"buffer_store_dwordx2 {v(r,2)}, v{EA+cb*2+p}, {SWS}, s15 offen offset:{rb*1280}{SC}")
                a(f"buffer_store_dwordx2 {v(r+2,2)}, v{EA+cb*2+p}, {SWS}, s63 offen offset:{rb*1280}{SC}")
                a.label(f"K1_NM{rb}{cb}{p}")
                a("s_mov_b64 exec, -1")
    fin(a)
    slow("qk")
    a.label("K1_GEMM_V")
    a("s_sub_u32 s12, s7, 10")
    a("s_lshl_b32 s12, s12, 7")
    a("s_lshl_b32 s60, s14, 6")
    a("s_add_u32 s12, s12, s60")
    a(f"s_mov_b32 s61, {HS}")
    a(f"v_lshlrev_b32 v{T+6}, 4, v{T+1}")
    for cb in range(2):
        a(f"v_add_u32 v{T+3}, s12, v{T}")
        if cb: a(f"v_add_u32 v{T+3}, 32, v{T+3}")
        a(f"v_mul_u32_u24 v{T+4}, 3277, v{T+3}")
        a(f"v_lshrrev_b32 v{T+4}, 16, v{T+4}")
        a(f"v_mul_u32_u24 v{T+5}, 20, v{T+4}")
        a(f"v_sub_u32 v{T+3}, v{T+3}, v{T+5}")
        a(f"v_lshl_add_u32 v{T+5}, v{T+3}, 5, v{T+6}")
        a(f"v_mad_u32_u24 v{EA+cb}, v{T+4}, s61, v{T+5}")
    a(f"s_add_u32 s15, s15, {VF}")
    body("v")
    for rb in range(2):
        for cb in range(2):
            ac = ACC + (rb * 2 + cb) * 16
            for g in range(2):
                r = ac + g * 8
                for i in range(4): a(f"v_cvt_pk_bf16_f32 v{r+i}, v{r+2*i}, v{r+2*i+1}")
                a(f"buffer_store_dwordx4 {v(r,4)}, v{EA+cb}, {SWS}, s15 offen offset:{rb*1280+g*640}{SC}")
    fin(a)
    slow("v")

def gate_role(a):
    srd(a, 52, 16, 2048 * 1280)
    SX = "s[52:55]"
    G = 8; X = 32; ACC = 112; T = 2
    if FUSED: a.label("K1_GATE2")
    a(f"s_mul_i32 s5, s4, {32*1280}")
    a(f"v_and_b32 v{T}, 15, v0")
    a(f"v_lshlrev_b32 v{T+1}, 4, v{T}")
    for e in range(5):
        a(f"global_load_dwordx4 {v(G+4*e,4)}, v{T+1}, s[40:41] offset:{e*256}")
    a(f"v_lshrrev_b32 v{T+2}, 4, v0")
    a(f"v_mul_u32_u24 v{T+3}, 1280, v{T+2}")
    a(f"v_add_u32 v{T+3}, v{T+3}, v{T+1}")
    for grp in range(8):
        a(f"v_mov_b32 v{ACC+grp}, 0")
    def gl(grp):
        for e in range(5):
            a(f"buffer_load_dwordx4 {v(X+(grp&3)*20+e*4,4)}, v{T+3}, {SX}, s5 offen offset:{e*256}")
        if grp < 7: a(f"s_add_u32 s5, s5, {4*1280}")
    for grp in range(4): gl(grp)
    for grp in range(8):
        a(f"s_waitcnt vmcnt({min(3, 7-grp)*5})")
        for i in range(20):
            a(f"v_dot2c_f32_bf16 v{ACC+grp}, v{X+(grp&3)*20+i}, v{G+i}")
        if grp < 4: gl(grp + 4)
    for sh in (8, 4, 2, 1):
        for grp in range(8):
            a(f"v_add_f32_dpp v{ACC+grp}, v{ACC+grp}, v{ACC+grp} row_ror:{sh} row_mask:0xf bank_mask:0xf")
    for k in range(1, 8):
        a(f"v_cmp_eq_u32 vcc, {k}, v{T}")
        a(f"v_cndmask_b32 v{ACC}, v{ACC}, v{ACC+k}, vcc")
    R = ACC
    a(f"v_cvt_pk_bf16_f32 v{R}, v{R}, v{R}")
    a(f"v_lshlrev_b32 v{R}, 16, v{R}")
    a(f"v_mul_f32 v{R}, {f2u(-math.log2(math.e))}, v{R}")
    a(f"v_exp_f32 v{R}, v{R}")
    a(f"v_add_f32 v{R}, 1.0, v{R}")
    a(f"v_rcp_f32 v{R}, v{R}")
    a(f"v_cvt_pk_bf16_f32 v{R}, v{R}, v{R}")
    a(f"v_lshlrev_b32 v{R}, 16, v{R}")
    a(f"v_lshl_add_u32 v{T+3}, v{T}, 2, v{T+2}")
    a(f"v_lshlrev_b32 v{T+3}, 2, v{T+3}")
    a("s_lshl_b32 s5, s4, 7")
    a(f"s_add_u32 s5, s5, {GT}")
    a(f"v_cmp_gt_u32 vcc, 8, v{T}")
    a("s_and_saveexec_b64 s[6:7], vcc")
    a(f"buffer_store_dword v{R}, v{T+3}, {SWS}, s5 offen{SC}")
    if FUSED:
        a("s_mov_b64 exec, -1")
        a("s_add_u32 s4, s4, 3")
        a("s_cmp_lt_u32 s4, s60")
        a("s_cbranch_scc1 K1_GATE2")
    fin(a)

def cmul(a, d, x, y):
    a(f"v_pk_mul_f32 {v(d,2)}, {v(x,2)}, {v(y,2)} op_sel:[0,0] op_sel_hi:[0,1]")
    a(f"v_pk_fma_f32 {v(d,2)}, {v(x,2)}, {v(y,2)}, {v(d,2)} op_sel:[1,1,0] op_sel_hi:[1,0,1] neg_lo:[0,1,0]")

def cmul2(a, d, x, y):
    for o in (0, 2):
        a(f"v_pk_mul_f32 {v(d+o,2)}, {v(x+o,2)}, {v(y+o,2)} op_sel:[0,0] op_sel_hi:[0,1]")
    for o in (0, 2):
        a(f"v_pk_fma_f32 {v(d+o,2)}, {v(x+o,2)}, {v(y+o,2)}, {v(d+o,2)} op_sel:[1,1,0] op_sel_hi:[1,0,1] neg_lo:[0,1,0]")

def kgen_role(a):
    log2e = math.log2(math.e)
    a("s_lshl_b32 s5, s4, 8")
    T = 2
    P = 52
    DSK = 8
    a(f"v_lshl_add_u32 v{T}, v0, 2, s5")
    for i, pr in enumerate((24, 26, 28, 30, 32, 34)):
        a(f"global_load_dword v{P+i}, v{T}, s[{pr}:{pr+1}]")
    a("s_lshl_b32 s6, s4, 1")
    a(f"v_mov_b32 v{T+1}, s6")
    a(f"global_load_ushort v{P+6}, v{T+1}, s[36:37]")
    a(f"global_load_ushort v{DSK}, v{T+1}, s[38:39]")
    SL = 528
    if not FUSED: a("s_mul_i32 s7, s3, 13312")
    WRA = 9; RDA = 10; TB0 = 11; TB1 = 12; TB2 = 13
    a(f"v_lshl_add_u32 v{WRA}, v0, 3, s7")
    a(f"v_and_b32 v{T+2}, 15, v0")
    a(f"v_lshrrev_b32 v{T+3}, 4, v0")
    a(f"v_mul_u32_u24 v{RDA}, {SL}, v{T+2}")
    a(f"v_lshl_add_u32 v{RDA}, v{T+3}, 4, v{RDA}")
    a(f"v_add_u32 v{RDA}, s7, v{RDA}")
    a("s_add_u32 s8, s7, 8448")
    a(f"v_lshlrev_b32 v{TB0}, 4, v{T+2}")
    a(f"v_lshl_add_u32 v{TB0}, v{T+3}, 2, v{TB0}")
    a(f"v_lshl_add_u32 v{TB0}, v{TB0}, 2, s8")
    a(f"v_lshlrev_b32 v{T+4}, 3, v{T+2}")
    a(f"v_lshl_add_u32 v{T+4}, v{T+3}, 2, v{T+4}")
    a(f"v_add_u32 v{T+4}, 256, v{T+4}")
    a(f"v_lshlrev_b32 v{T+5}, 2, v{T+2}")
    a(f"v_lshl_add_u32 v{T+5}, v{T+3}, 6, v{T+5}")
    a(f"v_add_u32 v{T+5}, 256, v{T+5}")
    a(f"v_cmp_gt_u32 vcc, 32, v0")
    a(f"v_cndmask_b32 v{TB1}, v{T+5}, v{T+4}, vcc")
    a(f"v_lshl_add_u32 v{TB1}, v{TB1}, 2, s8")
    a(f"v_lshlrev_b32 v{T+4}, 1, v{T+2}")
    a(f"v_lshl_add_u32 v{T+4}, v{T+3}, 6, v{T+4}")
    a(f"v_add_u32 v{T+4}, 512, v{T+4}")
    a(f"v_mov_b32 v{T+5}, 704")
    a(f"v_cmp_ge_u32 vcc, 32, v0")
    a(f"v_cndmask_b32 v{TB2}, v{T+5}, v{T+4}, vcc")
    a(f"v_lshl_add_u32 v{TB2}, v{TB2}, 2, s8")
    if FUSED: a("s_barrier")
    a("s_waitcnt vmcnt(0)")
    a.stamp(0)
    DT = 14
    hi = struct.unpack("<f", struct.pack("<f", log2e))[0]; lo = log2e - hi
    a(f"v_lshlrev_b32 v{T}, 16, v{P+6}")
    a(f"s_mov_b32 s9, {f2u(hi)}")
    a(f"v_mul_f32 v{T+1}, s9, v{T}")
    a(f"v_fma_f32 v{T+2}, v{T}, s9, -v{T+1}")
    a(f"v_mov_b32 v{T+3}, {f2u(lo)}")
    a(f"v_fmac_f32 v{T+2}, v{T}, v{T+3}")
    a(f"v_exp_f32 v{T+1}, v{T+1}")
    a(f"v_mul_f32 v{T+2}, {f2u(math.log(2.0))}, v{T+2}")
    a(f"v_fma_f32 v{T+1}, v{T+1}, v{T+2}, v{T+1}")
    a(f"v_cvt_pk_bf16_f32 v{DT}, v{T+1}, v{T+1}")
    a(f"v_lshlrev_b32 v{DT}, 16, v{DT}")
    A_ = 16; B_ = 20; C_ = 24; W_ = 28
    for grp, (re_, im_) in ((A_, (P, P + 1)), (B_, (P + 2, P + 3)), (C_, (P + 4, P + 5))):
        a(f"v_lshlrev_b32 v{grp}, 16, v{re_}")
        a(f"v_lshlrev_b32 v{grp+1}, 16, v{im_}")
        a(f"v_and_b32 v{grp+2}, 0xffff0000, v{re_}")
        a(f"v_and_b32 v{grp+3}, 0xffff0000, v{im_}")
    for i in range(4):
        a(f"v_mul_f32 v{A_+i}, v{DT}, v{A_+i}")
        a(f"v_mul_f32 v{B_+i}, v{DT}, v{B_+i}")
    cmul2(a, W_, C_, B_)
    a(f"s_mov_b32 s10, {f2u(1.0/(2*math.pi))}")
    for o in (0, 2):
        a(f"v_mul_f32 v{A_+o}, s9, v{A_+o}")
        a(f"v_mul_f32 v{A_+o+1}, s10, v{A_+o+1}")
    Z1 = 32; Z16 = 36; Z256 = 40
    def base(dst, n):
        E = 44
        a(f"s_mov_b32 s11, {f2u(float(n))}")
        for o in (0, 2):
            if n != 1:
                a(f"v_mul_f32 v{E+o}, s11, v{A_+o}")
                a(f"v_mul_f32 v{E+o+1}, s11, v{A_+o+1}")
                a(f"v_fract_f32 v{E+o+1}, v{E+o+1}")
                a(f"v_exp_f32 v{E+o}, v{E+o}")
            else:
                a(f"v_fract_f32 v{E+o+1}, v{A_+o+1}")
                a(f"v_exp_f32 v{E+o}, v{A_+o}")
        for o in (0, 2):
            a(f"v_cos_f32 v{dst+o}, v{E+o+1}")
            a(f"v_sin_f32 v{dst+o+1}, v{E+o+1}")
        for o in (0, 2):
            a(f"v_pk_mul_f32 {v(dst+o,2)}, {v(dst+o,2)}, {v(E+o,2)} op_sel:[0,0] op_sel_hi:[1,0]")
    base(Z16, 16)
    PK = 2
    cnt = [0]
    def put(src, slot, neg=False):
        p = PK + 2 * (cnt[0] & 1); cnt[0] += 1
        n = "-" if neg else ""
        a(f"v_cvt_pk_bf16_f32 v{p}, v{src}, {n}v{src+1}")
        a(f"v_cvt_pk_bf16_f32 v{p+1}, v{src+2}, {n}v{src+3}")
        a(f"ds_write_b64 v{WRA}, {v(p,2)} offset:{slot*SL}")
    CA = 44; CB = 48
    put(W_, 0, True)
    cur = W_
    for j in range(1, 16):
        nxt = CA if cur != CA else CB
        cmul2(a, nxt, cur, Z16)
        put(nxt, j, True)
        cur = nxt
    RF = 52
    for s_ in range(8):
        a(f"ds_read_b128 {v(RF+4*s_,4)}, v{RDA} offset:{64*s_}")
    base(Z1, 1)
    base(Z256, 256)
    EV = 84
    ONE = 6
    a(f"v_mov_b32 v{ONE}, 0x3f80")
    a(f"v_mov_b32 v{ONE+1}, 0x3f80")
    a(f"ds_write_b64 v{WRA}, {v(ONE,2)} offset:0")
    put(Z1, 1)
    cur = Z1
    for j in range(2, 16):
        nxt = EV + 4 * (j // 2 - 1) if j % 2 == 0 else CA
        cmul2(a, nxt, cur, Z1)
        put(nxt, j)
        cur = nxt
    LF = 112
    D = 16
    def tile(t):
        for s_ in range(4):
            a(f"ds_read_b128 {v(LF+4*s_,4)}, v{RDA} offset:{64*s_}")
    def tile_mfma(t):
        for s_ in range(4):
            a(f"s_waitcnt lgkmcnt({3-s_})")
            a(f"v_mfma_f32_16x16x32_bf16 {v(D+4*t,4)}, {v(LF+4*s_,4)}, {v(RF+4*s_,4)}, {'0' if s_==0 else v(D+4*t,4)}")
        for s_ in range(4, 8):
            a(f"ds_read_b128 {v(LF+4*(s_-4),4)}, v{RDA} offset:{64*s_}")
        for s_ in range(4, 8):
            a(f"s_waitcnt lgkmcnt({7-s_})")
            a(f"v_mfma_f32_16x16x32_bf16 {v(D+4*t,4)}, {v(LF+4*(s_-4),4)}, {v(RF+4*s_,4)}, {v(D+4*t,4)}")
    ev = lambda j: EV + 4 * (j // 2 - 1)
    tile(0)
    Z512 = 32; Z768 = 36
    cmul2(a, Z512, Z256, Z256)
    cmul2(a, Z768, Z512, Z256)
    tile_mfma(0)
    put(Z256, 0)
    for m in range(1, 8):
        cmul2(a, CA, Z256, ev(2 * m)); put(CA, m)
    for k, zb in ((8, Z512), (12, Z768)):
        put(zb, k)
        for i in range(1, 4):
            cmul2(a, CA, zb, ev(4 * i)); put(CA, k + i)
    tile(1)
    Z1024 = 88;
    cmul2(a, CB, Z512, Z512)
    tile_mfma(1)
    cur = CB
    oth = {CB: 36, 36: CB}
    for aa in range(4):
        put(cur, 2 * aa)
        cmul2(a, CA, cur, ev(8)); put(CA, 2 * aa + 1)
        nxt = oth[cur]
        cmul2(a, nxt, cur, Z256)
        cur = nxt
    put(cur, 8)
    tile(2)
    tile_mfma(2)
    a.stamp(1)
    a(f"v_lshlrev_b32 v{DSK}, 16, v{DSK}")
    a("s_mov_b64 exec, 1")
    a(f"v_add_f32 v{D}, v{D}, v{DSK}")
    a("s_mov_b64 exec, -1")
    TP = 52
    for t in range(3):
        for r in range(4):
            a(f"v_cvt_pk_bf16_f32 v{TP+4*t+r}, v{D+4*t+r}, v{D+4*t+r}")
    a(f"ds_write_b128 v{TB0}, {v(TP,4)}")
    a(f"ds_write_b128 v{TB1}, {v(TP+4,4)}")
    a(f"ds_write_b64 v{TB2}, {v(TP+8,2)}")
    a(f"ds_write_b64 v{TB2}, {v(TP+10,2)} offset:128")
    RA = 2
    a(f"v_lshlrev_b32 v{RA}, 3, v0")
    a(f"v_lshlrev_b32 v{RA+1}, 2, v0")
    a(f"v_add_u32 v{RA+2}, 128, v{RA+1}")
    a(f"v_cmp_gt_u32 vcc, 32, v0")
    a(f"v_cndmask_b32 v{RA}, v{RA+2}, v{RA}, vcc")
    a(f"v_lshl_add_u32 v{RA}, v{RA}, 2, s8")
    a(f"v_lshl_add_u32 v{RA+2}, v0, 3, s8")
    a(f"v_add_u32 v{RA+1}, s8, v{RA+1}")
    E0 = 64; E1 = 72; E2 = 76; E3 = 78
    a(f"ds_read_b128 {v(E0,4)}, v{RA}")
    a(f"ds_read_b128 {v(E0+4,4)}, v{RA} offset:16")
    a(f"ds_read_b64 {v(E1,2)}, v{RA+2} offset:{384*4}")
    a(f"ds_read_b32 v{E1+2}, v{RA+2} offset:{384*4+8}")
    a(f"ds_read_b32 v{E2}, v{RA+1} offset:{512*4}")
    a(f"ds_read_b32 v{E2+1}, v{RA+1} offset:{513*4}")
    a(f"ds_read_b32 v{E3}, v{RA+1} offset:{576*4}")
    a(f"ds_read_b32 v{E3+1}, v{RA+1} offset:{577*4}")
    a(f"v_lshlrev_b32 v{RA+3}, 4, v0")
    a(f"v_sub_u32 v{RA+3}, {63*16}, v{RA+3}")
    if FUSED:
        a(f"v_add_u32 v{RA+3}, s7, v{RA+3}")
    else:
        a(f"s_mul_i32 s12, s4, {KCS}")
        a(f"s_add_u32 s12, s12, {KC}")
    def kst(r, off):
        if FUSED: a(f"ds_write_b128 v{RA+3}, {v(r,4)} offset:{off}")
        else: a(f"buffer_store_dwordx4 {v(r,4)}, v{RA+3}, {SWS}, s12 offen offset:{off}{SC}")
    a("s_mov_b32 s13, 0xffff")
    a(f"v_and_b32 v{RA+4}, 1, v0")
    a(f"v_sub_u32 v{RA+4}, 0, v{RA+4}")
    a(f"v_or_b32 v{RA+4}, 0xffff, v{RA+4}")
    O = 84
    a("s_waitcnt lgkmcnt(0)")
    a(f"v_bfi_b32 v{O}, s13, v{E0+4}, v{E0+3}")
    a(f"v_mov_b32 v{O+1}, v{E0+2}")
    a(f"v_bfi_b32 v{O+2}, s13, v{E0+2}, v{E0+1}")
    a(f"v_mov_b32 v{O+3}, v{E0}")
    a("s_mov_b64 exec, 0xffffffff")
    for i in range(4):
        a(f"v_bfi_b32 v{O+i}, s13, v{E0+7-2*i}, v{E0+6-2*i}")
    a("s_mov_b64 exec, -1")
    kst(O, 192*16)
    a(f"v_mov_b32 v{O+4}, v{E1+2}")
    a(f"v_mov_b32 v{O+5}, v{E1+1}")
    a(f"v_bfi_b32 v{O+6}, s13, v{E1+1}, v{E1}")
    a(f"v_mov_b32 v{O+7}, v{E1}")
    kst(O+4, 128*16)
    for u, E in enumerate((E2, E3)):
        o = O + 8 + 4 * u
        a(f"v_mov_b32 v{o}, v{E+1}")
        a(f"v_bfi_b32 v{o+1}, v{RA+4}, v{E+1}, v{E}")
        a(f"v_mov_b32 v{o+2}, v{E}")
        a(f"v_mov_b32 v{o+3}, v{E}")
        kst(o, (64-64*u)*16)
    for i in range(4): a(f"v_mov_b32 v{O+16+i}, 0")
    if FUSED:
        a(f"v_lshl_add_u32 v{RA}, v0, 4, s7")
        a("s_mov_b64 exec, 0xf")
        for c in range(4): a(f"ds_write_b128 v{RA}, {v(O+16,4)} offset:{c*4160 + 4096}")
        a("s_mov_b64 exec, -1")
        for g in range(4):
            a(f"ds_read_b128 {v(16+8*g,4)}, v{RA} offset:{g*1024}")
            a(f"ds_read_b64 {v(20+8*g,2)}, v{RA} offset:{g*1024+16}")
        for g in range(4):
            d = 16 + 8*g; w = 52 + 12*(g & 1)
            if g == 0: a("s_waitcnt lgkmcnt(6)")
            if g == 1: a("s_waitcnt lgkmcnt(7)")
            if g == 2: a("s_waitcnt lgkmcnt(8)")
            if g == 3: a("s_waitcnt lgkmcnt(3)")
            for i in range(4): a(f"v_alignbit_b32 v{w+i}, v{d+i+1}, v{d+i}, 16")
            for i in range(4): a(f"v_mov_b32 v{w+4+i}, v{d+i+1}")
            for i in range(4): a(f"v_alignbit_b32 v{w+8+i}, v{d+i+2}, v{d+i+1}, 16")
            for c in range(1, 4): a(f"ds_write_b128 v{RA}, {v(w+4*(c-1),4)} offset:{c*4160 + g*1024}")
        fin(a)
        return
    a(f"v_mov_b32 v{RA}, 4096")
    a("s_mov_b64 exec, 1")
    a(f"buffer_store_dwordx4 {v(O+16,4)}, v{RA}, {SWS}, s12 offen")
    a.end()

def trans_role(a):
    SX = "s[52:55]"
    T = 2; RA = 16; D = 32
    if not FUSED: xt_role(a)
    wof_role(a)

def xt_role(a):
    a("s_mul_i32 s7, s3, 13312")
    srd(a, 52, 16, 2048 * 1280)
    SX = "s[52:55]"
    T = 2
    a("s_mul_i32 s5, s4, 205")
    a("s_lshr_b32 s5, s5, 11")
    a("s_mul_i32 s6, s5, 10")
    a("s_sub_u32 s6, s4, s6")
    a(f"s_mul_i32 s8, s5, {64*1280}")
    a("s_lshl_b32 s9, s6, 7")
    a("s_add_u32 s8, s8, s9")
    a(f"v_lshrrev_b32 v{T}, 3, v0")
    a(f"v_and_b32 v{T+1}, 7, v0")
    a(f"v_xor_b32 v{T+2}, v{T}, v{T+1}")
    a(f"v_mul_u32_u24 v{T+3}, 1280, v{T}")
    a(f"v_lshl_add_u32 v{T+4}, v{T+2}, 4, v{T+3}")
    for e in range(8):
        a(f"s_add_u32 m0, s7, {e*1024}")
        a(f"s_add_u32 s10, s8, {e*8*1280}")
        a(f"buffer_load_dwordx4 v{T+4}, {SX}, s10 offen lds")
    a(f"v_lshrrev_b32 v{T}, 4, v0")
    a(f"v_bfe_u32 v{T+6}, v0, 2, 2")
    a(f"v_lshl_add_u32 v{T+7}, v{T}, 3, v{T+6}")
    a(f"v_bfe_u32 v{T+8}, v0, 1, 1")
    a(f"v_lshl_add_u32 v{T+7}, v{T+8}, 5, v{T+7}")
    a(f"v_lshlrev_b32 v{T+7}, 7, v{T+7}")
    a(f"v_and_b32 v{T+8}, 1, v0")
    a(f"v_lshl_add_u32 v{T+7}, v{T+8}, 3, v{T+7}")
    a(f"v_lshl_add_u32 v{T+7}, v{T+6}, 4, v{T+7}")
    RA = 16
    for cg in range(8):
        a(f"v_xor_b32 v{RA+cg}, {cg*16}, v{T+7}")
        a(f"v_add_u32 v{RA+cg}, s7, v{RA+cg}")
    a(f"v_lshlrev_b32 v{T+9}, 12, v{T+1}")
    a(f"v_lshl_add_u32 v{T+9}, v{T}, 4, v{T+9}")
    a(f"v_bfe_u32 v{T+8}, v0, 3, 1")
    a(f"v_lshl_add_u32 v{T+9}, v{T+8}, 6, v{T+9}")
    a(f"s_lshl_b32 s10, s6, 18")
    a("s_lshl_b32 s11, s5, 7")
    a("s_add_u32 s10, s10, s11")
    a(f"s_add_u32 s10, s10, {XT}")
    a("s_waitcnt vmcnt(0)")
    D = 32
    for cg in range(8):
        a(f"ds_read_b64_tr_b16 {v(D+4*cg,2)}, v{RA+cg}")
        a(f"ds_read_b64_tr_b16 {v(D+4*cg+2,2)}, v{RA+(cg^4)} offset:512")
    for cg in range(8):
        a(f"s_waitcnt lgkmcnt({(7-cg)*2})")
        a(f"buffer_store_dwordx4 {v(D+4*cg,4)}, v{T+9}, {SWS}, s10 offen{SC}")
        if cg < 7: a(f"s_add_u32 s10, s10, {8*4096}")
    a.end()

def wof_role(a):
    SX = "s[52:55]"
    T = 2; RA = 16; D = 32
    a.label("K1_WOT")
    a("s_mul_i32 s7, s3, 13312")
    srd(a, 52, 20, 640 * 1280)
    a("s_mul_i32 s5, s4, 205")
    a("s_lshr_b32 s5, s5, 10")
    a("s_mul_i32 s6, s5, 5")
    a("s_sub_u32 s6, s4, s6")
    a(f"s_mul_i32 s8, s5, {40*1280}")
    a("s_lshl_b32 s9, s6, 8")
    a("s_add_u32 s8, s8, s9")
    a(f"v_lshrrev_b32 v{T}, 4, v0")
    a(f"v_and_b32 v{T+1}, 15, v0")
    a(f"v_lshlrev_b32 v{T+2}, 2, v{T}")
    a(f"v_xor_b32 v{T+2}, v{T+2}, v{T+1}")
    a(f"v_mul_u32_u24 v{T+3}, 1280, v{T}")
    a(f"v_lshl_add_u32 v{T+4}, v{T+2}, 4, v{T+3}")
    for e in range(10):
        a(f"s_add_u32 m0, s7, {e*1024}")
        a(f"s_add_u32 s10, s8, {e*4*1280}")
        a(f"buffer_load_dwordx4 v{T+4}, {SX}, s10 offen lds")
    a(f"v_bfe_u32 v{T+6}, v0, 2, 2")
    a(f"v_lshlrev_b32 v{T+7}, 8, v{T+6}")
    a(f"v_and_b32 v{T+8}, 3, v0")
    a(f"v_lshl_add_u32 v{T+7}, v{T+8}, 3, v{T+7}")
    a(f"v_bfe_u32 v{T+8}, v0, 4, 1")
    a(f"v_lshl_add_u32 v{T+7}, v{T+8}, 5, v{T+7}")
    a(f"v_lshrrev_b32 v{T+8}, 5, v0")
    a(f"v_xor_b32 v{T+8}, v{T+8}, v{T+6}")
    a(f"v_lshl_add_u32 v{T+7}, v{T+8}, 6, v{T+7}")
    a(f"v_xor_b32 v{RA+1}, 128, v{T+7}")
    a(f"v_add_u32 v{RA}, s7, v{T+7}")
    a(f"v_add_u32 v{RA+1}, s7, v{RA+1}")
    a("s_lshl_b32 s11, s6, 3")
    for cs in range(2):
        a(f"v_add_u32 v{T+10}, s11, v{T}")
        if cs: a(f"v_add_u32 v{T+10}, 4, v{T+10}")
        a(f"v_mul_u32_u24 v{T+11}, 205, v{T+10}")
        a(f"v_lshrrev_b32 v{T+11}, 10, v{T+11}")
        a(f"v_mul_u32_u24 v{T+11}, 95, v{T+11}")
        a(f"v_add_u32 v{T+10}, v{T+10}, v{T+11}")
        a(f"v_lshlrev_b32 v{T+10}, 10, v{T+10}")
        a(f"v_lshl_add_u32 v{RA+2+cs}, v{T+1}, 4, v{T+10}")
    a("s_lshr_b32 s9, s5, 2")
    a("s_mul_i32 s9, s9, 25600")
    a(f"s_add_u32 s9, s9, {WOF}")
    a("s_and_b32 s12, s5, 3")
    a("s_lshl_b32 s13, s12, 8")
    a("s_add_u32 s13, s13, s9")
    a("s_add_u32 s13, s13, 20480")
    a("s_mul_i32 s12, s12, 5120")
    a("s_add_u32 s9, s9, s12")
    a("s_waitcnt vmcnt(0)")
    rows = [(0, 8), (4, 12), (20, 28), (24, 32), (16, 36)]
    for gi in range(5):
        for cs in range(2):
            for s_ in range(2):
                a(f"ds_read_b64_tr_b16 {v(D+(gi*2+cs)*4+2*s_,2)}, v{RA+cs} offset:{rows[gi][s_]*256}")
        if gi == 2: a("s_waitcnt lgkmcnt(4)")
    a("s_waitcnt lgkmcnt(0)")
    for gi in range(5):
        for cs in range(2):
            a(f"buffer_store_dwordx4 {v(D+(gi*2+cs)*4,4)}, v{RA+2+cs}, {SWS}, s{9 if gi < 4 else 13} offen offset:{gi*256 if gi < 4 else 0}{SC}")
    fin(a)

LAUNCH = "; @launch kernel=k1_kernel grid=(512,1,1) block=(512,1,1) lds=81920"
NX = 3; NW = 4; IL = 0; ROT = 0
def k1(a, sc="", scq="", pf=0, only="", ldm="", nx=3, nw=4, gp=0, il=1, ap=0, rot=1, swap=0):
    global SC, SCQ, PF, LDM, NX, NW, IL, ROT
    ROT = rot
    IL = il
    NX = nx; NW = nw
    LDM = ldm
    SC = sc; SCQ = scq; PF = pf
    kernel_header(a, "k1_kernel")
    a(f"s_cmp_ge_u32 s2, {240 if only == 'gemm' else 512}")
    a("s_cbranch_scc1 K1_EXIT")
    if only == "aux":
        a(f"s_cmp_lt_u32 s2, 240")
        a("s_cbranch_scc1 K1_EXIT")
    if swap: a("s_xor_b32 s2, s2, 256")
    a.tstart()
    common_prologue(a)
    a("s_cmp_ge_u32 s2, 240")
    a("s_cbranch_scc1 K1_AUX")
    if gp: a(f"s_setprio {gp}")
    gemm_role(a)
    a.label("K1_AUX")
    if ap: a(f"s_setprio {ap}")
    a("s_cmp_ge_u32 s3, 6")
    a("s_cbranch_scc1 K1_EXIT")
    a("s_sub_u32 s5, s2, 256")
    a("s_cmp_ge_u32 s5, 240")
    a("s_cbranch_scc1 K1_AUXA")
    a("s_cmp_ge_u32 s3, 4")
    a("s_cbranch_scc1 K1_EXIT")
    a("s_lshl_b32 s4, s5, 1")
    a("s_add_u32 s4, s4, s3")
    a("s_and_b32 s6, s5, 7")
    a("s_lshr_b32 s7, s5, 3")
    aux_prologue(a)
    a("s_cmp_lt_u32 s3, 2")
    a("s_cbranch_scc1 K1_KGEN")
    a("s_mul_i32 s4, s6, 40")
    a("s_add_u32 s4, s4, s7")
    a("s_cmp_eq_u32 s3, 2")
    a("s_cbranch_scc1 K1_TRANS")
    a("s_add_u32 s4, s4, 30")
    a("s_cmp_lt_u32 s7, 10")
    a("s_cbranch_scc1 K1_TRANS")
    a("s_lshl_b32 s4, s6, 3")
    a("s_add_u32 s4, s4, s7")
    a("s_sub_u32 s4, s4, 10")
    a("s_cmp_lt_u32 s7, 18")
    a("s_cbranch_scc1 K1_GATE")
    a("s_sub_u32 s4, s5, 144")
    a("s_cmp_lt_u32 s7, 28")
    a("s_cbranch_scc1 K1_WOT")
    a("s_endpgm ")
    a.label("K1_AUXA")
    aux_prologue(a)
    a("s_and_b32 s4, s2, 15")
    a("s_lshr_b32 s5, s2, 8")
    a("s_lshl_b32 s5, s5, 4")
    a("s_add_u32 s4, s4, s5")
    a("s_mul_i32 s4, s4, 5")
    a("s_add_u32 s4, s4, s3")
    a("s_add_u32 s4, s4, 480")
    a("s_cmp_lt_u32 s3, 5")
    a("s_cbranch_scc1 K1_KGEN")
    a("s_cmp_lg_u32 s2, 511")
    a("s_cbranch_scc1 K1_EXIT")
    for i in range(4): a(f"v_mov_b32 v{4+i}, 0")
    a("v_lshlrev_b32 v2, 4, v0")
    a(f"s_mov_b32 s4, {FL}")
    a(f"buffer_store_dwordx4 v[4:7], v2, {SWS}, s4 offen sc1")
    a("s_endpgm ")
    a.label("K1_GATE"); gate_role(a)
    a.label("K1_KGEN")
    if 'K' in only: a("s_endpgm ")
    kgen_role(a)
    a.label("K1_TRANS")
    if 'T' in only: a("s_endpgm ")
    trans_role(a)
    a.label("K1_EXIT"); a("s_endpgm ")
    kernel_desc(a, "k1_kernel", 128)
```

```python
from asmlib import *
from layout import *
import struct, math

def f2u(x): return struct.unpack("<I", struct.pack("<f", x))[0]

def srd(a, d, ptr, size):
    a(f"s_mov_b32 s{d}, s{ptr}")
    a(f"s_and_b32 s{d+1}, s{ptr+1}, 0xffff")
    a(f"s_mov_b32 s{d+2}, {size}")
    a(f"s_mov_b32 s{d+3}, 0x20000")

def common_prologue(a):
    a("s_load_dwordx16 s[16:31], s[0:1], 0")
    a("s_load_dwordx16 s[32:47], s[0:1], 64")
    a("v_lshrrev_b32 v1, 6, v0")
    a("v_and_b32 v0, 63, v0")
    a("v_readfirstlane_b32 s3, v1")

def aux_prologue(a):
    a("s_waitcnt lgkmcnt(0)")
    a.stamp(7)
    srd(a, 48, 46, WS_SIZE)

SWS = "s[48:51]"
FUSED = 0
HSK = 163776
def fin(a):
    if FUSED:
        a("s_mov_b64 exec, -1")
        a("s_branch P2")
    else: a.end()

def gemm_role(a):
    a("s_and_b32 s4, s2, 7")
    a("s_lshr_b32 s5, s2, 3")
    a("s_and_b32 s6, s4, 1")
    a("s_mul_i32 s6, s6, 30")
    a("s_add_u32 s6, s6, s5")
    a("s_lshr_b32 s7, s6, 2")
    a("s_and_b32 s6, s6, 3")
    a("s_lshr_b32 s63, s4, 1")
    a("s_lshl_b32 s63, s63, 2")
    a("s_add_u32 s8, s63, s6")
    T = 32
    a("s_cmp_lt_u32 s3, 4")
    a("s_cbranch_scc1 K1_CONS")
    LO = 4
    if ROT:
        a("s_and_b32 s58, s4, 1")
        a("s_mul_i32 s58, s58, 7")
        a("s_sub_u32 s58, s7, s58")
        a("s_mul_i32 s58, s58, 5")
        a("s_lshr_b32 s58, s58, 2")
        a("s_mul_i32 s59, s6, 5")
        a("s_add_u32 s59, s59, 1")
        a("s_lshr_b32 s59, s59, 1")
        a("s_add_u32 s13, s58, s59")
        a("s_sub_u32 s58, s13, 10")
        a("s_cmp_ge_u32 s13, 10")
        a("s_cselect_b32 s13, s58, s13")
        a("s_lshl_b32 s58, s13, 1")
        a("s_sub_u32 s58, 20, s58")
    a(f"v_lshrrev_b32 v{T+1}, 4, v0")
    a("s_and_b32 s11, s3, 1")
    a("s_lshl_b32 s12, s11, 12")
    a("s_cmp_ge_u32 s3, 6")
    a("s_cbranch_scc1 K1_LDW")
    a(f"v_lshrrev_b32 v{T}, 3, v0")
    a(f"v_mul_u32_u24 v{T}, 1280, v{T}")
    a(f"v_and_b32 v{T+2}, 7, v0")
    a(f"v_xor_b32 v{T+2}, v{T+2}, v{T+1}")
    a(f"v_lshl_add_u32 v{LO}, v{T+2}, 4, v{T}")
    a(f"v_xor_b32 v{T+2}, 4, v{T+2}")
    a(f"v_lshl_add_u32 v{LO+1}, v{T+2}, 4, v{T}")
    a(f"v_add_u32 v{LO+1}, {10240-1024}, v{LO+1}")
    a(f"v_add_u32 v{LO+2}, {2*(10240-1024)}, v{LO}")
    a(f"v_add_u32 v{LO+3}, {2*(10240-1024)}, v{LO+1}")
    a(f"s_mul_i32 s9, s8, {128*1280}")
    a(f"s_mul_i32 s11, s11, {32*1280}")
    a("s_add_u32 s9, s9, s11")
    a(f"s_mov_b32 s10, {64*1280}")
    a(f"s_mov_b32 s11, {(128 - 64*1280) & 0xffffffff}")
    a(f"s_mov_b32 s60, {NX*16384}")
    a(f"s_mov_b32 s61, {NX*16384}")
    a(f"s_mov_b32 s15, {2*NX-2}")
    a(f"s_mov_b32 s62, {20-(2*NX-2)}")
    a("s_mov_b32 s56, -2"); a("s_mov_b32 s57, 4")
    if ROT:
        a("s_lshl_b32 s13, s13, 7")
        a("s_add_u32 s9, s9, s13")
        a("s_mov_b32 s59, 1280")
    a("s_waitcnt lgkmcnt(0)")
    srd(a, 52, 16, 2048 * 1280)
    a("s_branch K1_LD0")
    a.label("K1_LDW")
    a(f"v_mul_u32_u24 v{T}, 3840, v{T+1}")
    a(f"v_and_b32 v{T+2}, 15, v0")
    a(f"v_lshlrev_b32 v{T+3}, 2, v{T+1}")
    a(f"v_xor_b32 v{T+2}, v{T+2}, v{T+3}")
    a(f"v_lshl_add_u32 v{LO}, v{T+2}, 4, v{T}")
    for e in range(1, 4): a(f"v_add_u32 v{LO+e}, {e*(15360-1024)}, v{LO}")
    a("s_lshl_b32 s9, s7, 8")
    a(f"s_mul_i32 s11, s11, {4*15360}")
    a("s_add_u32 s9, s9, s11")
    a(f"s_mov_b32 s10, {32*3840}")
    a(f"s_mov_b32 s11, {32*3840}")
    a(f"s_add_u32 s12, s12, {NX*16384}")
    a(f"s_mov_b32 s60, {NX*16384+NW*8192}")
    a(f"s_mov_b32 s61, {NW*8192}")
    a(f"s_mov_b32 s15, {NW-1}")
    a(f"s_mov_b32 s62, {20-(NW-1)}")
    a("s_mov_b32 s56, -1"); a("s_mov_b32 s57, 3")
    if ROT:
        a(f"s_mul_i32 s13, s13, {64*3840}")
        a("s_add_u32 s9, s9, s13")
        a(f"s_mov_b32 s59, {640*3840}")
    a("s_waitcnt lgkmcnt(0)")
    srd(a, 52, 18, 640 * 3840)
    def issue():
        a("s_mov_b32 m0, s12")
        a("s_add_u32 s12, s12, 8192")
        for e in range(4): a(f"buffer_load_dwordx4 v{LO+e}, s[52:55], s9 offen offset:{e*1024}{LDM} lds")
        a("s_add_u32 s9, s9, s10")
        if ROT:
            a("s_sub_u32 s58, s58, 1")
            a("s_cmp_eq_u32 s58, 0")
            a("s_cselect_b32 s14, s59, 0")
            a("s_sub_u32 s9, s9, s14")
        a("s_mov_b32 s14, s10")
        a("s_mov_b32 s10, s11")
        a("s_mov_b32 s11, s14")
        a("s_sub_u32 s14, s12, s61")
        a("s_cmp_ge_u32 s12, s60")
        a("s_cselect_b32 s12, s14, s12")
    a.label("K1_LD0")
    if FUSED:
        a("s_mov_b32 s13, s15")
        a(f"v_mov_b32 v{T}, {HSK}")
        a("s_sub_u32 s14, s3, 4")
        a("s_lshl_b32 s14, s14, 2")
        a(f"v_add_u32 v{T+1}, s14, v{T}")
        a.label("K1_LD0F")
    issue()
    a("s_sub_u32 s15, s15, 1")
    a("s_cmp_lg_u32 s15, 0")
    a(f"s_cbranch_scc1 K1_LD0{'F' if FUSED else ''}")
    a.stamp(0)
    if FUSED:
        a("s_barrier")
        def freemin():
            a(f"v_min3_u32 v{T+4}, v{T+4}, v{T+5}, v{T+6}")
            a(f"v_min_u32 v{T+4}, v{T+4}, v{T+7}")
            a(f"v_readfirstlane_b32 s16, v{T+4}")
        a.label("K1_LD1")
        a(f"ds_read_b128 {v(T+4,4)}, v{T} offset:16")
        a("s_sub_u32 s14, s13, 2")
        a("s_and_b32 s14, s14, s56")
        a(f"v_mov_b32 v{T+2}, s14")
        a("s_and_b32 s17, s13, s56")
        a("s_sub_u32 s17, s17, s57")
        a("s_waitcnt vmcnt(8) lgkmcnt(0)")
        a(f"ds_write_b32 v{T+1}, v{T+2}")
        freemin()
        a("s_cmp_ge_u32 s16, s17")
        a("s_cbranch_scc1 K1_LDGO")
        a.label("K1_LDP")
        a(f"ds_read_b128 {v(T+4,4)}, v{T} offset:16")
        a("s_waitcnt lgkmcnt(0)")
        freemin()
        a("s_cmp_lt_u32 s16, s17")
        a("s_cbranch_scc1 K1_LDP")
        a.label("K1_LDGO")
        issue()
        a("s_add_u32 s13, s13, 1")
        a("s_cmp_lg_u32 s13, 20")
        a("s_cbranch_scc1 K1_LD1")
        for n, val in ((8, 18), (4, 19), (0, 20)):
            a(f"s_and_b32 s14, {val}, s56")
            a(f"v_mov_b32 v{T+2}, s14")
            a(f"s_waitcnt vmcnt({n})")
            a(f"ds_write_b32 v{T+1}, v{T+2}")
        a.stamp(1)
        fin(a)
    else:
        a("s_cmp_ge_u32 s3, 6")
        a("s_cbranch_scc1 K1_LDW1")
        for nm, fl in (("X", 2*NX-4), ("W", NW-2)):
            if nm == "W": a.label("K1_LDW1")
            a(f"s_waitcnt vmcnt({4*fl})")
            a("s_barrier")
            a.stamp(1)
            a.label(f"K1_LD1{nm}")
            issue()
            a("s_sub_u32 s62, s62, 1")
            a("s_cmp_lg_u32 s62, 0")
            a(f"s_waitcnt vmcnt({4*fl})")
            a("s_barrier")
            a(f"s_cbranch_scc1 K1_LD1{nm}")
            for n in range(fl-1, -1, -1):
                a(f"s_waitcnt vmcnt({4*n})")
                a("s_barrier")
            a.end()
    a.label("K1_CONS")
    XA = 12; XC = 16; WA = 20; WC = 22; EA = 24
    XF = 32; WF = 48; ACC = 64; PFO = 5
    def pf():
        if not PF: return
        a(f"buffer_load_dword v4, v{PFO}, s[52:55], s58 offen")
        a("s_add_u32 s58, s58, s57")
    if PF:
        a("s_lshr_b32 s59, s3, 1")
        a("s_add_u32 s59, s59, 1")
        a(f"v_lshrrev_b32 v{T}, 1, v0")
        a(f"v_and_b32 v{T+1}, 1, v0")
        a("s_bitcmp1_b32 s3, 0")
        a("s_cbranch_scc1 K1_PFX")
        a(f"v_mul_u32_u24 v{T}, 3840, v{T}")
        a(f"v_lshl_add_u32 v{PFO}, v{T+1}, 7, v{T}")
        a("s_lshl_b32 s58, s59, 2")
        a("s_add_u32 s58, s58, s6")
        a(f"s_mul_i32 s58, s58, {32*3840}")
        a("s_lshl_b32 s57, s7, 8")
        a("s_add_u32 s58, s58, s57")
        a(f"s_mov_b32 s57, {256*3840}")
        a("s_waitcnt lgkmcnt(0)")
        srd(a, 52, 18, 640 * 3840)
        a("s_branch K1_PFGO")
        a.label("K1_PFX")
        a(f"v_and_b32 v{T}, 15, v{T}")
        a(f"v_mul_u32_u24 v{T}, 1280, v{T}")
        a(f"v_lshl_add_u32 v{PFO}, v{T+1}, 7, v{T}")
        a("s_and_b32 s57, s4, 1")
        a("s_mul_i32 s57, s57, 7")
        a("s_sub_u32 s57, s7, s57")
        a("s_lshl_b32 s58, s8, 3")
        a("s_add_u32 s58, s58, s57")
        a(f"s_mul_i32 s58, s58, {16*1280}")
        a("s_lshl_b32 s57, s59, 8")
        a("s_add_u32 s58, s58, s57")
        a("s_mov_b32 s57, 512")
        a("s_waitcnt lgkmcnt(0)")
        srd(a, 52, 16, 2048 * 1280)
        a.label("K1_PFGO")
        pf()
        if PF == 3: pf()
    a("s_lshr_b32 s13, s3, 1")
    a("s_and_b32 s14, s3, 1")
    a(f"v_and_b32 v{T}, 31, v0")
    a(f"v_lshrrev_b32 v{T+1}, 5, v0")
    a(f"v_bfe_u32 v{T+2}, v0, 1, 3")
    a(f"v_xor_b32 v{T+2}, v{T+2}, v{T+1}")
    a(f"v_lshlrev_b32 v{T+2}, 4, v{T+2}")
    a(f"v_lshl_add_u32 v{T+2}, v{T}, 7, v{T+2}")
    a("s_lshl_b32 s12, s13, 13")
    a(f"v_add_u32 v{XA}, s12, v{T+2}")
    for ks in range(1, 4):
        a(f"v_xor_b32 v{XA+ks}, {ks*32}, v{XA}")
    for ks in range(4): a(f"v_mov_b32 v{XC+ks}, v{XA+ks}")
    a(f"v_bfe_u32 v{T+2}, v0, 2, 2")
    a(f"v_lshl_add_u32 v{T+3}, v{T+1}, 3, v{T+2}")
    a(f"v_lshlrev_b32 v{T+3}, 8, v{T+3}")
    a(f"v_and_b32 v{T+4}, 3, v0")
    a(f"v_lshl_add_u32 v{T+3}, v{T+4}, 3, v{T+3}")
    a(f"v_bfe_u32 v{T+4}, v0, 4, 1")
    a(f"v_lshl_add_u32 v{T+3}, v{T+4}, 5, v{T+3}")
    a(f"v_add_u32 v{T+3}, {NX*16384}, v{T+3}")
    a("s_lshl_b32 s12, s14, 1")
    a(f"v_xor_b32 v{T+4}, s12, v{T+2}")
    a(f"v_lshl_add_u32 v{WA}, v{T+4}, 6, v{T+3}")
    a(f"v_xor_b32 v{WA+1}, 64, v{WA}")
    for i in range(2): a(f"v_mov_b32 v{WC+i}, v{WA+i}")
    a("s_mov_b32 s59, 0")
    for i in range(64): a(f"v_mov_b32 v{ACC+i}, 0")
    a("s_lshl_b32 s15, s8, 2")
    a("s_lshl_b32 s12, s13, 1")
    a("s_add_u32 s15, s15, s12")
    a("s_mul_i32 s15, s15, 1280")
    a("s_waitcnt lgkmcnt(0)")
    srd(a, 48, 46, WS_SIZE)
    a("s_mov_b32 s17, 0")
    a("s_cmp_ge_u32 s7, 10")
    a("s_cbranch_scc1 K1_GEMM_V")

    def reads(c, ks):
        buf = ks
        for rb in range(2):
            a(f"ds_read_b128 {v(XF+buf*8+rb*4,4)}, v{XC + 2*(c&1) + ks} offset:{rb*4096}")
        for cb in range(2):
            for s_ in range(2):
                a(f"ds_read_b64_tr_b16 {v(WF+buf*8+cb*4+s_*2,2)}, v{WC+cb} offset:{ks*4096 + s_*1024}")
    def mfmas(orient, buf):
        for rb in range(2):
            for cb in range(2):
                acc = v(ACC + (rb * 2 + cb) * 16, 16)
                x = v(XF + buf * 8 + rb * 4, 4); w = v(WF + buf * 8 + cb * 4, 4)
                A, B = (w, x) if orient == "qk" else (x, w)
                a(f"v_mfma_f32_32x32x16_bf16 {acc}, {A}, {B}, {acc}")
    HW = 8; HA = 6; HF = 7
    def fullchk():
        a(f"v_min3_u32 v{HW}, v{HW}, v{HW+1}, v{HW+2}")
        a(f"v_min_u32 v{HW}, v{HW}, v{HW+3}")
        a(f"v_cmp_gt_u32 vcc, s18, v{HW}")
    def poll(lab):
        a.label(lab)
        a(f"ds_read_b128 {v(HW,4)}, v{HA}")
        a("s_waitcnt lgkmcnt(0)")
        fullchk()
        a(f"s_cbranch_vccnz {lab}")
    def body(orient):
        a.stamp(0)
        if FUSED:
            a(f"v_mov_b32 v{HA}, {HSK}")
            a("s_lshl_b32 s18, s3, 2")
            a(f"v_add_u32 v{HF}, s18, v{HA}")
            a("v_mov_b32 v5, 0")
            a("s_mov_b32 s18, 1")
        a("s_barrier")
        if FUSED: poll(f"K1_P0_{orient}")
        a.stamp(1)
        if IL and not FUSED:
            def rx(c, ks, rb): a(f"ds_read_b128 {v(XF+ks*8+rb*4,4)}, v{XC + 2*(c&1) + ks} offset:{rb*4096}")
            def rw(ks, cb):
                for s_ in range(2): a(f"ds_read_b64_tr_b16 {v(WF+ks*8+cb*4+s_*2,2)}, v{WC+cb} offset:{ks*4096 + s_*1024}")
            def m(buf, rb, cb):
                acc = v(ACC + (rb * 2 + cb) * 16, 16)
                x = v(XF + buf * 8 + rb * 4, 4); w = v(WF + buf * 8 + cb * 4, 4)
                A, B = (w, x) if orient == "qk" else (x, w)
                a(f"v_mfma_f32_32x32x16_bf16 {acc}, {A}, {B}, {acc}")
            reads(0, 0); reads(0, 1)
            a("s_mov_b32 s16, 10")
            a("s_waitcnt lgkmcnt(6)")
            a.label(f"K1_GL_{orient}")
            for c in range(2):
                m(0, 0, 0)
                a("s_add_u32 s59, s59, 8192")
                a(f"s_cmp_eq_u32 s59, {NW*8192}")
                a("s_cselect_b32 s59, 0, s59")
                for i in range(2): a(f"v_add_u32 v{WC+i}, s59, v{WA+i}")
                if c & 1:
                    a("s_add_u32 s17, s17, 16384")
                    a(f"s_cmp_eq_u32 s17, {NX*16384}")
                    a("s_cselect_b32 s17, 0, s17")
                    for ks in range(2): a(f"v_add_u32 v{XC+ks}, s17, v{XA+ks}")
                else:
                    for ks in range(2, 4): a(f"v_add_u32 v{XC+ks}, s17, v{XA+ks}")
                m(0, 0, 1)
                a("s_waitcnt lgkmcnt(0)")
                a("s_barrier")
                rx(c+1, 0, 0); m(0, 1, 0); rw(0, 0); m(0, 1, 1); rx(c+1, 0, 1); rw(0, 1)
                m(1, 0, 0)
                if c == 1:
                    a("s_sub_u32 s16, s16, 1")
                    a("s_cmp_lg_u32 s16, 0")
                m(1, 0, 1); rx(c+1, 1, 0); m(1, 1, 0); rw(1, 0); m(1, 1, 1); rx(c+1, 1, 1); rw(1, 1)
                a("s_waitcnt lgkmcnt(6)")
            a(f"s_cbranch_scc1 K1_GL_{orient}")
            a.stamp(2)
            return
        reads(0, 0)
        a("s_mov_b32 s16, 5")
        a.label(f"K1_GL_{orient}")
        if PF in (1, 2):
            a(f"s_cmp_lg_u32 s16, {6 - PF}")
            a(f"s_cbranch_scc1 K1_NPF_{orient}")
            pf()
            a.label(f"K1_NPF_{orient}")
        for c in range(4):
            if FUSED:
                a(f"ds_read_b128 {v(HW,4)}, v{HA}")
                a("s_add_u32 s18, s18, 1")
                a("s_min_u32 s18, s18, 20")
                a("v_add_u32 v5, 1, v5")
            reads(c, 1)
            if c & 1:
                a("s_add_u32 s17, s17, 16384")
                a(f"s_cmp_eq_u32 s17, {NX*16384}")
                a("s_cselect_b32 s17, 0, s17")
                for ks in range(4): a(f"v_add_u32 v{XC+ks}, s17, v{XA+ks}")
            a("s_add_u32 s59, s59, 8192")
            a(f"s_cmp_eq_u32 s59, {NW*8192}")
            a("s_cselect_b32 s59, 0, s59")
            for i in range(2): a(f"v_add_u32 v{WC+i}, s59, v{WA+i}")
            a("s_waitcnt lgkmcnt(6)")
            mfmas(orient, 0)
            if FUSED:
                fullchk()
                a("s_waitcnt lgkmcnt(0)")
                a(f"ds_write_b32 v{HF}, v5 offset:16")
                a(f"s_cbranch_vccnz K1_SL_{orient}{c}")
            else:
                a("s_waitcnt lgkmcnt(0)")
                a("s_barrier")
            reads(c + 1, 0)
            mfmas(orient, 1)
            if FUSED: a.label(f"K1_SD_{orient}{c}")
        a("s_sub_u32 s16, s16, 1")
        a("s_cmp_lg_u32 s16, 0")
        a(f"s_cbranch_scc1 K1_GL_{orient}")
        a.stamp(2)
    def slow(orient):
        if not FUSED: return
        for c in range(4):
            a.label(f"K1_SL_{orient}{c}")
            mfmas(orient, 1)
            poll(f"K1_PP_{orient}{c}")
            reads(c + 1, 0)
            a(f"s_branch K1_SD_{orient}{c}")

    a("s_lshl_b32 s12, s7, 4")
    a("s_lshl_b32 s60, s14, 3")
    a("s_add_u32 s12, s12, s60")
    a(f"v_add_u32 v{T+2}, s12, v{T+1}")
    a(f"v_lshlrev_b32 v{T+6}, 4, v{T}")
    a(f"v_lshl_add_u32 v{T+7}, v{T}, 3, 0")
    a(f"v_add_u32 v{T+7}, 1024, v{T+7}")
    a(f"s_mov_b32 s61, {HS}")
    a(f"s_add_u32 s63, s15, {HS}")
    for cb in range(2):
        for p in range(2):
            e = EA + cb * 2 + p
            mk = 36 + 2 * (cb * 2 + p)
            a(f"v_add_u32 v{T+3}, {4*cb+2*p}, v{T+2}")
            a(f"v_mul_u32_u24 v{T+4}, 205, v{T+3}")
            a(f"v_lshrrev_b32 v{T+4}, 10, v{T+4}")
            a(f"v_mul_u32_u24 v{T+5}, 5, v{T+4}")
            a(f"v_sub_u32 v{T+3}, v{T+3}, v{T+5}")
            a(f"v_lshlrev_b32 v{T+4}, 1, v{T+4}")
            a(f"v_cmp_lt_u32 vcc, 2, v{T+3}")
            a(f"v_subrev_u32 v{T+5}, 3, v{T+3}")
            a(f"v_cndmask_b32 v{T+5}, v{T+3}, v{T+5}, vcc")
            a(f"v_addc_co_u32 v{T+4}, vcc, 0, v{T+4}, vcc")
            a(f"v_cmp_eq_u32 s[{mk}:{mk+1}], 2, v{T+3}")
            a(f"v_lshl_add_u32 v{T+5}, v{T+5}, 9, v{T+6}")
            a(f"v_cndmask_b32 v{T+5}, v{T+5}, v{T+7}, s[{mk}:{mk+1}]")
            a(f"v_mad_u32_u24 v{e}, v{T+4}, s61, v{T+5}")
    qs = (20 ** -0.5) * math.log2(math.e)
    a(f"s_mov_b32 s62, {f2u(qs)}")
    a("s_cmp_ge_u32 s7, 5")
    a("s_cselect_b32 s62, 1.0, s62")
    body("qk")
    for rb in range(2):
        for cb in range(2):
            ac = ACC + (rb * 2 + cb) * 16
            for p in range(2):
                r = ac + p * 8
                mk = 36 + 2 * (cb * 2 + p)
                for i in range(0, 8, 2): a(f"v_pk_mul_f32 {v(r+i,2)}, {v(r+i,2)}, s[62:63] op_sel_hi:[1,0]")
                for i in range(4): a(f"v_cvt_pk_bf16_f32 v{r+i}, v{r+2*i}, v{r+2*i+1}")
                a(f"v_permlane32_swap_b32 v{r}, v{r+2}")
                a(f"v_permlane32_swap_b32 v{r+1}, v{r+3}")
                a(f"s_andn2_b64 exec, -1, s[{mk}:{mk+1}]")
                a(f"buffer_store_dwordx4 {v(r,4)}, v{EA+cb*2+p}, {SWS}, s15 offen offset:{rb*1280}{SCQ}")
                a(f"s_cmp_eq_u64 s[{mk}:{mk+1}], 0")
                a(f"s_cbranch_scc1 K1_NM{rb}{cb}{p}")
                a(f"s_mov_b64 exec, s[{mk}:{mk+1}]")
                a(f"buffer_store_dwordx2 {v(r,2)}, v{EA+cb*2+p}, {SWS}, s15 offen offset:{rb*1280}{SCQ}")
                a(f"buffer_store_dwordx2 {v(r+2,2)}, v{EA+cb*2+p}, {SWS}, s63 offen offset:{rb*1280}{SCQ}")
                a.label(f"K1_NM{rb}{cb}{p}")
                a("s_mov_b64 exec, -1")
    fin(a)
    slow("qk")
    a.label("K1_GEMM_V")
    a("s_sub_u32 s12, s7, 10")
    a("s_lshl_b32 s12, s12, 7")
    a("s_lshl_b32 s60, s14, 6")
    a("s_add_u32 s12, s12, s60")
    a(f"s_mov_b32 s61, {HS}")
    a(f"v_lshlrev_b32 v{T+6}, 4, v{T+1}")
    for cb in range(2):
        a(f"v_add_u32 v{T+3}, s12, v{T}")
        if cb: a(f"v_add_u32 v{T+3}, 32, v{T+3}")
        a(f"v_mul_u32_u24 v{T+4}, 3277, v{T+3}")
        a(f"v_lshrrev_b32 v{T+4}, 16, v{T+4}")
        a(f"v_mul_u32_u24 v{T+5}, 20, v{T+4}")
        a(f"v_sub_u32 v{T+3}, v{T+3}, v{T+5}")
        a(f"v_lshl_add_u32 v{T+5}, v{T+3}, 5, v{T+6}")
        a(f"v_mad_u32_u24 v{EA+cb}, v{T+4}, s61, v{T+5}")
    a(f"s_add_u32 s15, s15, {VF}")
    body("v")
    for rb in range(2):
        for cb in range(2):
            ac = ACC + (rb * 2 + cb) * 16
            for g in range(2):
                r = ac + g * 8
                for i in range(4): a(f"v_cvt_pk_bf16_f32 v{r+i}, v{r+2*i}, v{r+2*i+1}")
                a(f"buffer_store_dwordx4 {v(r,4)}, v{EA+cb}, {SWS}, s15 offen offset:{rb*1280+g*640}{SCQ}")
    fin(a)
    slow("v")

def gate_role(a):
    srd(a, 52, 16, 2048 * 1280)
    SX = "s[52:55]"
    G = 8; X = 32; ACC = 112; T = 2
    if FUSED: a.label("K1_GATE2")
    a(f"s_mul_i32 s5, s4, {32*1280}")
    a(f"v_and_b32 v{T}, 15, v0")
    a(f"v_lshlrev_b32 v{T+1}, 4, v{T}")
    for e in range(5):
        a(f"global_load_dwordx4 {v(G+4*e,4)}, v{T+1}, s[40:41] offset:{e*256}")
    a(f"v_lshrrev_b32 v{T+2}, 4, v0")
    a(f"v_mul_u32_u24 v{T+3}, 1280, v{T+2}")
    a(f"v_add_u32 v{T+3}, v{T+3}, v{T+1}")
    for grp in range(8):
        a(f"v_mov_b32 v{ACC+grp}, 0")
    def gl(grp):
        for e in range(5):
            a(f"buffer_load_dwordx4 {v(X+(grp&3)*20+e*4,4)}, v{T+3}, {SX}, s5 offen offset:{e*256}")
        if grp < 7: a(f"s_add_u32 s5, s5, {4*1280}")
    for grp in range(4): gl(grp)
    for grp in range(8):
        a(f"s_waitcnt vmcnt({min(3, 7-grp)*5})")
        for i in range(20):
            a(f"v_dot2c_f32_bf16 v{ACC+grp}, v{X+(grp&3)*20+i}, v{G+i}")
        if grp < 4: gl(grp + 4)
    for sh in (8, 4, 2, 1):
        for grp in range(8):
            a(f"v_add_f32_dpp v{ACC+grp}, v{ACC+grp}, v{ACC+grp} row_ror:{sh} row_mask:0xf bank_mask:0xf")
    for k in range(1, 8):
        a(f"v_cmp_eq_u32 vcc, {k}, v{T}")
        a(f"v_cndmask_b32 v{ACC}, v{ACC}, v{ACC+k}, vcc")
    R = ACC
    a(f"v_cvt_pk_bf16_f32 v{R}, v{R}, v{R}")
    a(f"v_lshlrev_b32 v{R}, 16, v{R}")
    a(f"v_mul_f32 v{R}, {f2u(-math.log2(math.e))}, v{R}")
    a(f"v_exp_f32 v{R}, v{R}")
    a(f"v_add_f32 v{R}, 1.0, v{R}")
    a(f"v_rcp_f32 v{R}, v{R}")
    a(f"v_cvt_pk_bf16_f32 v{R}, v{R}, v{R}")
    a(f"v_lshlrev_b32 v{R}, 16, v{R}")
    a(f"v_lshl_add_u32 v{T+3}, v{T}, 2, v{T+2}")
    a(f"v_lshlrev_b32 v{T+3}, 2, v{T+3}")
    a("s_lshl_b32 s5, s4, 7")
    a(f"s_add_u32 s5, s5, {GT}")
    a(f"v_cmp_gt_u32 vcc, 8, v{T}")
    a("s_and_saveexec_b64 s[6:7], vcc")
    a(f"buffer_store_dword v{R}, v{T+3}, {SWS}, s5 offen{SC}")
    if FUSED:
        a("s_mov_b64 exec, -1")
        a("s_add_u32 s4, s4, 3")
        a("s_cmp_lt_u32 s4, s60")
        a("s_cbranch_scc1 K1_GATE2")
    fin(a)

def cmul(a, d, x, y):
    a(f"v_pk_mul_f32 {v(d,2)}, {v(x,2)}, {v(y,2)} op_sel:[0,0] op_sel_hi:[0,1]")
    a(f"v_pk_fma_f32 {v(d,2)}, {v(x,2)}, {v(y,2)}, {v(d,2)} op_sel:[1,1,0] op_sel_hi:[1,0,1] neg_lo:[0,1,0]")

def cmul2(a, d, x, y):
    for o in (0, 2):
        a(f"v_pk_mul_f32 {v(d+o,2)}, {v(x+o,2)}, {v(y+o,2)} op_sel:[0,0] op_sel_hi:[0,1]")
    for o in (0, 2):
        a(f"v_pk_fma_f32 {v(d+o,2)}, {v(x+o,2)}, {v(y+o,2)}, {v(d+o,2)} op_sel:[1,1,0] op_sel_hi:[1,0,1] neg_lo:[0,1,0]")

def kgen_role(a):
    log2e = math.log2(math.e)
    a("s_lshl_b32 s5, s4, 8")
    T = 2
    P = 52
    DSK = 8
    a(f"v_lshl_add_u32 v{T}, v0, 2, s5")
    for i, pr in enumerate((24, 26, 28, 30, 32, 34)):
        a(f"global_load_dword v{P+i}, v{T}, s[{pr}:{pr+1}]")
    a("s_lshl_b32 s6, s4, 1")
    a(f"v_mov_b32 v{T+1}, s6")
    a(f"global_load_ushort v{P+6}, v{T+1}, s[36:37]")
    a(f"global_load_ushort v{DSK}, v{T+1}, s[38:39]")
    SL = 528
    if not FUSED: a("s_mul_i32 s7, s3, 13312")
    WRA = 9; RDA = 10; TB0 = 11; TB1 = 12; TB2 = 13
    a(f"v_lshl_add_u32 v{WRA}, v0, 3, s7")
    a(f"v_and_b32 v{T+2}, 15, v0")
    a(f"v_lshrrev_b32 v{T+3}, 4, v0")
    a(f"v_mul_u32_u24 v{RDA}, {SL}, v{T+2}")
    a(f"v_lshl_add_u32 v{RDA}, v{T+3}, 4, v{RDA}")
    a(f"v_add_u32 v{RDA}, s7, v{RDA}")
    a("s_add_u32 s8, s7, 8448")
    a(f"v_lshlrev_b32 v{TB0}, 4, v{T+2}")
    a(f"v_lshl_add_u32 v{TB0}, v{T+3}, 2, v{TB0}")
    a(f"v_lshl_add_u32 v{TB0}, v{TB0}, 2, s8")
    a(f"v_lshlrev_b32 v{T+4}, 3, v{T+2}")
    a(f"v_lshl_add_u32 v{T+4}, v{T+3}, 2, v{T+4}")
    a(f"v_add_u32 v{T+4}, 256, v{T+4}")
    a(f"v_lshlrev_b32 v{T+5}, 2, v{T+2}")
    a(f"v_lshl_add_u32 v{T+5}, v{T+3}, 6, v{T+5}")
    a(f"v_add_u32 v{T+5}, 256, v{T+5}")
    a(f"v_cmp_gt_u32 vcc, 32, v0")
    a(f"v_cndmask_b32 v{TB1}, v{T+5}, v{T+4}, vcc")
    a(f"v_lshl_add_u32 v{TB1}, v{TB1}, 2, s8")
    a(f"v_lshlrev_b32 v{T+4}, 1, v{T+2}")
    a(f"v_lshl_add_u32 v{T+4}, v{T+3}, 6, v{T+4}")
    a(f"v_add_u32 v{T+4}, 512, v{T+4}")
    a(f"v_mov_b32 v{T+5}, 704")
    a(f"v_cmp_ge_u32 vcc, 32, v0")
    a(f"v_cndmask_b32 v{TB2}, v{T+5}, v{T+4}, vcc")
    a(f"v_lshl_add_u32 v{TB2}, v{TB2}, 2, s8")
    if FUSED: a("s_barrier")
    a("s_waitcnt vmcnt(0)")
    a.stamp(0)
    DT = 14
    hi = struct.unpack("<f", struct.pack("<f", log2e))[0]; lo = log2e - hi
    a(f"v_lshlrev_b32 v{T}, 16, v{P+6}")
    a(f"s_mov_b32 s9, {f2u(hi)}")
    a(f"v_mul_f32 v{T+1}, s9, v{T}")
    a(f"v_fma_f32 v{T+2}, v{T}, s9, -v{T+1}")
    a(f"v_mov_b32 v{T+3}, {f2u(lo)}")
    a(f"v_fmac_f32 v{T+2}, v{T}, v{T+3}")
    a(f"v_exp_f32 v{T+1}, v{T+1}")
    a(f"v_mul_f32 v{T+2}, {f2u(math.log(2.0))}, v{T+2}")
    a(f"v_fma_f32 v{T+1}, v{T+1}, v{T+2}, v{T+1}")
    a(f"v_cvt_pk_bf16_f32 v{DT}, v{T+1}, v{T+1}")
    a(f"v_lshlrev_b32 v{DT}, 16, v{DT}")
    A_ = 16; B_ = 20; C_ = 24; W_ = 28
    for grp, (re_, im_) in ((A_, (P, P + 1)), (B_, (P + 2, P + 3)), (C_, (P + 4, P + 5))):
        a(f"v_lshlrev_b32 v{grp}, 16, v{re_}")
        a(f"v_lshlrev_b32 v{grp+1}, 16, v{im_}")
        a(f"v_and_b32 v{grp+2}, 0xffff0000, v{re_}")
        a(f"v_and_b32 v{grp+3}, 0xffff0000, v{im_}")
    for i in range(4):
        a(f"v_mul_f32 v{A_+i}, v{DT}, v{A_+i}")
        a(f"v_mul_f32 v{B_+i}, v{DT}, v{B_+i}")
    cmul2(a, W_, C_, B_)
    a(f"s_mov_b32 s10, {f2u(1.0/(2*math.pi))}")
    for o in (0, 2):
        a(f"v_mul_f32 v{A_+o}, s9, v{A_+o}")
        a(f"v_mul_f32 v{A_+o+1}, s10, v{A_+o+1}")
    Z1 = 32; Z16 = 36; Z256 = 40
    def base(dst, n):
        E = 44
        a(f"s_mov_b32 s11, {f2u(float(n))}")
        for o in (0, 2):
            if n != 1:
                a(f"v_mul_f32 v{E+o}, s11, v{A_+o}")
                a(f"v_mul_f32 v{E+o+1}, s11, v{A_+o+1}")
                a(f"v_fract_f32 v{E+o+1}, v{E+o+1}")
                a(f"v_exp_f32 v{E+o}, v{E+o}")
            else:
                a(f"v_fract_f32 v{E+o+1}, v{A_+o+1}")
                a(f"v_exp_f32 v{E+o}, v{A_+o}")
        for o in (0, 2):
            a(f"v_cos_f32 v{dst+o}, v{E+o+1}")
            a(f"v_sin_f32 v{dst+o+1}, v{E+o+1}")
        for o in (0, 2):
            a(f"v_pk_mul_f32 {v(dst+o,2)}, {v(dst+o,2)}, {v(E+o,2)} op_sel:[0,0] op_sel_hi:[1,0]")
    base(Z16, 16)
    PK = 2
    cnt = [0]
    def put(src, slot, neg=False):
        p = PK + 2 * (cnt[0] & 1); cnt[0] += 1
        n = "-" if neg else ""
        a(f"v_cvt_pk_bf16_f32 v{p}, v{src}, {n}v{src+1}")
        a(f"v_cvt_pk_bf16_f32 v{p+1}, v{src+2}, {n}v{src+3}")
        a(f"ds_write_b64 v{WRA}, {v(p,2)} offset:{slot*SL}")
    CA = 44; CB = 48
    put(W_, 0, True)
    cur = W_
    for j in range(1, 16):
        nxt = CA if cur != CA else CB
        cmul2(a, nxt, cur, Z16)
        put(nxt, j, True)
        cur = nxt
    RF = 52
    for s_ in range(8):
        a(f"ds_read_b128 {v(RF+4*s_,4)}, v{RDA} offset:{64*s_}")
    base(Z1, 1)
    base(Z256, 256)
    EV = 84
    ONE = 6
    a(f"v_mov_b32 v{ONE}, 0x3f80")
    a(f"v_mov_b32 v{ONE+1}, 0x3f80")
    a(f"ds_write_b64 v{WRA}, {v(ONE,2)} offset:0")
    put(Z1, 1)
    cur = Z1
    for j in range(2, 16):
        nxt = EV + 4 * (j // 2 - 1) if j % 2 == 0 else CA
        cmul2(a, nxt, cur, Z1)
        put(nxt, j)
        cur = nxt
    LF = 112
    D = 16
    def tile(t):
        for s_ in range(4):
            a(f"ds_read_b128 {v(LF+4*s_,4)}, v{RDA} offset:{64*s_}")
    def tile_mfma(t):
        for s_ in range(4):
            a(f"s_waitcnt lgkmcnt({3-s_})")
            a(f"v_mfma_f32_16x16x32_bf16 {v(D+4*t,4)}, {v(LF+4*s_,4)}, {v(RF+4*s_,4)}, {'0' if s_==0 else v(D+4*t,4)}")
        for s_ in range(4, 8):
            a(f"ds_read_b128 {v(LF+4*(s_-4),4)}, v{RDA} offset:{64*s_}")
        for s_ in range(4, 8):
            a(f"s_waitcnt lgkmcnt({7-s_})")
            a(f"v_mfma_f32_16x16x32_bf16 {v(D+4*t,4)}, {v(LF+4*(s_-4),4)}, {v(RF+4*s_,4)}, {v(D+4*t,4)}")
    ev = lambda j: EV + 4 * (j // 2 - 1)
    tile(0)
    Z512 = 32; Z768 = 36
    cmul2(a, Z512, Z256, Z256)
    cmul2(a, Z768, Z512, Z256)
    tile_mfma(0)
    put(Z256, 0)
    for m in range(1, 8):
        cmul2(a, CA, Z256, ev(2 * m)); put(CA, m)
    for k, zb in ((8, Z512), (12, Z768)):
        put(zb, k)
        for i in range(1, 4):
            cmul2(a, CA, zb, ev(4 * i)); put(CA, k + i)
    tile(1)
    Z1024 = 88;
    cmul2(a, CB, Z512, Z512)
    tile_mfma(1)
    cur = CB
    oth = {CB: 36, 36: CB}
    for aa in range(4):
        put(cur, 2 * aa)
        cmul2(a, CA, cur, ev(8)); put(CA, 2 * aa + 1)
        nxt = oth[cur]
        cmul2(a, nxt, cur, Z256)
        cur = nxt
    put(cur, 8)
    tile(2)
    tile_mfma(2)
    a.stamp(1)
    a(f"v_lshlrev_b32 v{DSK}, 16, v{DSK}")
    a("s_mov_b64 exec, 1")
    a(f"v_add_f32 v{D}, v{D}, v{DSK}")
    a("s_mov_b64 exec, -1")
    TP = 52
    for t in range(3):
        for r in range(4):
            a(f"v_cvt_pk_bf16_f32 v{TP+4*t+r}, v{D+4*t+r}, v{D+4*t+r}")
    a(f"ds_write_b128 v{TB0}, {v(TP,4)}")
    a(f"ds_write_b128 v{TB1}, {v(TP+4,4)}")
    a(f"ds_write_b64 v{TB2}, {v(TP+8,2)}")
    a(f"ds_write_b64 v{TB2}, {v(TP+10,2)} offset:128")
    RA = 2
    a(f"v_lshlrev_b32 v{RA}, 3, v0")
    a(f"v_lshlrev_b32 v{RA+1}, 2, v0")
    a(f"v_add_u32 v{RA+2}, 128, v{RA+1}")
    a(f"v_cmp_gt_u32 vcc, 32, v0")
    a(f"v_cndmask_b32 v{RA}, v{RA+2}, v{RA}, vcc")
    a(f"v_lshl_add_u32 v{RA}, v{RA}, 2, s8")
    a(f"v_lshl_add_u32 v{RA+2}, v0, 3, s8")
    a(f"v_add_u32 v{RA+1}, s8, v{RA+1}")
    E0 = 64; E1 = 72; E2 = 76; E3 = 78
    a(f"ds_read_b128 {v(E0,4)}, v{RA}")
    a(f"ds_read_b128 {v(E0+4,4)}, v{RA} offset:16")
    a(f"ds_read_b64 {v(E1,2)}, v{RA+2} offset:{384*4}")
    a(f"ds_read_b32 v{E1+2}, v{RA+2} offset:{384*4+8}")
    a(f"ds_read_b32 v{E2}, v{RA+1} offset:{512*4}")
    a(f"ds_read_b32 v{E2+1}, v{RA+1} offset:{513*4}")
    a(f"ds_read_b32 v{E3}, v{RA+1} offset:{576*4}")
    a(f"ds_read_b32 v{E3+1}, v{RA+1} offset:{577*4}")
    a(f"v_lshlrev_b32 v{RA+3}, 4, v0")
    a(f"v_sub_u32 v{RA+3}, {63*16}, v{RA+3}")
    if FUSED:
        a(f"v_add_u32 v{RA+3}, s7, v{RA+3}")
    else:
        a(f"s_mul_i32 s12, s4, {KCS}")
        a(f"s_add_u32 s12, s12, {KC}")
    def kst(r, off):
        if FUSED: a(f"ds_write_b128 v{RA+3}, {v(r,4)} offset:{off}")
        else: a(f"buffer_store_dwordx4 {v(r,4)}, v{RA+3}, {SWS}, s12 offen offset:{off}{SC}")
    a("s_mov_b32 s13, 0xffff")
    a(f"v_and_b32 v{RA+4}, 1, v0")
    a(f"v_sub_u32 v{RA+4}, 0, v{RA+4}")
    a(f"v_or_b32 v{RA+4}, 0xffff, v{RA+4}")
    O = 84
    a("s_waitcnt lgkmcnt(0)")
    a(f"v_bfi_b32 v{O}, s13, v{E0+4}, v{E0+3}")
    a(f"v_mov_b32 v{O+1}, v{E0+2}")
    a(f"v_bfi_b32 v{O+2}, s13, v{E0+2}, v{E0+1}")
    a(f"v_mov_b32 v{O+3}, v{E0}")
    a("s_mov_b64 exec, 0xffffffff")
    for i in range(4):
        a(f"v_bfi_b32 v{O+i}, s13, v{E0+7-2*i}, v{E0+6-2*i}")
    a("s_mov_b64 exec, -1")
    kst(O, 192*16)
    a(f"v_mov_b32 v{O+4}, v{E1+2}")
    a(f"v_mov_b32 v{O+5}, v{E1+1}")
    a(f"v_bfi_b32 v{O+6}, s13, v{E1+1}, v{E1}")
    a(f"v_mov_b32 v{O+7}, v{E1}")
    kst(O+4, 128*16)
    for u, E in enumerate((E2, E3)):
        o = O + 8 + 4 * u
        a(f"v_mov_b32 v{o}, v{E+1}")
        a(f"v_bfi_b32 v{o+1}, v{RA+4}, v{E+1}, v{E}")
        a(f"v_mov_b32 v{o+2}, v{E}")
        a(f"v_mov_b32 v{o+3}, v{E}")
        kst(o, (64-64*u)*16)
    for i in range(4): a(f"v_mov_b32 v{O+16+i}, 0")
    if FUSED:
        a(f"v_lshl_add_u32 v{RA}, v0, 4, s7")
        a("s_mov_b64 exec, 0xf")
        for c in range(4): a(f"ds_write_b128 v{RA}, {v(O+16,4)} offset:{c*4160 + 4096}")
        a("s_mov_b64 exec, -1")
        for g in range(4):
            a(f"ds_read_b128 {v(16+8*g,4)}, v{RA} offset:{g*1024}")
            a(f"ds_read_b64 {v(20+8*g,2)}, v{RA} offset:{g*1024+16}")
        for g in range(4):
            d = 16 + 8*g; w = 52 + 12*(g & 1)
            if g == 0: a("s_waitcnt lgkmcnt(6)")
            if g == 1: a("s_waitcnt lgkmcnt(7)")
            if g == 2: a("s_waitcnt lgkmcnt(8)")
            if g == 3: a("s_waitcnt lgkmcnt(3)")
            for i in range(4): a(f"v_alignbit_b32 v{w+i}, v{d+i+1}, v{d+i}, 16")
            for i in range(4): a(f"v_mov_b32 v{w+4+i}, v{d+i+1}")
            for i in range(4): a(f"v_alignbit_b32 v{w+8+i}, v{d+i+2}, v{d+i+1}, 16")
            for c in range(1, 4): a(f"ds_write_b128 v{RA}, {v(w+4*(c-1),4)} offset:{c*4160 + g*1024}")
        fin(a)
        return
    a(f"v_mov_b32 v{RA}, 4096")
    a("s_mov_b64 exec, 1")
    a(f"buffer_store_dwordx4 {v(O+16,4)}, v{RA}, {SWS}, s12 offen")
    a.end()

def trans_role(a):
    SX = "s[52:55]"
    T = 2; RA = 16; D = 32
    if not FUSED: xt_role(a)
    wof_role(a)

def xt_role(a):
    a("s_mul_i32 s7, s3, 13312")
    srd(a, 52, 16, 2048 * 1280)
    SX = "s[52:55]"
    T = 2
    a("s_mul_i32 s5, s4, 205")
    a("s_lshr_b32 s5, s5, 11")
    a("s_mul_i32 s6, s5, 10")
    a("s_sub_u32 s6, s4, s6")
    a(f"s_mul_i32 s8, s5, {64*1280}")
    a("s_lshl_b32 s9, s6, 7")
    a("s_add_u32 s8, s8, s9")
    a(f"v_lshrrev_b32 v{T}, 3, v0")
    a(f"v_and_b32 v{T+1}, 7, v0")
    a(f"v_xor_b32 v{T+2}, v{T}, v{T+1}")
    a(f"v_mul_u32_u24 v{T+3}, 1280, v{T}")
    a(f"v_lshl_add_u32 v{T+4}, v{T+2}, 4, v{T+3}")
    for e in range(8):
        a(f"s_add_u32 m0, s7, {e*1024}")
        a(f"s_add_u32 s10, s8, {e*8*1280}")
        a(f"buffer_load_dwordx4 v{T+4}, {SX}, s10 offen lds")
    a(f"v_lshrrev_b32 v{T}, 4, v0")
    a(f"v_bfe_u32 v{T+6}, v0, 2, 2")
    a(f"v_lshl_add_u32 v{T+7}, v{T}, 3, v{T+6}")
    a(f"v_bfe_u32 v{T+8}, v0, 1, 1")
    a(f"v_lshl_add_u32 v{T+7}, v{T+8}, 5, v{T+7}")
    a(f"v_lshlrev_b32 v{T+7}, 7, v{T+7}")
    a(f"v_and_b32 v{T+8}, 1, v0")
    a(f"v_lshl_add_u32 v{T+7}, v{T+8}, 3, v{T+7}")
    a(f"v_lshl_add_u32 v{T+7}, v{T+6}, 4, v{T+7}")
    RA = 16
    for cg in range(8):
        a(f"v_xor_b32 v{RA+cg}, {cg*16}, v{T+7}")
        a(f"v_add_u32 v{RA+cg}, s7, v{RA+cg}")
    a(f"v_lshlrev_b32 v{T+9}, 12, v{T+1}")
    a(f"v_lshl_add_u32 v{T+9}, v{T}, 4, v{T+9}")
    a(f"v_bfe_u32 v{T+8}, v0, 3, 1")
    a(f"v_lshl_add_u32 v{T+9}, v{T+8}, 6, v{T+9}")
    a(f"s_lshl_b32 s10, s6, 18")
    a("s_lshl_b32 s11, s5, 7")
    a("s_add_u32 s10, s10, s11")
    a(f"s_add_u32 s10, s10, {XT}")
    a("s_waitcnt vmcnt(0)")
    D = 32
    for cg in range(8):
        a(f"ds_read_b64_tr_b16 {v(D+4*cg,2)}, v{RA+cg}")
        a(f"ds_read_b64_tr_b16 {v(D+4*cg+2,2)}, v{RA+(cg^4)} offset:512")
    for cg in range(8):
        a(f"s_waitcnt lgkmcnt({(7-cg)*2})")
        a(f"buffer_store_dwordx4 {v(D+4*cg,4)}, v{T+9}, {SWS}, s10 offen{SC}")
        if cg < 7: a(f"s_add_u32 s10, s10, {8*4096}")
    a.end()

def wof_role(a):
    SX = "s[52:55]"
    T = 2; RA = 16; D = 32
    a.label("K1_WOT")
    a("s_mul_i32 s7, s3, 13312")
    srd(a, 52, 20, 640 * 1280)
    a("s_mul_i32 s5, s4, 205")
    a("s_lshr_b32 s5, s5, 10")
    a("s_mul_i32 s6, s5, 5")
    a("s_sub_u32 s6, s4, s6")
    a(f"s_mul_i32 s8, s5, {40*1280}")
    a("s_lshl_b32 s9, s6, 8")
    a("s_add_u32 s8, s8, s9")
    a(f"v_lshrrev_b32 v{T}, 4, v0")
    a(f"v_and_b32 v{T+1}, 15, v0")
    a(f"v_lshlrev_b32 v{T+2}, 2, v{T}")
    a(f"v_xor_b32 v{T+2}, v{T+2}, v{T+1}")
    a(f"v_mul_u32_u24 v{T+3}, 1280, v{T}")
    a(f"v_lshl_add_u32 v{T+4}, v{T+2}, 4, v{T+3}")
    for e in range(10):
        a(f"s_add_u32 m0, s7, {e*1024}")
        a(f"s_add_u32 s10, s8, {e*4*1280}")
        a(f"buffer_load_dwordx4 v{T+4}, {SX}, s10 offen lds")
    a(f"v_bfe_u32 v{T+6}, v0, 2, 2")
    a(f"v_lshlrev_b32 v{T+7}, 8, v{T+6}")
    a(f"v_and_b32 v{T+8}, 3, v0")
    a(f"v_lshl_add_u32 v{T+7}, v{T+8}, 3, v{T+7}")
    a(f"v_bfe_u32 v{T+8}, v0, 4, 1")
    a(f"v_lshl_add_u32 v{T+7}, v{T+8}, 5, v{T+7}")
    a(f"v_lshrrev_b32 v{T+8}, 5, v0")
    a(f"v_xor_b32 v{T+8}, v{T+8}, v{T+6}")
    a(f"v_lshl_add_u32 v{T+7}, v{T+8}, 6, v{T+7}")
    a(f"v_xor_b32 v{RA+1}, 128, v{T+7}")
    a(f"v_add_u32 v{RA}, s7, v{T+7}")
    a(f"v_add_u32 v{RA+1}, s7, v{RA+1}")
    a("s_lshl_b32 s11, s6, 3")
    for cs in range(2):
        a(f"v_add_u32 v{T+10}, s11, v{T}")
        if cs: a(f"v_add_u32 v{T+10}, 4, v{T+10}")
        a(f"v_mul_u32_u24 v{T+11}, 205, v{T+10}")
        a(f"v_lshrrev_b32 v{T+11}, 10, v{T+11}")
        a(f"v_mul_u32_u24 v{T+11}, 95, v{T+11}")
        a(f"v_add_u32 v{T+10}, v{T+10}, v{T+11}")
        a(f"v_lshlrev_b32 v{T+10}, 10, v{T+10}")
        a(f"v_lshl_add_u32 v{RA+2+cs}, v{T+1}, 4, v{T+10}")
    a("s_lshr_b32 s9, s5, 2")
    a("s_mul_i32 s9, s9, 25600")
    a(f"s_add_u32 s9, s9, {WOF}")
    a("s_and_b32 s12, s5, 3")
    a("s_lshl_b32 s13, s12, 8")
    a("s_add_u32 s13, s13, s9")
    a("s_add_u32 s13, s13, 20480")
    a("s_mul_i32 s12, s12, 5120")
    a("s_add_u32 s9, s9, s12")
    a("s_waitcnt vmcnt(0)")
    rows = [(0, 8), (4, 12), (20, 28), (24, 32), (16, 36)]
    for gi in range(5):
        for cs in range(2):
            for s_ in range(2):
                a(f"ds_read_b64_tr_b16 {v(D+(gi*2+cs)*4+2*s_,2)}, v{RA+cs} offset:{rows[gi][s_]*256}")
        if gi == 2: a("s_waitcnt lgkmcnt(4)")
    a("s_waitcnt lgkmcnt(0)")
    for gi in range(5):
        for cs in range(2):
            a(f"buffer_store_dwordx4 {v(D+(gi*2+cs)*4,4)}, v{RA+2+cs}, {SWS}, s{9 if gi < 4 else 13} offen offset:{gi*256 if gi < 4 else 0}{SC}")
    fin(a)

LAUNCH = "; @launch kernel=k1_kernel grid=(512,1,1) block=(512,1,1) lds=81920"
NX = 3; NW = 4; IL = 0; ROT = 0
def k1(a, sc="", scq="", pf=0, only="", ldm="", nx=3, nw=4, gp=0, il=1, ap=0, rot=1, swap=0):
    global SC, SCQ, PF, LDM, NX, NW, IL, ROT
    ROT = rot
    IL = il
    NX = nx; NW = nw
    LDM = ldm
    SC = sc; SCQ = scq; PF = pf
    kernel_header(a, "k1_kernel")
    a(f"s_cmp_ge_u32 s2, {240 if only == 'gemm' else 512}")
    a("s_cbranch_scc1 K1_EXIT")
    if only == "aux":
        a(f"s_cmp_lt_u32 s2, 240")
        a("s_cbranch_scc1 K1_EXIT")
    if swap: a("s_xor_b32 s2, s2, 256")
    a.tstart()
    common_prologue(a)
    a("s_cmp_ge_u32 s2, 240")
    a("s_cbranch_scc1 K1_AUX")
    if gp: a(f"s_setprio {gp}")
    gemm_role(a)
    a.label("K1_AUX")
    if ap: a(f"s_setprio {ap}")
    a("s_cmp_ge_u32 s3, 6")
    a("s_cbranch_scc1 K1_EXIT")
    a("s_sub_u32 s5, s2, 256")
    a("s_cmp_ge_u32 s5, 240")
    a("s_cbranch_scc1 K1_AUXA")
    a("s_cmp_ge_u32 s3, 4")
    a("s_cbranch_scc1 K1_EXIT")
    a("s_lshl_b32 s4, s5, 1")
    a("s_add_u32 s4, s4, s3")
    a("s_and_b32 s6, s5, 7")
    a("s_lshr_b32 s7, s5, 3")
    aux_prologue(a)
    a("s_cmp_lt_u32 s3, 2")
    a("s_cbranch_scc1 K1_KGEN")
    a("s_mul_i32 s4, s6, 40")
    a("s_add_u32 s4, s4, s7")
    a("s_cmp_eq_u32 s3, 2")
    a("s_cbranch_scc1 K1_TRANS")
    a("s_add_u32 s4, s4, 30")
    a("s_cmp_lt_u32 s7, 10")
    a("s_cbranch_scc1 K1_TRANS")
    a("s_lshl_b32 s4, s6, 3")
    a("s_add_u32 s4, s4, s7")
    a("s_sub_u32 s4, s4, 10")
    a("s_cmp_lt_u32 s7, 18")
    a("s_cbranch_scc1 K1_GATE")
    a("s_sub_u32 s4, s5, 144")
    a("s_cmp_lt_u32 s7, 28")
    a("s_cbranch_scc1 K1_WOT")
    a("s_endpgm ")
    a.label("K1_AUXA")
    aux_prologue(a)
    a("s_and_b32 s4, s2, 15")
    a("s_lshr_b32 s5, s2, 8")
    a("s_lshl_b32 s5, s5, 4")
    a("s_add_u32 s4, s4, s5")
    a("s_mul_i32 s4, s4, 5")
    a("s_add_u32 s4, s4, s3")
    a("s_add_u32 s4, s4, 480")
    a("s_cmp_lt_u32 s3, 5")
    a("s_cbranch_scc1 K1_KGEN")
    a("s_cmp_lg_u32 s2, 511")
    a("s_cbranch_scc1 K1_EXIT")
    for i in range(4): a(f"v_mov_b32 v{4+i}, 0")
    a("v_lshlrev_b32 v2, 4, v0")
    a(f"s_mov_b32 s4, {FL}")
    a(f"buffer_store_dwordx4 v[4:7], v2, {SWS}, s4 offen sc1")
    a("s_endpgm ")
    a.label("K1_GATE"); gate_role(a)
    a.label("K1_KGEN")
    if 'K' in only: a("s_endpgm ")
    kgen_role(a)
    a.label("K1_TRANS")
    if 'T' in only: a("s_endpgm ")
    trans_role(a)
    a.label("K1_EXIT"); a("s_endpgm ")
    kernel_desc(a, "k1_kernel", 128)
```

```python
from asmlib import *
from layout import *
import struct, math

def f2u(x): return struct.unpack("<I", struct.pack("<f", x))[0]

def srd(a, d, ptr, size):
    a(f"s_mov_b32 s{d}, s{ptr}")
    a(f"s_and_b32 s{d+1}, s{ptr+1}, 0xffff")
    a(f"s_mov_b32 s{d+2}, {size}")
    a(f"s_mov_b32 s{d+3}, 0x20000")

def common_prologue(a):
    a("s_load_dwordx16 s[16:31], s[0:1], 0")
    a("s_load_dwordx16 s[32:47], s[0:1], 64")
    a("v_lshrrev_b32 v1, 6, v0")
    a("v_and_b32 v0, 63, v0")
    a("v_readfirstlane_b32 s3, v1")

def aux_prologue(a):
    a("s_waitcnt lgkmcnt(0)")
    a.stamp(7)
    srd(a, 48, 46, WS_SIZE)

SWS = "s[48:51]"
FUSED = 0
HSK = 163776
def fin(a):
    if FUSED:
        a("s_mov_b64 exec, -1")
        a("s_branch P2")
    else: a.end()

def gemm_role(a):
    a("s_and_b32 s4, s2, 7")
    a("s_lshr_b32 s5, s2, 3")
    a("s_and_b32 s6, s4, 1")
    a("s_mul_i32 s6, s6, 30")
    a("s_add_u32 s6, s6, s5")
    a("s_lshr_b32 s7, s6, 2")
    a("s_and_b32 s6, s6, 3")
    a("s_lshr_b32 s63, s4, 1")
    a("s_lshl_b32 s63, s63, 2")
    a("s_add_u32 s8, s63, s6")
    T = 32
    a("s_cmp_lt_u32 s3, 4")
    a("s_cbranch_scc1 K1_CONS")
    LO = 4
    if ROT:
        a("s_and_b32 s58, s4, 1")
        a("s_mul_i32 s58, s58, 7")
        a("s_sub_u32 s58, s7, s58")
        a("s_mul_i32 s58, s58, 5")
        a("s_lshr_b32 s58, s58, 2")
        a("s_mul_i32 s59, s6, 5")
        a("s_add_u32 s59, s59, 1")
        a("s_lshr_b32 s59, s59, 1")
        a("s_add_u32 s13, s58, s59")
        a("s_sub_u32 s58, s13, 10")
        a("s_cmp_ge_u32 s13, 10")
        a("s_cselect_b32 s13, s58, s13")
        a("s_lshl_b32 s58, s13, 1")
        a("s_sub_u32 s58, 20, s58")
    a(f"v_lshrrev_b32 v{T+1}, 4, v0")
    a(f"s_and_b32 s11, s3, {0 if L2W else 1}")
    a("s_lshl_b32 s12, s11, 12")
    a(f"s_cmp_ge_u32 s3, {5 if L2W else 6}")
    a("s_cbranch_scc1 K1_LDW")
    a(f"v_lshrrev_b32 v{T}, 3, v0")
    a(f"v_mul_u32_u24 v{T}, 1280, v{T}")
    a(f"v_and_b32 v{T+2}, 7, v0")
    a(f"v_xor_b32 v{T+2}, v{T+2}, v{T+1}")
    a(f"v_lshl_add_u32 v{LO}, v{T+2}, 4, v{T}")
    a(f"v_xor_b32 v{T+2}, 4, v{T+2}")
    a(f"v_lshl_add_u32 v{LO+1}, v{T+2}, 4, v{T}")
    a(f"v_add_u32 v{LO+1}, {10240-1024}, v{LO+1}")
    a(f"v_add_u32 v{LO+2}, {2*(10240-1024)}, v{LO}")
    a(f"v_add_u32 v{LO+3}, {2*(10240-1024)}, v{LO+1}")
    a(f"s_mul_i32 s9, s8, {128*1280}")
    a(f"s_mul_i32 s11, s11, {32*1280}")
    a("s_add_u32 s9, s9, s11")
    a(f"s_mov_b32 s10, {64*1280}")
    a(f"s_mov_b32 s11, {(128 - 64*1280) & 0xffffffff}")
    a(f"s_mov_b32 s60, {NX*16384}")
    a(f"s_mov_b32 s61, {NX*16384}")
    a(f"s_mov_b32 s15, {2 if ST else 2*NX-2}")
    a(f"s_mov_b32 s62, {20-(2*NX-2)}")
    a("s_mov_b32 s56, -2"); a("s_mov_b32 s57, 4")
    if L2W: a(f"s_mov_b32 s56, {32*1280}")
    if ROT:
        a("s_lshl_b32 s13, s13, 7")
        a("s_add_u32 s9, s9, s13")
        a("s_mov_b32 s59, 1280")
    a("s_waitcnt lgkmcnt(0)")
    srd(a, 52, 16, 2048 * 1280)
    a("s_branch K1_LD0")
    a.label("K1_LDW")
    a(f"v_mul_u32_u24 v{T}, 3840, v{T+1}")
    a(f"v_and_b32 v{T+2}, 15, v0")
    a(f"v_lshlrev_b32 v{T+3}, 2, v{T+1}")
    a(f"v_xor_b32 v{T+2}, v{T+2}, v{T+3}")
    a(f"v_lshl_add_u32 v{LO}, v{T+2}, 4, v{T}")
    for e in range(1, 4): a(f"v_add_u32 v{LO+e}, {e*(15360-1024)}, v{LO}")
    a("s_lshl_b32 s9, s7, 8")
    a(f"s_mul_i32 s11, s11, {4*15360}")
    a("s_add_u32 s9, s9, s11")
    a(f"s_mov_b32 s10, {32*3840}")
    a(f"s_mov_b32 s11, {32*3840}")
    a(f"s_add_u32 s12, s12, {NX*16384}")
    a(f"s_mov_b32 s60, {NX*16384+NW*8192}")
    a(f"s_mov_b32 s61, {NW*8192}")
    a(f"s_mov_b32 s15, {ST if ST else NW-1}")
    a(f"s_mov_b32 s62, {20-(NW-1)}")
    a("s_mov_b32 s56, -1"); a("s_mov_b32 s57, 3")
    if L2W: a(f"s_mov_b32 s56, {4*15360}")
    if ROT:
        a(f"s_mul_i32 s13, s13, {64*3840}")
        a("s_add_u32 s9, s9, s13")
        a(f"s_mov_b32 s59, {640*3840}")
    a("s_waitcnt lgkmcnt(0)")
    srd(a, 52, 18, 640 * 3840)
    def issue():
        a("s_mov_b32 m0, s12")
        for e in range(4): a(f"buffer_load_dwordx4 v{LO+e}, s[52:55], s9 offen offset:{e*1024}{LDM} lds")
        if L2W:
            a("s_add_u32 m0, s12, 4096")
            a("s_add_u32 s57, s9, s56")
            for e in range(4): a(f"buffer_load_dwordx4 v{LO+e}, s[52:55], s57 offen offset:{e*1024}{LDM} lds")
        a("s_add_u32 s12, s12, 8192")
        a("s_add_u32 s9, s9, s10")
        if ROT:
            a("s_sub_u32 s58, s58, 1")
            a("s_cmp_eq_u32 s58, 0")
            a("s_cselect_b32 s14, s59, 0")
            a("s_sub_u32 s9, s9, s14")
        a("s_mov_b32 s14, s10")
        a("s_mov_b32 s10, s11")
        a("s_mov_b32 s11, s14")
        a("s_sub_u32 s14, s12, s61")
        a("s_cmp_ge_u32 s12, s60")
        a("s_cselect_b32 s12, s14, s12")
    a.label("K1_LD0")
    if FUSED:
        a("s_mov_b32 s13, s15")
        a(f"v_mov_b32 v{T}, {HSK}")
        a("s_sub_u32 s14, s3, 4")
        a("s_lshl_b32 s14, s14, 2")
        a(f"v_add_u32 v{T+1}, s14, v{T}")
        a.label("K1_LD0F")
    issue()
    a("s_sub_u32 s15, s15, 1")
    a("s_cmp_lg_u32 s15, 0")
    a(f"s_cbranch_scc1 K1_LD0{'F' if FUSED else ''}")
    a.stamp(0)
    if FUSED:
        a("s_barrier")
        def freemin():
            a(f"v_min3_u32 v{T+4}, v{T+4}, v{T+5}, v{T+6}")
            a(f"v_min_u32 v{T+4}, v{T+4}, v{T+7}")
            a(f"v_readfirstlane_b32 s16, v{T+4}")
        a.label("K1_LD1")
        a(f"ds_read_b128 {v(T+4,4)}, v{T} offset:16")
        a("s_sub_u32 s14, s13, 2")
        a("s_and_b32 s14, s14, s56")
        a(f"v_mov_b32 v{T+2}, s14")
        a("s_and_b32 s17, s13, s56")
        a("s_sub_u32 s17, s17, s57")
        a("s_waitcnt vmcnt(8) lgkmcnt(0)")
        a(f"ds_write_b32 v{T+1}, v{T+2}")
        freemin()
        a("s_cmp_ge_u32 s16, s17")
        a("s_cbranch_scc1 K1_LDGO")
        a.label("K1_LDP")
        a(f"ds_read_b128 {v(T+4,4)}, v{T} offset:16")
        a("s_waitcnt lgkmcnt(0)")
        freemin()
        a("s_cmp_lt_u32 s16, s17")
        a("s_cbranch_scc1 K1_LDP")
        a.label("K1_LDGO")
        issue()
        a("s_add_u32 s13, s13, 1")
        a("s_cmp_lg_u32 s13, 20")
        a("s_cbranch_scc1 K1_LD1")
        for n, val in ((8, 18), (4, 19), (0, 20)):
            a(f"s_and_b32 s14, {val}, s56")
            a(f"v_mov_b32 v{T+2}, s14")
            a(f"s_waitcnt vmcnt({n})")
            a(f"ds_write_b32 v{T+1}, v{T+2}")
        a.stamp(1)
        fin(a)
    else:
        a(f"s_cmp_ge_u32 s3, {5 if L2W else 6}")
        a("s_cbranch_scc1 K1_LDW1")
        NI = 8 if L2W else 4
        for nm, fl in (("X", 2*NX-4), ("W", NW-2)):
            if nm == "W": a.label("K1_LDW1")
            a(f"s_waitcnt vmcnt({(0 if nm == 'X' else NI*(ST-1)) if ST else NI*fl})")
            a("s_barrier")
            a.stamp(1)
            if ST:
                for _ in range(2*NX-4 if nm == "X" else NW-1-ST): issue()
            a.label(f"K1_LD1{nm}")
            issue()
            a("s_sub_u32 s62, s62, 1")
            a("s_cmp_lg_u32 s62, 0")
            a(f"s_waitcnt vmcnt({NI*fl})")
            a("s_barrier")
            a(f"s_cbranch_scc1 K1_LD1{nm}")
            for n in range(fl-1, -1, -1):
                a(f"s_waitcnt vmcnt({NI*n})")
                a("s_barrier")
            a.end()
    a.label("K1_CONS")
    XA = 12; XC = 16; WA = 20; WC = 22; EA = 24
    XF = 32; WF = 48; ACC = 64; PFO = 5
    def pf():
        if not PF: return
        a(f"buffer_load_dword v4, v{PFO}, s[52:55], s58 offen")
        a("s_add_u32 s58, s58, s57")
    if PF:
        a("s_lshr_b32 s59, s3, 1")
        a("s_add_u32 s59, s59, 1")
        a(f"v_lshrrev_b32 v{T}, 1, v0")
        a(f"v_and_b32 v{T+1}, 1, v0")
        a("s_bitcmp1_b32 s3, 0")
        a("s_cbranch_scc1 K1_PFX")
        a(f"v_mul_u32_u24 v{T}, 3840, v{T}")
        a(f"v_lshl_add_u32 v{PFO}, v{T+1}, 7, v{T}")
        a("s_lshl_b32 s58, s59, 2")
        a("s_add_u32 s58, s58, s6")
        a(f"s_mul_i32 s58, s58, {32*3840}")
        a("s_lshl_b32 s57, s7, 8")
        a("s_add_u32 s58, s58, s57")
        a(f"s_mov_b32 s57, {256*3840}")
        a("s_waitcnt lgkmcnt(0)")
        srd(a, 52, 18, 640 * 3840)
        a("s_branch K1_PFGO")
        a.label("K1_PFX")
        a(f"v_and_b32 v{T}, 15, v{T}")
        a(f"v_mul_u32_u24 v{T}, 1280, v{T}")
        a(f"v_lshl_add_u32 v{PFO}, v{T+1}, 7, v{T}")
        a("s_and_b32 s57, s4, 1")
        a("s_mul_i32 s57, s57, 7")
        a("s_sub_u32 s57, s7, s57")
        a("s_lshl_b32 s58, s8, 3")
        a("s_add_u32 s58, s58, s57")
        a(f"s_mul_i32 s58, s58, {16*1280}")
        a("s_lshl_b32 s57, s59, 8")
        a("s_add_u32 s58, s58, s57")
        a("s_mov_b32 s57, 512")
        a("s_waitcnt lgkmcnt(0)")
        srd(a, 52, 16, 2048 * 1280)
        a.label("K1_PFGO")
        pf()
        if PF == 3: pf()
    a("s_lshr_b32 s13, s3, 1")
    a("s_and_b32 s14, s3, 1")
    a(f"v_and_b32 v{T}, 31, v0")
    a(f"v_lshrrev_b32 v{T+1}, 5, v0")
    a(f"v_bfe_u32 v{T+2}, v0, 1, 3")
    a(f"v_xor_b32 v{T+2}, v{T+2}, v{T+1}")
    a(f"v_lshlrev_b32 v{T+2}, 4, v{T+2}")
    a(f"v_lshl_add_u32 v{T+2}, v{T}, 7, v{T+2}")
    a("s_lshl_b32 s12, s13, 13")
    a(f"v_add_u32 v{XA}, s12, v{T+2}")
    for ks in range(1, 4):
        a(f"v_xor_b32 v{XA+ks}, {ks*32}, v{XA}")
    for ks in range(4): a(f"v_mov_b32 v{XC+ks}, v{XA+ks}")
    a(f"v_bfe_u32 v{T+2}, v0, 2, 2")
    a(f"v_lshl_add_u32 v{T+3}, v{T+1}, 3, v{T+2}")
    a(f"v_lshlrev_b32 v{T+3}, 8, v{T+3}")
    a(f"v_and_b32 v{T+4}, 3, v0")
    a(f"v_lshl_add_u32 v{T+3}, v{T+4}, 3, v{T+3}")
    a(f"v_bfe_u32 v{T+4}, v0, 4, 1")
    a(f"v_lshl_add_u32 v{T+3}, v{T+4}, 5, v{T+3}")
    a(f"v_add_u32 v{T+3}, {NX*16384}, v{T+3}")
    a("s_lshl_b32 s12, s14, 1")
    a(f"v_xor_b32 v{T+4}, s12, v{T+2}")
    a(f"v_lshl_add_u32 v{WA}, v{T+4}, 6, v{T+3}")
    a(f"v_xor_b32 v{WA+1}, 64, v{WA}")
    for i in range(2): a(f"v_mov_b32 v{WC+i}, v{WA+i}")
    a("s_mov_b32 s59, 0")
    for i in range(64): a(f"v_mov_b32 v{ACC+i}, 0")
    a("s_lshl_b32 s15, s8, 2")
    a("s_lshl_b32 s12, s13, 1")
    a("s_add_u32 s15, s15, s12")
    a("s_mul_i32 s15, s15, 1280")
    a("s_waitcnt lgkmcnt(0)")
    srd(a, 48, 46, WS_SIZE)
    a("s_mov_b32 s17, 0")
    a("s_cmp_ge_u32 s7, 10")
    a("s_cbranch_scc1 K1_GEMM_V")

    def reads(c, ks):
        buf = ks
        for rb in range(2):
            a(f"ds_read_b128 {v(XF+buf*8+rb*4,4)}, v{XC + 2*(c&1) + ks} offset:{rb*4096}")
        for cb in range(2):
            for s_ in range(2):
                a(f"ds_read_b64_tr_b16 {v(WF+buf*8+cb*4+s_*2,2)}, v{WC+cb} offset:{ks*4096 + s_*1024}")
    def mfmas(orient, buf):
        for rb in range(2):
            for cb in range(2):
                acc = v(ACC + (rb * 2 + cb) * 16, 16)
                x = v(XF + buf * 8 + rb * 4, 4); w = v(WF + buf * 8 + cb * 4, 4)
                A, B = (w, x) if orient == "qk" else (x, w)
                a(f"v_mfma_f32_32x32x16_bf16 {acc}, {A}, {B}, {acc}")
    HW = 8; HA = 6; HF = 7
    def fullchk():
        a(f"v_min3_u32 v{HW}, v{HW}, v{HW+1}, v{HW+2}")
        a(f"v_min_u32 v{HW}, v{HW}, v{HW+3}")
        a(f"v_cmp_gt_u32 vcc, s18, v{HW}")
    def poll(lab):
        a.label(lab)
        a(f"ds_read_b128 {v(HW,4)}, v{HA}")
        a("s_waitcnt lgkmcnt(0)")
        fullchk()
        a(f"s_cbranch_vccnz {lab}")
    def body(orient):
        a.stamp(0)
        if FUSED:
            a(f"v_mov_b32 v{HA}, {HSK}")
            a("s_lshl_b32 s18, s3, 2")
            a(f"v_add_u32 v{HF}, s18, v{HA}")
            a("v_mov_b32 v5, 0")
            a("s_mov_b32 s18, 1")
        a("s_barrier")
        if FUSED: poll(f"K1_P0_{orient}")
        a.stamp(1)
        if IL and not FUSED:
            def rx(c, ks, rb): a(f"ds_read_b128 {v(XF+ks*8+rb*4,4)}, v{XC + 2*(c&1) + ks} offset:{rb*4096}")
            def rw(ks, cb):
                for s_ in range(2): a(f"ds_read_b64_tr_b16 {v(WF+ks*8+cb*4+s_*2,2)}, v{WC+cb} offset:{ks*4096 + s_*1024}")
            def m(buf, rb, cb):
                acc = v(ACC + (rb * 2 + cb) * 16, 16)
                x = v(XF + buf * 8 + rb * 4, 4); w = v(WF + buf * 8 + cb * 4, 4)
                A, B = (w, x) if orient == "qk" else (x, w)
                a(f"v_mfma_f32_32x32x16_bf16 {acc}, {A}, {B}, {acc}")
            reads(0, 0); reads(0, 1)
            a("s_mov_b32 s16, 10")
            a("s_waitcnt lgkmcnt(6)")
            a.label(f"K1_GL_{orient}")
            for c in range(2):
                m(0, 0, 0)
                a("s_add_u32 s59, s59, 8192")
                a(f"s_cmp_eq_u32 s59, {NW*8192}")
                a("s_cselect_b32 s59, 0, s59")
                for i in range(2): a(f"v_add_u32 v{WC+i}, s59, v{WA+i}")
                if c & 1:
                    a("s_add_u32 s17, s17, 16384")
                    a(f"s_cmp_eq_u32 s17, {NX*16384}")
                    a("s_cselect_b32 s17, 0, s17")
                    for ks in range(2): a(f"v_add_u32 v{XC+ks}, s17, v{XA+ks}")
                else:
                    for ks in range(2, 4): a(f"v_add_u32 v{XC+ks}, s17, v{XA+ks}")
                m(0, 0, 1)
                a("s_waitcnt lgkmcnt(0)")
                a("s_barrier")
                rx(c+1, 0, 0); m(0, 1, 0); rw(0, 0); m(0, 1, 1); rx(c+1, 0, 1); rw(0, 1)
                m(1, 0, 0)
                if c == 1:
                    a("s_sub_u32 s16, s16, 1")
                    a("s_cmp_lg_u32 s16, 0")
                m(1, 0, 1); rx(c+1, 1, 0); m(1, 1, 0); rw(1, 0); m(1, 1, 1); rx(c+1, 1, 1); rw(1, 1)
                a("s_waitcnt lgkmcnt(6)")
            a(f"s_cbranch_scc1 K1_GL_{orient}")
            a.stamp(2)
            return
        reads(0, 0)
        a("s_mov_b32 s16, 5")
        a.label(f"K1_GL_{orient}")
        if PF in (1, 2):
            a(f"s_cmp_lg_u32 s16, {6 - PF}")
            a(f"s_cbranch_scc1 K1_NPF_{orient}")
            pf()
            a.label(f"K1_NPF_{orient}")
        for c in range(4):
            if FUSED:
                a(f"ds_read_b128 {v(HW,4)}, v{HA}")
                a("s_add_u32 s18, s18, 1")
                a("s_min_u32 s18, s18, 20")
                a("v_add_u32 v5, 1, v5")
            reads(c, 1)
            if c & 1:
                a("s_add_u32 s17, s17, 16384")
                a(f"s_cmp_eq_u32 s17, {NX*16384}")
                a("s_cselect_b32 s17, 0, s17")
                for ks in range(4): a(f"v_add_u32 v{XC+ks}, s17, v{XA+ks}")
            a("s_add_u32 s59, s59, 8192")
            a(f"s_cmp_eq_u32 s59, {NW*8192}")
            a("s_cselect_b32 s59, 0, s59")
            for i in range(2): a(f"v_add_u32 v{WC+i}, s59, v{WA+i}")
            a("s_waitcnt lgkmcnt(6)")
            mfmas(orient, 0)
            if FUSED:
                fullchk()
                a("s_waitcnt lgkmcnt(0)")
                a(f"ds_write_b32 v{HF}, v5 offset:16")
                a(f"s_cbranch_vccnz K1_SL_{orient}{c}")
            else:
                a("s_waitcnt lgkmcnt(0)")
                a("s_barrier")
            reads(c + 1, 0)
            mfmas(orient, 1)
            if FUSED: a.label(f"K1_SD_{orient}{c}")
        a("s_sub_u32 s16, s16, 1")
        a("s_cmp_lg_u32 s16, 0")
        a(f"s_cbranch_scc1 K1_GL_{orient}")
        a.stamp(2)
    def slow(orient):
        if not FUSED: return
        for c in range(4):
            a.label(f"K1_SL_{orient}{c}")
            mfmas(orient, 1)
            poll(f"K1_PP_{orient}{c}")
            reads(c + 1, 0)
            a(f"s_branch K1_SD_{orient}{c}")

    a("s_lshl_b32 s12, s7, 4")
    a("s_lshl_b32 s60, s14, 3")
    a("s_add_u32 s12, s12, s60")
    a(f"v_add_u32 v{T+2}, s12, v{T+1}")
    a(f"v_lshlrev_b32 v{T+6}, 4, v{T}")
    a(f"v_lshl_add_u32 v{T+7}, v{T}, 3, 0")
    a(f"v_add_u32 v{T+7}, 1024, v{T+7}")
    a(f"s_mov_b32 s61, {HS}")
    a(f"s_add_u32 s63, s15, {HS}")
    for cb in range(2):
        for p in range(2):
            e = EA + cb * 2 + p
            mk = 36 + 2 * (cb * 2 + p)
            a(f"v_add_u32 v{T+3}, {4*cb+2*p}, v{T+2}")
            a(f"v_mul_u32_u24 v{T+4}, 205, v{T+3}")
            a(f"v_lshrrev_b32 v{T+4}, 10, v{T+4}")
            a(f"v_mul_u32_u24 v{T+5}, 5, v{T+4}")
            a(f"v_sub_u32 v{T+3}, v{T+3}, v{T+5}")
            a(f"v_lshlrev_b32 v{T+4}, 1, v{T+4}")
            a(f"v_cmp_lt_u32 vcc, 2, v{T+3}")
            a(f"v_subrev_u32 v{T+5}, 3, v{T+3}")
            a(f"v_cndmask_b32 v{T+5}, v{T+3}, v{T+5}, vcc")
            a(f"v_addc_co_u32 v{T+4}, vcc, 0, v{T+4}, vcc")
            a(f"v_cmp_eq_u32 s[{mk}:{mk+1}], 2, v{T+3}")
            a(f"v_lshl_add_u32 v{T+5}, v{T+5}, 9, v{T+6}")
            a(f"v_cndmask_b32 v{T+5}, v{T+5}, v{T+7}, s[{mk}:{mk+1}]")
            a(f"v_mad_u32_u24 v{e}, v{T+4}, s61, v{T+5}")
    qs = (20 ** -0.5) * math.log2(math.e)
    a(f"s_mov_b32 s62, {f2u(qs)}")
    a("s_cmp_ge_u32 s7, 5")
    a("s_cselect_b32 s62, 1.0, s62")
    body("qk")
    for rb in range(2):
        for cb in range(2):
            ac = ACC + (rb * 2 + cb) * 16
            for p in range(2):
                r = ac + p * 8
                mk = 36 + 2 * (cb * 2 + p)
                for i in range(0, 8, 2): a(f"v_pk_mul_f32 {v(r+i,2)}, {v(r+i,2)}, s[62:63] op_sel_hi:[1,0]")
                for i in range(4): a(f"v_cvt_pk_bf16_f32 v{r+i}, v{r+2*i}, v{r+2*i+1}")
                a(f"v_permlane32_swap_b32 v{r}, v{r+2}")
                a(f"v_permlane32_swap_b32 v{r+1}, v{r+3}")
                a(f"s_andn2_b64 exec, -1, s[{mk}:{mk+1}]")
                a(f"buffer_store_dwordx4 {v(r,4)}, v{EA+cb*2+p}, {SWS}, s15 offen offset:{rb*1280}{SCQ}")
                a(f"s_cmp_eq_u64 s[{mk}:{mk+1}], 0")
                a(f"s_cbranch_scc1 K1_NM{rb}{cb}{p}")
                a(f"s_mov_b64 exec, s[{mk}:{mk+1}]")
                a(f"buffer_store_dwordx2 {v(r,2)}, v{EA+cb*2+p}, {SWS}, s15 offen offset:{rb*1280}{SCQ}")
                a(f"buffer_store_dwordx2 {v(r+2,2)}, v{EA+cb*2+p}, {SWS}, s63 offen offset:{rb*1280}{SCQ}")
                a.label(f"K1_NM{rb}{cb}{p}")
                a("s_mov_b64 exec, -1")
    fin(a)
    slow("qk")
    a.label("K1_GEMM_V")
    a("s_sub_u32 s12, s7, 10")
    a("s_lshl_b32 s12, s12, 7")
    a("s_lshl_b32 s60, s14, 6")
    a("s_add_u32 s12, s12, s60")
    a(f"s_mov_b32 s61, {HS}")
    a(f"v_lshlrev_b32 v{T+6}, 4, v{T+1}")
    for cb in range(2):
        a(f"v_add_u32 v{T+3}, s12, v{T}")
        if cb: a(f"v_add_u32 v{T+3}, 32, v{T+3}")
        a(f"v_mul_u32_u24 v{T+4}, 3277, v{T+3}")
        a(f"v_lshrrev_b32 v{T+4}, 16, v{T+4}")
        a(f"v_mul_u32_u24 v{T+5}, 20, v{T+4}")
        a(f"v_sub_u32 v{T+3}, v{T+3}, v{T+5}")
        a(f"v_lshl_add_u32 v{T+5}, v{T+3}, 5, v{T+6}")
        a(f"v_mad_u32_u24 v{EA+cb}, v{T+4}, s61, v{T+5}")
    a(f"s_add_u32 s15, s15, {VF}")
    body("v")
    for rb in range(2):
        for cb in range(2):
            ac = ACC + (rb * 2 + cb) * 16
            for g in range(2):
                r = ac + g * 8
                for i in range(4): a(f"v_cvt_pk_bf16_f32 v{r+i}, v{r+2*i}, v{r+2*i+1}")
                a(f"buffer_store_dwordx4 {v(r,4)}, v{EA+cb}, {SWS}, s15 offen offset:{rb*1280+g*640}{SCQ}")
    fin(a)
    slow("v")

def gate_role(a):
    srd(a, 52, 16, 2048 * 1280)
    SX = "s[52:55]"
    G = 8; X = 32; ACC = 112; T = 2
    if FUSED: a.label("K1_GATE2")
    a(f"s_mul_i32 s5, s4, {32*1280}")
    a(f"v_and_b32 v{T}, 15, v0")
    a(f"v_lshlrev_b32 v{T+1}, 4, v{T}")
    for e in range(5):
        a(f"global_load_dwordx4 {v(G+4*e,4)}, v{T+1}, s[40:41] offset:{e*256}")
    a(f"v_lshrrev_b32 v{T+2}, 4, v0")
    a(f"v_mul_u32_u24 v{T+3}, 1280, v{T+2}")
    a(f"v_add_u32 v{T+3}, v{T+3}, v{T+1}")
    for grp in range(8):
        a(f"v_mov_b32 v{ACC+grp}, 0")
    def gl(grp):
        for e in range(5):
            a(f"buffer_load_dwordx4 {v(X+(grp&3)*20+e*4,4)}, v{T+3}, {SX}, s5 offen offset:{e*256}")
        if grp < 7: a(f"s_add_u32 s5, s5, {4*1280}")
    for grp in range(4): gl(grp)
    for grp in range(8):
        a(f"s_waitcnt vmcnt({min(3, 7-grp)*5})")
        for i in range(20):
            a(f"v_dot2c_f32_bf16 v{ACC+grp}, v{X+(grp&3)*20+i}, v{G+i}")
        if grp < 4: gl(grp + 4)
    for sh in (8, 4, 2, 1):
        for grp in range(8):
            a(f"v_add_f32_dpp v{ACC+grp}, v{ACC+grp}, v{ACC+grp} row_ror:{sh} row_mask:0xf bank_mask:0xf")
    for k in range(1, 8):
        a(f"v_cmp_eq_u32 vcc, {k}, v{T}")
        a(f"v_cndmask_b32 v{ACC}, v{ACC}, v{ACC+k}, vcc")
    R = ACC
    a(f"v_cvt_pk_bf16_f32 v{R}, v{R}, v{R}")
    a(f"v_lshlrev_b32 v{R}, 16, v{R}")
    a(f"v_mul_f32 v{R}, {f2u(-math.log2(math.e))}, v{R}")
    a(f"v_exp_f32 v{R}, v{R}")
    a(f"v_add_f32 v{R}, 1.0, v{R}")
    a(f"v_rcp_f32 v{R}, v{R}")
    a(f"v_cvt_pk_bf16_f32 v{R}, v{R}, v{R}")
    a(f"v_lshlrev_b32 v{R}, 16, v{R}")
    a(f"v_lshl_add_u32 v{T+3}, v{T}, 2, v{T+2}")
    a(f"v_lshlrev_b32 v{T+3}, 2, v{T+3}")
    a("s_lshl_b32 s5, s4, 7")
    a(f"s_add_u32 s5, s5, {GT}")
    a(f"v_cmp_gt_u32 vcc, 8, v{T}")
    a("s_and_saveexec_b64 s[6:7], vcc")
    a(f"buffer_store_dword v{R}, v{T+3}, {SWS}, s5 offen{SC}")
    if FUSED:
        a("s_mov_b64 exec, -1")
        a("s_add_u32 s4, s4, 3")
        a("s_cmp_lt_u32 s4, s60")
        a("s_cbranch_scc1 K1_GATE2")
    fin(a)

def cmul(a, d, x, y):
    a(f"v_pk_mul_f32 {v(d,2)}, {v(x,2)}, {v(y,2)} op_sel:[0,0] op_sel_hi:[0,1]")
    a(f"v_pk_fma_f32 {v(d,2)}, {v(x,2)}, {v(y,2)}, {v(d,2)} op_sel:[1,1,0] op_sel_hi:[1,0,1] neg_lo:[0,1,0]")

def cmul2(a, d, x, y):
    for o in (0, 2):
        a(f"v_pk_mul_f32 {v(d+o,2)}, {v(x+o,2)}, {v(y+o,2)} op_sel:[0,0] op_sel_hi:[0,1]")
    for o in (0, 2):
        a(f"v_pk_fma_f32 {v(d+o,2)}, {v(x+o,2)}, {v(y+o,2)}, {v(d+o,2)} op_sel:[1,1,0] op_sel_hi:[1,0,1] neg_lo:[0,1,0]")

def kgen_role(a):
    log2e = math.log2(math.e)
    a("s_lshl_b32 s5, s4, 8")
    T = 2
    P = 52
    DSK = 8
    a(f"v_lshl_add_u32 v{T}, v0, 2, s5")
    for i, pr in enumerate((24, 26, 28, 30, 32, 34)):
        a(f"global_load_dword v{P+i}, v{T}, s[{pr}:{pr+1}]")
    a("s_lshl_b32 s6, s4, 1")
    a(f"v_mov_b32 v{T+1}, s6")
    a(f"global_load_ushort v{P+6}, v{T+1}, s[36:37]")
    a(f"global_load_ushort v{DSK}, v{T+1}, s[38:39]")
    SL = 528
    if not FUSED: a("s_mul_i32 s7, s3, 13312")
    WRA = 9; RDA = 10; TB0 = 11; TB1 = 12; TB2 = 13
    a(f"v_lshl_add_u32 v{WRA}, v0, 3, s7")
    a(f"v_and_b32 v{T+2}, 15, v0")
    a(f"v_lshrrev_b32 v{T+3}, 4, v0")
    a(f"v_mul_u32_u24 v{RDA}, {SL}, v{T+2}")
    a(f"v_lshl_add_u32 v{RDA}, v{T+3}, 4, v{RDA}")
    a(f"v_add_u32 v{RDA}, s7, v{RDA}")
    a("s_add_u32 s8, s7, 8448")
    a(f"v_lshlrev_b32 v{TB0}, 4, v{T+2}")
    a(f"v_lshl_add_u32 v{TB0}, v{T+3}, 2, v{TB0}")
    a(f"v_lshl_add_u32 v{TB0}, v{TB0}, 2, s8")
    a(f"v_lshlrev_b32 v{T+4}, 3, v{T+2}")
    a(f"v_lshl_add_u32 v{T+4}, v{T+3}, 2, v{T+4}")
    a(f"v_add_u32 v{T+4}, 256, v{T+4}")
    a(f"v_lshlrev_b32 v{T+5}, 2, v{T+2}")
    a(f"v_lshl_add_u32 v{T+5}, v{T+3}, 6, v{T+5}")
    a(f"v_add_u32 v{T+5}, 256, v{T+5}")
    a(f"v_cmp_gt_u32 vcc, 32, v0")
    a(f"v_cndmask_b32 v{TB1}, v{T+5}, v{T+4}, vcc")
    a(f"v_lshl_add_u32 v{TB1}, v{TB1}, 2, s8")
    a(f"v_lshlrev_b32 v{T+4}, 1, v{T+2}")
    a(f"v_lshl_add_u32 v{T+4}, v{T+3}, 6, v{T+4}")
    a(f"v_add_u32 v{T+4}, 512, v{T+4}")
    a(f"v_mov_b32 v{T+5}, 704")
    a(f"v_cmp_ge_u32 vcc, 32, v0")
    a(f"v_cndmask_b32 v{TB2}, v{T+5}, v{T+4}, vcc")
    a(f"v_lshl_add_u32 v{TB2}, v{TB2}, 2, s8")
    if FUSED: a("s_barrier")
    a("s_waitcnt vmcnt(0)")
    a.stamp(0)
    DT = 14
    hi = struct.unpack("<f", struct.pack("<f", log2e))[0]; lo = log2e - hi
    a(f"v_lshlrev_b32 v{T}, 16, v{P+6}")
    a(f"s_mov_b32 s9, {f2u(hi)}")
    a(f"v_mul_f32 v{T+1}, s9, v{T}")
    a(f"v_fma_f32 v{T+2}, v{T}, s9, -v{T+1}")
    a(f"v_mov_b32 v{T+3}, {f2u(lo)}")
    a(f"v_fmac_f32 v{T+2}, v{T}, v{T+3}")
    a(f"v_exp_f32 v{T+1}, v{T+1}")
    a(f"v_mul_f32 v{T+2}, {f2u(math.log(2.0))}, v{T+2}")
    a(f"v_fma_f32 v{T+1}, v{T+1}, v{T+2}, v{T+1}")
    a(f"v_cvt_pk_bf16_f32 v{DT}, v{T+1}, v{T+1}")
    a(f"v_lshlrev_b32 v{DT}, 16, v{DT}")
    A_ = 16; B_ = 20; C_ = 24; W_ = 28
    for grp, (re_, im_) in ((A_, (P, P + 1)), (B_, (P + 2, P + 3)), (C_, (P + 4, P + 5))):
        a(f"v_lshlrev_b32 v{grp}, 16, v{re_}")
        a(f"v_lshlrev_b32 v{grp+1}, 16, v{im_}")
        a(f"v_and_b32 v{grp+2}, 0xffff0000, v{re_}")
        a(f"v_and_b32 v{grp+3}, 0xffff0000, v{im_}")
    for i in range(4):
        a(f"v_mul_f32 v{A_+i}, v{DT}, v{A_+i}")
        a(f"v_mul_f32 v{B_+i}, v{DT}, v{B_+i}")
    cmul2(a, W_, C_, B_)
    a(f"s_mov_b32 s10, {f2u(1.0/(2*math.pi))}")
    for o in (0, 2):
        a(f"v_mul_f32 v{A_+o}, s9, v{A_+o}")
        a(f"v_mul_f32 v{A_+o+1}, s10, v{A_+o+1}")
    Z1 = 32; Z16 = 36; Z256 = 40
    def base(dst, n):
        E = 44
        a(f"s_mov_b32 s11, {f2u(float(n))}")
        for o in (0, 2):
            if n != 1:
                a(f"v_mul_f32 v{E+o}, s11, v{A_+o}")
                a(f"v_mul_f32 v{E+o+1}, s11, v{A_+o+1}")
                a(f"v_fract_f32 v{E+o+1}, v{E+o+1}")
                a(f"v_exp_f32 v{E+o}, v{E+o}")
            else:
                a(f"v_fract_f32 v{E+o+1}, v{A_+o+1}")
                a(f"v_exp_f32 v{E+o}, v{A_+o}")
        for o in (0, 2):
            a(f"v_cos_f32 v{dst+o}, v{E+o+1}")
            a(f"v_sin_f32 v{dst+o+1}, v{E+o+1}")
        for o in (0, 2):
            a(f"v_pk_mul_f32 {v(dst+o,2)}, {v(dst+o,2)}, {v(E+o,2)} op_sel:[0,0] op_sel_hi:[1,0]")
    base(Z16, 16)
    PK = 2
    cnt = [0]
    def put(src, slot, neg=False):
        p = PK + 2 * (cnt[0] & 1); cnt[0] += 1
        n = "-" if neg else ""
        a(f"v_cvt_pk_bf16_f32 v{p}, v{src}, {n}v{src+1}")
        a(f"v_cvt_pk_bf16_f32 v{p+1}, v{src+2}, {n}v{src+3}")
        a(f"ds_write_b64 v{WRA}, {v(p,2)} offset:{slot*SL}")
    CA = 44; CB = 48
    put(W_, 0, True)
    cur = W_
    for j in range(1, 16):
        nxt = CA if cur != CA else CB
        cmul2(a, nxt, cur, Z16)
        put(nxt, j, True)
        cur = nxt
    RF = 52
    for s_ in range(8):
        a(f"ds_read_b128 {v(RF+4*s_,4)}, v{RDA} offset:{64*s_}")
    base(Z1, 1)
    base(Z256, 256)
    EV = 84
    ONE = 6
    a(f"v_mov_b32 v{ONE}, 0x3f80")
    a(f"v_mov_b32 v{ONE+1}, 0x3f80")
    a(f"ds_write_b64 v{WRA}, {v(ONE,2)} offset:0")
    put(Z1, 1)
    cur = Z1
    for j in range(2, 16):
        nxt = EV + 4 * (j // 2 - 1) if j % 2 == 0 else CA
        cmul2(a, nxt, cur, Z1)
        put(nxt, j)
        cur = nxt
    LF = 112
    D = 16
    def tile(t):
        for s_ in range(4):
            a(f"ds_read_b128 {v(LF+4*s_,4)}, v{RDA} offset:{64*s_}")
    def tile_mfma(t):
        for s_ in range(4):
            a(f"s_waitcnt lgkmcnt({3-s_})")
            a(f"v_mfma_f32_16x16x32_bf16 {v(D+4*t,4)}, {v(LF+4*s_,4)}, {v(RF+4*s_,4)}, {'0' if s_==0 else v(D+4*t,4)}")
        for s_ in range(4, 8):
            a(f"ds_read_b128 {v(LF+4*(s_-4),4)}, v{RDA} offset:{64*s_}")
        for s_ in range(4, 8):
            a(f"s_waitcnt lgkmcnt({7-s_})")
            a(f"v_mfma_f32_16x16x32_bf16 {v(D+4*t,4)}, {v(LF+4*(s_-4),4)}, {v(RF+4*s_,4)}, {v(D+4*t,4)}")
    ev = lambda j: EV + 4 * (j // 2 - 1)
    tile(0)
    Z512 = 32; Z768 = 36
    cmul2(a, Z512, Z256, Z256)
    cmul2(a, Z768, Z512, Z256)
    tile_mfma(0)
    put(Z256, 0)
    for m in range(1, 8):
        cmul2(a, CA, Z256, ev(2 * m)); put(CA, m)
    for k, zb in ((8, Z512), (12, Z768)):
        put(zb, k)
        for i in range(1, 4):
            cmul2(a, CA, zb, ev(4 * i)); put(CA, k + i)
    tile(1)
    Z1024 = 88;
    cmul2(a, CB, Z512, Z512)
    tile_mfma(1)
    cur = CB
    oth = {CB: 36, 36: CB}
    for aa in range(4):
        put(cur, 2 * aa)
        cmul2(a, CA, cur, ev(8)); put(CA, 2 * aa + 1)
        nxt = oth[cur]
        cmul2(a, nxt, cur, Z256)
        cur = nxt
    put(cur, 8)
    tile(2)
    tile_mfma(2)
    a.stamp(1)
    a(f"v_lshlrev_b32 v{DSK}, 16, v{DSK}")
    a("s_mov_b64 exec, 1")
    a(f"v_add_f32 v{D}, v{D}, v{DSK}")
    a("s_mov_b64 exec, -1")
    TP = 52
    for t in range(3):
        for r in range(4):
            a(f"v_cvt_pk_bf16_f32 v{TP+4*t+r}, v{D+4*t+r}, v{D+4*t+r}")
    a(f"ds_write_b128 v{TB0}, {v(TP,4)}")
    a(f"ds_write_b128 v{TB1}, {v(TP+4,4)}")
    a(f"ds_write_b64 v{TB2}, {v(TP+8,2)}")
    a(f"ds_write_b64 v{TB2}, {v(TP+10,2)} offset:128")
    RA = 2
    a(f"v_lshlrev_b32 v{RA}, 3, v0")
    a(f"v_lshlrev_b32 v{RA+1}, 2, v0")
    a(f"v_add_u32 v{RA+2}, 128, v{RA+1}")
    a(f"v_cmp_gt_u32 vcc, 32, v0")
    a(f"v_cndmask_b32 v{RA}, v{RA+2}, v{RA}, vcc")
    a(f"v_lshl_add_u32 v{RA}, v{RA}, 2, s8")
    a(f"v_lshl_add_u32 v{RA+2}, v0, 3, s8")
    a(f"v_add_u32 v{RA+1}, s8, v{RA+1}")
    E0 = 64; E1 = 72; E2 = 76; E3 = 78
    a(f"ds_read_b128 {v(E0,4)}, v{RA}")
    a(f"ds_read_b128 {v(E0+4,4)}, v{RA} offset:16")
    a(f"ds_read_b64 {v(E1,2)}, v{RA+2} offset:{384*4}")
    a(f"ds_read_b32 v{E1+2}, v{RA+2} offset:{384*4+8}")
    a(f"ds_read_b32 v{E2}, v{RA+1} offset:{512*4}")
    a(f"ds_read_b32 v{E2+1}, v{RA+1} offset:{513*4}")
    a(f"ds_read_b32 v{E3}, v{RA+1} offset:{576*4}")
    a(f"ds_read_b32 v{E3+1}, v{RA+1} offset:{577*4}")
    a(f"v_lshlrev_b32 v{RA+3}, 4, v0")
    a(f"v_sub_u32 v{RA+3}, {63*16}, v{RA+3}")
    if FUSED:
        a(f"v_add_u32 v{RA+3}, s7, v{RA+3}")
    else:
        a(f"s_mul_i32 s12, s4, {KCS}")
        a(f"s_add_u32 s12, s12, {KC}")
    def kst(r, off):
        if FUSED: a(f"ds_write_b128 v{RA+3}, {v(r,4)} offset:{off}")
        else: a(f"buffer_store_dwordx4 {v(r,4)}, v{RA+3}, {SWS}, s12 offen offset:{off}{SC}")
    a("s_mov_b32 s13, 0xffff")
    a(f"v_and_b32 v{RA+4}, 1, v0")
    a(f"v_sub_u32 v{RA+4}, 0, v{RA+4}")
    a(f"v_or_b32 v{RA+4}, 0xffff, v{RA+4}")
    O = 84
    a("s_waitcnt lgkmcnt(0)")
    a(f"v_bfi_b32 v{O}, s13, v{E0+4}, v{E0+3}")
    a(f"v_mov_b32 v{O+1}, v{E0+2}")
    a(f"v_bfi_b32 v{O+2}, s13, v{E0+2}, v{E0+1}")
    a(f"v_mov_b32 v{O+3}, v{E0}")
    a("s_mov_b64 exec, 0xffffffff")
    for i in range(4):
        a(f"v_bfi_b32 v{O+i}, s13, v{E0+7-2*i}, v{E0+6-2*i}")
    a("s_mov_b64 exec, -1")
    kst(O, 192*16)
    a(f"v_mov_b32 v{O+4}, v{E1+2}")
    a(f"v_mov_b32 v{O+5}, v{E1+1}")
    a(f"v_bfi_b32 v{O+6}, s13, v{E1+1}, v{E1}")
    a(f"v_mov_b32 v{O+7}, v{E1}")
    kst(O+4, 128*16)
    for u, E in enumerate((E2, E3)):
        o = O + 8 + 4 * u
        a(f"v_mov_b32 v{o}, v{E+1}")
        a(f"v_bfi_b32 v{o+1}, v{RA+4}, v{E+1}, v{E}")
        a(f"v_mov_b32 v{o+2}, v{E}")
        a(f"v_mov_b32 v{o+3}, v{E}")
        kst(o, (64-64*u)*16)
    for i in range(4): a(f"v_mov_b32 v{O+16+i}, 0")
    if FUSED:
        a(f"v_lshl_add_u32 v{RA}, v0, 4, s7")
        a("s_mov_b64 exec, 0xf")
        for c in range(4): a(f"ds_write_b128 v{RA}, {v(O+16,4)} offset:{c*4160 + 4096}")
        a("s_mov_b64 exec, -1")
        for g in range(4):
            a(f"ds_read_b128 {v(16+8*g,4)}, v{RA} offset:{g*1024}")
            a(f"ds_read_b64 {v(20+8*g,2)}, v{RA} offset:{g*1024+16}")
        for g in range(4):
            d = 16 + 8*g; w = 52 + 12*(g & 1)
            if g == 0: a("s_waitcnt lgkmcnt(6)")
            if g == 1: a("s_waitcnt lgkmcnt(7)")
            if g == 2: a("s_waitcnt lgkmcnt(8)")
            if g == 3: a("s_waitcnt lgkmcnt(3)")
            for i in range(4): a(f"v_alignbit_b32 v{w+i}, v{d+i+1}, v{d+i}, 16")
            for i in range(4): a(f"v_mov_b32 v{w+4+i}, v{d+i+1}")
            for i in range(4): a(f"v_alignbit_b32 v{w+8+i}, v{d+i+2}, v{d+i+1}, 16")
            for c in range(1, 4): a(f"ds_write_b128 v{RA}, {v(w+4*(c-1),4)} offset:{c*4160 + g*1024}")
        fin(a)
        return
    a(f"v_mov_b32 v{RA}, 4096")
    a("s_mov_b64 exec, 1")
    a(f"buffer_store_dwordx4 {v(O+16,4)}, v{RA}, {SWS}, s12 offen")
    a.end()

def trans_role(a):
    SX = "s[52:55]"
    T = 2; RA = 16; D = 32
    if not FUSED: xt_role(a)
    wof_role(a)

def xt_role(a):
    a("s_mul_i32 s7, s3, 13312")
    srd(a, 52, 16, 2048 * 1280)
    SX = "s[52:55]"
    T = 2
    a("s_mul_i32 s5, s4, 205")
    a("s_lshr_b32 s5, s5, 11")
    a("s_mul_i32 s6, s5, 10")
    a("s_sub_u32 s6, s4, s6")
    a(f"s_mul_i32 s8, s5, {64*1280}")
    a("s_lshl_b32 s9, s6, 7")
    a("s_add_u32 s8, s8, s9")
    a(f"v_lshrrev_b32 v{T}, 3, v0")
    a(f"v_and_b32 v{T+1}, 7, v0")
    a(f"v_xor_b32 v{T+2}, v{T}, v{T+1}")
    a(f"v_mul_u32_u24 v{T+3}, 1280, v{T}")
    a(f"v_lshl_add_u32 v{T+4}, v{T+2}, 4, v{T+3}")
    for e in range(8):
        a(f"s_add_u32 m0, s7, {e*1024}")
        a(f"s_add_u32 s10, s8, {e*8*1280}")
        a(f"buffer_load_dwordx4 v{T+4}, {SX}, s10 offen lds")
    a(f"v_lshrrev_b32 v{T}, 4, v0")
    a(f"v_bfe_u32 v{T+6}, v0, 2, 2")
    a(f"v_lshl_add_u32 v{T+7}, v{T}, 3, v{T+6}")
    a(f"v_bfe_u32 v{T+8}, v0, 1, 1")
    a(f"v_lshl_add_u32 v{T+7}, v{T+8}, 5, v{T+7}")
    a(f"v_lshlrev_b32 v{T+7}, 7, v{T+7}")
    a(f"v_and_b32 v{T+8}, 1, v0")
    a(f"v_lshl_add_u32 v{T+7}, v{T+8}, 3, v{T+7}")
    a(f"v_lshl_add_u32 v{T+7}, v{T+6}, 4, v{T+7}")
    RA = 16
    for cg in range(8):
        a(f"v_xor_b32 v{RA+cg}, {cg*16}, v{T+7}")
        a(f"v_add_u32 v{RA+cg}, s7, v{RA+cg}")
    a(f"v_lshlrev_b32 v{T+9}, 12, v{T+1}")
    a(f"v_lshl_add_u32 v{T+9}, v{T}, 4, v{T+9}")
    a(f"v_bfe_u32 v{T+8}, v0, 3, 1")
    a(f"v_lshl_add_u32 v{T+9}, v{T+8}, 6, v{T+9}")
    a(f"s_lshl_b32 s10, s6, 18")
    a("s_lshl_b32 s11, s5, 7")
    a("s_add_u32 s10, s10, s11")
    a(f"s_add_u32 s10, s10, {XT}")
    a("s_waitcnt vmcnt(0)")
    D = 32
    for cg in range(8):
        a(f"ds_read_b64_tr_b16 {v(D+4*cg,2)}, v{RA+cg}")
        a(f"ds_read_b64_tr_b16 {v(D+4*cg+2,2)}, v{RA+(cg^4)} offset:512")
    for cg in range(8):
        a(f"s_waitcnt lgkmcnt({(7-cg)*2})")
        a(f"buffer_store_dwordx4 {v(D+4*cg,4)}, v{T+9}, {SWS}, s10 offen{SC}")
        if cg < 7: a(f"s_add_u32 s10, s10, {8*4096}")
    a.end()

def wof_role(a):
    SX = "s[52:55]"
    T = 2; RA = 16; D = 32
    a.label("K1_WOT")
    a("s_mul_i32 s7, s3, 13312")
    srd(a, 52, 20, 640 * 1280)
    a("s_mul_i32 s5, s4, 205")
    a("s_lshr_b32 s5, s5, 10")
    a("s_mul_i32 s6, s5, 5")
    a("s_sub_u32 s6, s4, s6")
    a(f"s_mul_i32 s8, s5, {40*1280}")
    a("s_lshl_b32 s9, s6, 8")
    a("s_add_u32 s8, s8, s9")
    a(f"v_lshrrev_b32 v{T}, 4, v0")
    a(f"v_and_b32 v{T+1}, 15, v0")
    a(f"v_lshlrev_b32 v{T+2}, 2, v{T}")
    a(f"v_xor_b32 v{T+2}, v{T+2}, v{T+1}")
    a(f"v_mul_u32_u24 v{T+3}, 1280, v{T}")
    a(f"v_lshl_add_u32 v{T+4}, v{T+2}, 4, v{T+3}")
    for e in range(10):
        a(f"s_add_u32 m0, s7, {e*1024}")
        a(f"s_add_u32 s10, s8, {e*4*1280}")
        a(f"buffer_load_dwordx4 v{T+4}, {SX}, s10 offen lds")
    a(f"v_bfe_u32 v{T+6}, v0, 2, 2")
    a(f"v_lshlrev_b32 v{T+7}, 8, v{T+6}")
    a(f"v_and_b32 v{T+8}, 3, v0")
    a(f"v_lshl_add_u32 v{T+7}, v{T+8}, 3, v{T+7}")
    a(f"v_bfe_u32 v{T+8}, v0, 4, 1")
    a(f"v_lshl_add_u32 v{T+7}, v{T+8}, 5, v{T+7}")
    a(f"v_lshrrev_b32 v{T+8}, 5, v0")
    a(f"v_xor_b32 v{T+8}, v{T+8}, v{T+6}")
    a(f"v_lshl_add_u32 v{T+7}, v{T+8}, 6, v{T+7}")
    a(f"v_xor_b32 v{RA+1}, 128, v{T+7}")
    a(f"v_add_u32 v{RA}, s7, v{T+7}")
    a(f"v_add_u32 v{RA+1}, s7, v{RA+1}")
    a("s_lshl_b32 s11, s6, 3")
    for cs in range(2):
        a(f"v_add_u32 v{T+10}, s11, v{T}")
        if cs: a(f"v_add_u32 v{T+10}, 4, v{T+10}")
        a(f"v_mul_u32_u24 v{T+11}, 205, v{T+10}")
        a(f"v_lshrrev_b32 v{T+11}, 10, v{T+11}")
        a(f"v_mul_u32_u24 v{T+11}, 95, v{T+11}")
        a(f"v_add_u32 v{T+10}, v{T+10}, v{T+11}")
        a(f"v_lshlrev_b32 v{T+10}, 10, v{T+10}")
        a(f"v_lshl_add_u32 v{RA+2+cs}, v{T+1}, 4, v{T+10}")
    a("s_lshr_b32 s9, s5, 2")
    a("s_mul_i32 s9, s9, 25600")
    a(f"s_add_u32 s9, s9, {WOF}")
    a("s_and_b32 s12, s5, 3")
    a("s_lshl_b32 s13, s12, 8")
    a("s_add_u32 s13, s13, s9")
    a("s_add_u32 s13, s13, 20480")
    a("s_mul_i32 s12, s12, 5120")
    a("s_add_u32 s9, s9, s12")
    a("s_waitcnt vmcnt(0)")
    rows = [(0, 8), (4, 12), (20, 28), (24, 32), (16, 36)]
    for gi in range(5):
        for cs in range(2):
            for s_ in range(2):
                a(f"ds_read_b64_tr_b16 {v(D+(gi*2+cs)*4+2*s_,2)}, v{RA+cs} offset:{rows[gi][s_]*256}")
        if gi == 2: a("s_waitcnt lgkmcnt(4)")
    a("s_waitcnt lgkmcnt(0)")
    for gi in range(5):
        for cs in range(2):
            a(f"buffer_store_dwordx4 {v(D+(gi*2+cs)*4,4)}, v{RA+2+cs}, {SWS}, s{9 if gi < 4 else 13} offen offset:{gi*256 if gi < 4 else 0}{SC}")
    fin(a)

LAUNCH = "; @launch kernel=k1_kernel grid=(512,1,1) block=(512,1,1) lds=81920"
NX = 3; NW = 4; IL = 0; ROT = 0; L2W = 0; ST = 0
def k1(a, sc="", scq="", pf=0, only="", ldm="", nx=3, nw=4, gp=0, il=1, ap=0, rot=1, swap=0, l2w=0, st=0):
    global SC, SCQ, PF, LDM, NX, NW, IL, ROT, L2W, ST
    ST = st
    L2W = l2w
    ROT = rot
    IL = il
    NX = nx; NW = nw
    LDM = ldm
    SC = sc; SCQ = scq; PF = pf
    kernel_header(a, "k1_kernel")
    a(f"s_cmp_ge_u32 s2, {240 if only == 'gemm' else 512}")
    a("s_cbranch_scc1 K1_EXIT")
    if only == "aux":
        a(f"s_cmp_lt_u32 s2, 240")
        a("s_cbranch_scc1 K1_EXIT")
    if swap: a("s_xor_b32 s2, s2, 256")
    a.tstart()
    common_prologue(a)
    a("s_cmp_ge_u32 s2, 240")
    a("s_cbranch_scc1 K1_AUX")
    if gp: a(f"s_setprio {gp}")
    gemm_role(a)
    a.label("K1_AUX")
    if ap: a(f"s_setprio {ap}")
    a("s_cmp_ge_u32 s3, 6")
    a("s_cbranch_scc1 K1_EXIT")
    a("s_sub_u32 s5, s2, 256")
    a("s_cmp_ge_u32 s5, 240")
    a("s_cbranch_scc1 K1_AUXA")
    a("s_cmp_ge_u32 s3, 4")
    a("s_cbranch_scc1 K1_EXIT")
    a("s_lshl_b32 s4, s5, 1")
    a("s_add_u32 s4, s4, s3")
    a("s_and_b32 s6, s5, 7")
    a("s_lshr_b32 s7, s5, 3")
    aux_prologue(a)
    a("s_cmp_lt_u32 s3, 2")
    a("s_cbranch_scc1 K1_KGEN")
    a("s_mul_i32 s4, s6, 40")
    a("s_add_u32 s4, s4, s7")
    a("s_cmp_eq_u32 s3, 2")
    a("s_cbranch_scc1 K1_TRANS")
    a("s_add_u32 s4, s4, 30")
    a("s_cmp_lt_u32 s7, 10")
    a("s_cbranch_scc1 K1_TRANS")
    a("s_lshl_b32 s4, s6, 3")
    a("s_add_u32 s4, s4, s7")
    a("s_sub_u32 s4, s4, 10")
    a("s_cmp_lt_u32 s7, 18")
    a("s_cbranch_scc1 K1_GATE")
    a("s_sub_u32 s4, s5, 144")
    a("s_cmp_lt_u32 s7, 28")
    a("s_cbranch_scc1 K1_WOT")
    a("s_endpgm ")
    a.label("K1_AUXA")
    aux_prologue(a)
    a("s_and_b32 s4, s2, 15")
    a("s_lshr_b32 s5, s2, 8")
    a("s_lshl_b32 s5, s5, 4")
    a("s_add_u32 s4, s4, s5")
    a("s_mul_i32 s4, s4, 5")
    a("s_add_u32 s4, s4, s3")
    a("s_add_u32 s4, s4, 480")
    a("s_cmp_lt_u32 s3, 5")
    a("s_cbranch_scc1 K1_KGEN")
    a("s_cmp_lg_u32 s2, 511")
    a("s_cbranch_scc1 K1_EXIT")
    for i in range(4): a(f"v_mov_b32 v{4+i}, 0")
    a("v_lshlrev_b32 v2, 4, v0")
    a(f"s_mov_b32 s4, {FL}")
    for i in range(32):
        a(f"buffer_store_dwordx4 v[4:7], v2, {SWS}, s4 offen")
        if i < 31: a("s_add_u32 s4, s4, 1024")
    a("s_endpgm ")
    a.label("K1_GATE"); gate_role(a)
    a.label("K1_KGEN")
    if 'K' in only: a("s_endpgm ")
    kgen_role(a)
    a.label("K1_TRANS")
    if 'T' in only: a("s_endpgm ")
    trans_role(a)
    a.label("K1_EXIT"); a("s_endpgm ")
    kernel_desc(a, "k1_kernel", 128)
```

```python
from asmlib import *
from layout import *
import struct, math

def f2u(x): return struct.unpack("<I", struct.pack("<f", x))[0]

def srd(a, d, ptr, size):
    a(f"s_mov_b32 s{d}, s{ptr}")
    a(f"s_and_b32 s{d+1}, s{ptr+1}, 0xffff")
    a(f"s_mov_b32 s{d+2}, {size}")
    a(f"s_mov_b32 s{d+3}, 0x20000")

def common_prologue(a):
    a("s_load_dwordx16 s[16:31], s[0:1], 0")
    a("s_load_dwordx16 s[32:47], s[0:1], 64")
    a("v_lshrrev_b32 v1, 6, v0")
    a("v_and_b32 v0, 63, v0")
    a("v_readfirstlane_b32 s3, v1")

def aux_prologue(a):
    a("s_waitcnt lgkmcnt(0)")
    a.stamp(7)
    srd(a, 48, 46, WS_SIZE)

SWS = "s[48:51]"
FUSED = 0
HSK = 163776
def fin(a):
    if FUSED:
        a("s_mov_b64 exec, -1")
        a("s_branch P2")
    else: a.end()

def gemm_role(a):
    a("s_and_b32 s4, s2, 7")
    a("s_lshr_b32 s5, s2, 3")
    a("s_and_b32 s6, s4, 1")
    a("s_mul_i32 s6, s6, 30")
    a("s_add_u32 s6, s6, s5")
    a("s_lshr_b32 s7, s6, 2")
    a("s_and_b32 s6, s6, 3")
    a("s_lshr_b32 s63, s4, 1")
    a("s_lshl_b32 s63, s63, 2")
    a("s_add_u32 s8, s63, s6")
    T = 32
    a("s_cmp_lt_u32 s3, 4")
    a("s_cbranch_scc1 K1_CONS")
    LO = 4
    if ROT:
        a("s_and_b32 s58, s4, 1")
        a("s_mul_i32 s58, s58, 7")
        a("s_sub_u32 s58, s7, s58")
        a("s_mul_i32 s58, s58, 5")
        a("s_lshr_b32 s58, s58, 2")
        a("s_mul_i32 s59, s6, 5")
        a("s_add_u32 s59, s59, 1")
        a("s_lshr_b32 s59, s59, 1")
        a("s_add_u32 s13, s58, s59")
        a("s_sub_u32 s58, s13, 10")
        a("s_cmp_ge_u32 s13, 10")
        a("s_cselect_b32 s13, s58, s13")
        a("s_lshl_b32 s58, s13, 1")
        a("s_sub_u32 s58, 20, s58")
    a(f"v_lshrrev_b32 v{T+1}, 4, v0")
    a(f"s_and_b32 s11, s3, {0 if L2W else 1}")
    a("s_lshl_b32 s12, s11, 12")
    a(f"s_cmp_ge_u32 s3, {5 if L2W else 6}")
    a("s_cbranch_scc1 K1_LDW")
    a(f"v_lshrrev_b32 v{T}, 3, v0")
    a(f"v_mul_u32_u24 v{T}, 1280, v{T}")
    a(f"v_and_b32 v{T+2}, 7, v0")
    a(f"v_xor_b32 v{T+2}, v{T+2}, v{T+1}")
    a(f"v_lshl_add_u32 v{LO}, v{T+2}, 4, v{T}")
    a(f"v_xor_b32 v{T+2}, 4, v{T+2}")
    a(f"v_lshl_add_u32 v{LO+1}, v{T+2}, 4, v{T}")
    a(f"v_add_u32 v{LO+1}, {10240-1024}, v{LO+1}")
    a(f"v_add_u32 v{LO+2}, {2*(10240-1024)}, v{LO}")
    a(f"v_add_u32 v{LO+3}, {2*(10240-1024)}, v{LO+1}")
    a(f"s_mul_i32 s9, s8, {128*1280}")
    a(f"s_mul_i32 s11, s11, {32*1280}")
    a("s_add_u32 s9, s9, s11")
    a(f"s_mov_b32 s10, {64*1280}")
    a(f"s_mov_b32 s11, {(128 - 64*1280) & 0xffffffff}")
    a(f"s_mov_b32 s60, {NX*16384}")
    a(f"s_mov_b32 s61, {NX*16384}")
    a(f"s_mov_b32 s15, {2 if ST else 2*NX-2}")
    a(f"s_mov_b32 s62, {20-(2*NX-2)}")
    a("s_mov_b32 s56, -2"); a("s_mov_b32 s57, 4")
    if L2W: a(f"s_mov_b32 s56, {32*1280}")
    if ROT:
        a("s_lshl_b32 s13, s13, 7")
        a("s_add_u32 s9, s9, s13")
        a("s_mov_b32 s59, 1280")
    a("s_waitcnt lgkmcnt(0)")
    srd(a, 52, 16, 2048 * 1280)
    a("s_branch K1_LD0")
    a.label("K1_LDW")
    a(f"v_mul_u32_u24 v{T}, 3840, v{T+1}")
    a(f"v_and_b32 v{T+2}, 15, v0")
    a(f"v_lshlrev_b32 v{T+3}, 2, v{T+1}")
    a(f"v_xor_b32 v{T+2}, v{T+2}, v{T+3}")
    a(f"v_lshl_add_u32 v{LO}, v{T+2}, 4, v{T}")
    for e in range(1, 4): a(f"v_add_u32 v{LO+e}, {e*(15360-1024)}, v{LO}")
    a("s_lshl_b32 s9, s7, 8")
    a(f"s_mul_i32 s11, s11, {4*15360}")
    a("s_add_u32 s9, s9, s11")
    a(f"s_mov_b32 s10, {32*3840}")
    a(f"s_mov_b32 s11, {32*3840}")
    a(f"s_add_u32 s12, s12, {NX*16384}")
    a(f"s_mov_b32 s60, {NX*16384+NW*8192}")
    a(f"s_mov_b32 s61, {NW*8192}")
    a(f"s_mov_b32 s15, {ST if ST else NW-1}")
    a(f"s_mov_b32 s62, {20-(NW-1)}")
    a("s_mov_b32 s56, -1"); a("s_mov_b32 s57, 3")
    if L2W: a(f"s_mov_b32 s56, {4*15360}")
    if ROT:
        a(f"s_mul_i32 s13, s13, {64*3840}")
        a("s_add_u32 s9, s9, s13")
        a(f"s_mov_b32 s59, {640*3840}")
    a("s_waitcnt lgkmcnt(0)")
    srd(a, 52, 18, 640 * 3840)
    def issue():
        a("s_mov_b32 m0, s12")
        for e in range(4): a(f"buffer_load_dwordx4 v{LO+e}, s[52:55], s9 offen offset:{e*1024}{LDM} lds")
        if L2W:
            a("s_add_u32 m0, s12, 4096")
            a("s_add_u32 s57, s9, s56")
            for e in range(4): a(f"buffer_load_dwordx4 v{LO+e}, s[52:55], s57 offen offset:{e*1024}{LDM} lds")
        a("s_add_u32 s12, s12, 8192")
        a("s_add_u32 s9, s9, s10")
        if ROT:
            a("s_sub_u32 s58, s58, 1")
            a("s_cmp_eq_u32 s58, 0")
            a("s_cselect_b32 s14, s59, 0")
            a("s_sub_u32 s9, s9, s14")
        a("s_mov_b32 s14, s10")
        a("s_mov_b32 s10, s11")
        a("s_mov_b32 s11, s14")
        a("s_sub_u32 s14, s12, s61")
        a("s_cmp_ge_u32 s12, s60")
        a("s_cselect_b32 s12, s14, s12")
    a.label("K1_LD0")
    if FUSED:
        a("s_mov_b32 s13, s15")
        a(f"v_mov_b32 v{T}, {HSK}")
        a("s_sub_u32 s14, s3, 4")
        a("s_lshl_b32 s14, s14, 2")
        a(f"v_add_u32 v{T+1}, s14, v{T}")
        a.label("K1_LD0F")
    issue()
    a("s_sub_u32 s15, s15, 1")
    a("s_cmp_lg_u32 s15, 0")
    a(f"s_cbranch_scc1 K1_LD0{'F' if FUSED else ''}")
    a.stamp(0)
    if FUSED:
        a("s_barrier")
        def freemin():
            a(f"v_min3_u32 v{T+4}, v{T+4}, v{T+5}, v{T+6}")
            a(f"v_min_u32 v{T+4}, v{T+4}, v{T+7}")
            a(f"v_readfirstlane_b32 s16, v{T+4}")
        a.label("K1_LD1")
        a(f"ds_read_b128 {v(T+4,4)}, v{T} offset:16")
        a("s_sub_u32 s14, s13, 2")
        a("s_and_b32 s14, s14, s56")
        a(f"v_mov_b32 v{T+2}, s14")
        a("s_and_b32 s17, s13, s56")
        a("s_sub_u32 s17, s17, s57")
        a("s_waitcnt vmcnt(8) lgkmcnt(0)")
        a(f"ds_write_b32 v{T+1}, v{T+2}")
        freemin()
        a("s_cmp_ge_u32 s16, s17")
        a("s_cbranch_scc1 K1_LDGO")
        a.label("K1_LDP")
        a(f"ds_read_b128 {v(T+4,4)}, v{T} offset:16")
        a("s_waitcnt lgkmcnt(0)")
        freemin()
        a("s_cmp_lt_u32 s16, s17")
        a("s_cbranch_scc1 K1_LDP")
        a.label("K1_LDGO")
        issue()
        a("s_add_u32 s13, s13, 1")
        a("s_cmp_lg_u32 s13, 20")
        a("s_cbranch_scc1 K1_LD1")
        for n, val in ((8, 18), (4, 19), (0, 20)):
            a(f"s_and_b32 s14, {val}, s56")
            a(f"v_mov_b32 v{T+2}, s14")
            a(f"s_waitcnt vmcnt({n})")
            a(f"ds_write_b32 v{T+1}, v{T+2}")
        a.stamp(1)
        fin(a)
    else:
        a(f"s_cmp_ge_u32 s3, {5 if L2W else 6}")
        a("s_cbranch_scc1 K1_LDW1")
        NI = 8 if L2W else 4
        for nm, fl in (("X", 2*NX-4), ("W", NW-2)):
            if nm == "W": a.label("K1_LDW1")
            a(f"s_waitcnt vmcnt({(0 if nm == 'X' else NI*(ST-1)) if ST else NI*fl})")
            a("s_barrier")
            a.stamp(1)
            if ST:
                for _ in range(2*NX-4 if nm == "X" else NW-1-ST): issue()
            a.label(f"K1_LD1{nm}")
            issue()
            a("s_sub_u32 s62, s62, 1")
            a("s_cmp_lg_u32 s62, 0")
            a(f"s_waitcnt vmcnt({NI*fl})")
            a("s_barrier")
            a(f"s_cbranch_scc1 K1_LD1{nm}")
            for n in range(fl-1, -1, -1):
                a(f"s_waitcnt vmcnt({NI*n})")
                a("s_barrier")
            a.end()
    a.label("K1_CONS")
    XA = 12; XC = 16; WA = 20; WC = 22; EA = 24
    XF = 32; WF = 48; ACC = 64; PFO = 5
    def pf():
        if not PF: return
        a(f"buffer_load_dword v4, v{PFO}, s[52:55], s58 offen")
        a("s_add_u32 s58, s58, s57")
    if PF:
        a("s_lshr_b32 s59, s3, 1")
        a("s_add_u32 s59, s59, 1")
        a(f"v_lshrrev_b32 v{T}, 1, v0")
        a(f"v_and_b32 v{T+1}, 1, v0")
        a("s_bitcmp1_b32 s3, 0")
        a("s_cbranch_scc1 K1_PFX")
        a(f"v_mul_u32_u24 v{T}, 3840, v{T}")
        a(f"v_lshl_add_u32 v{PFO}, v{T+1}, 7, v{T}")
        a("s_lshl_b32 s58, s59, 2")
        a("s_add_u32 s58, s58, s6")
        a(f"s_mul_i32 s58, s58, {32*3840}")
        a("s_lshl_b32 s57, s7, 8")
        a("s_add_u32 s58, s58, s57")
        a(f"s_mov_b32 s57, {256*3840}")
        a("s_waitcnt lgkmcnt(0)")
        srd(a, 52, 18, 640 * 3840)
        a("s_branch K1_PFGO")
        a.label("K1_PFX")
        a(f"v_and_b32 v{T}, 15, v{T}")
        a(f"v_mul_u32_u24 v{T}, 1280, v{T}")
        a(f"v_lshl_add_u32 v{PFO}, v{T+1}, 7, v{T}")
        a("s_and_b32 s57, s4, 1")
        a("s_mul_i32 s57, s57, 7")
        a("s_sub_u32 s57, s7, s57")
        a("s_lshl_b32 s58, s8, 3")
        a("s_add_u32 s58, s58, s57")
        a(f"s_mul_i32 s58, s58, {16*1280}")
        a("s_lshl_b32 s57, s59, 8")
        a("s_add_u32 s58, s58, s57")
        a("s_mov_b32 s57, 512")
        a("s_waitcnt lgkmcnt(0)")
        srd(a, 52, 16, 2048 * 1280)
        a.label("K1_PFGO")
        pf()
        if PF == 3: pf()
    a("s_lshr_b32 s13, s3, 1")
    a("s_and_b32 s14, s3, 1")
    a(f"v_and_b32 v{T}, 31, v0")
    a(f"v_lshrrev_b32 v{T+1}, 5, v0")
    a(f"v_bfe_u32 v{T+2}, v0, 1, 3")
    a(f"v_xor_b32 v{T+2}, v{T+2}, v{T+1}")
    a(f"v_lshlrev_b32 v{T+2}, 4, v{T+2}")
    a(f"v_lshl_add_u32 v{T+2}, v{T}, 7, v{T+2}")
    a("s_lshl_b32 s12, s13, 13")
    a(f"v_add_u32 v{XA}, s12, v{T+2}")
    for ks in range(1, 4):
        a(f"v_xor_b32 v{XA+ks}, {ks*32}, v{XA}")
    for ks in range(4): a(f"v_mov_b32 v{XC+ks}, v{XA+ks}")
    a(f"v_bfe_u32 v{T+2}, v0, 2, 2")
    a(f"v_lshl_add_u32 v{T+3}, v{T+1}, 3, v{T+2}")
    a(f"v_lshlrev_b32 v{T+3}, 8, v{T+3}")
    a(f"v_and_b32 v{T+4}, 3, v0")
    a(f"v_lshl_add_u32 v{T+3}, v{T+4}, 3, v{T+3}")
    a(f"v_bfe_u32 v{T+4}, v0, 4, 1")
    a(f"v_lshl_add_u32 v{T+3}, v{T+4}, 5, v{T+3}")
    a(f"v_add_u32 v{T+3}, {NX*16384}, v{T+3}")
    a("s_lshl_b32 s12, s14, 1")
    a(f"v_xor_b32 v{T+4}, s12, v{T+2}")
    a(f"v_lshl_add_u32 v{WA}, v{T+4}, 6, v{T+3}")
    a(f"v_xor_b32 v{WA+1}, 64, v{WA}")
    for i in range(2): a(f"v_mov_b32 v{WC+i}, v{WA+i}")
    a("s_mov_b32 s59, 0")
    for i in range(64): a(f"v_mov_b32 v{ACC+i}, 0")
    a("s_lshl_b32 s15, s8, 2")
    a("s_lshl_b32 s12, s13, 1")
    a("s_add_u32 s15, s15, s12")
    a("s_mul_i32 s15, s15, 1280")
    a("s_waitcnt lgkmcnt(0)")
    srd(a, 48, 46, WS_SIZE)
    a("s_mov_b32 s17, 0")
    a("s_cmp_ge_u32 s7, 10")
    a("s_cbranch_scc1 K1_GEMM_V")

    def reads(c, ks):
        buf = ks
        for rb in range(2):
            a(f"ds_read_b128 {v(XF+buf*8+rb*4,4)}, v{XC + 2*(c&1) + ks} offset:{rb*4096}")
        for cb in range(2):
            for s_ in range(2):
                a(f"ds_read_b64_tr_b16 {v(WF+buf*8+cb*4+s_*2,2)}, v{WC+cb} offset:{ks*4096 + s_*1024}")
    def mfmas(orient, buf):
        for rb in range(2):
            for cb in range(2):
                acc = v(ACC + (rb * 2 + cb) * 16, 16)
                x = v(XF + buf * 8 + rb * 4, 4); w = v(WF + buf * 8 + cb * 4, 4)
                A, B = (w, x) if orient == "qk" else (x, w)
                a(f"v_mfma_f32_32x32x16_bf16 {acc}, {A}, {B}, {acc}")
    HW = 8; HA = 6; HF = 7
    def fullchk():
        a(f"v_min3_u32 v{HW}, v{HW}, v{HW+1}, v{HW+2}")
        a(f"v_min_u32 v{HW}, v{HW}, v{HW+3}")
        a(f"v_cmp_gt_u32 vcc, s18, v{HW}")
    def poll(lab):
        a.label(lab)
        a(f"ds_read_b128 {v(HW,4)}, v{HA}")
        a("s_waitcnt lgkmcnt(0)")
        fullchk()
        a(f"s_cbranch_vccnz {lab}")
    def body(orient):
        a.stamp(0)
        if FUSED:
            a(f"v_mov_b32 v{HA}, {HSK}")
            a("s_lshl_b32 s18, s3, 2")
            a(f"v_add_u32 v{HF}, s18, v{HA}")
            a("v_mov_b32 v5, 0")
            a("s_mov_b32 s18, 1")
        a("s_barrier")
        if FUSED: poll(f"K1_P0_{orient}")
        a.stamp(1)
        if IL and not FUSED:
            def rx(c, ks, rb): a(f"ds_read_b128 {v(XF+ks*8+rb*4,4)}, v{XC + 2*(c&1) + ks} offset:{rb*4096}")
            def rw(ks, cb):
                for s_ in range(2): a(f"ds_read_b64_tr_b16 {v(WF+ks*8+cb*4+s_*2,2)}, v{WC+cb} offset:{ks*4096 + s_*1024}")
            def m(buf, rb, cb):
                acc = v(ACC + (rb * 2 + cb) * 16, 16)
                x = v(XF + buf * 8 + rb * 4, 4); w = v(WF + buf * 8 + cb * 4, 4)
                A, B = (w, x) if orient == "qk" else (x, w)
                a(f"v_mfma_f32_32x32x16_bf16 {acc}, {A}, {B}, {acc}")
            reads(0, 0); reads(0, 1)
            a("s_mov_b32 s16, 10")
            a("s_waitcnt lgkmcnt(6)")
            a.label(f"K1_GL_{orient}")
            for c in range(2):
                m(0, 0, 0)
                a("s_add_u32 s59, s59, 8192")
                a(f"s_cmp_eq_u32 s59, {NW*8192}")
                a("s_cselect_b32 s59, 0, s59")
                for i in range(2): a(f"v_add_u32 v{WC+i}, s59, v{WA+i}")
                if c & 1:
                    a("s_add_u32 s17, s17, 16384")
                    a(f"s_cmp_eq_u32 s17, {NX*16384}")
                    a("s_cselect_b32 s17, 0, s17")
                    for ks in range(2): a(f"v_add_u32 v{XC+ks}, s17, v{XA+ks}")
                else:
                    for ks in range(2, 4): a(f"v_add_u32 v{XC+ks}, s17, v{XA+ks}")
                m(0, 0, 1)
                a("s_waitcnt lgkmcnt(0)")
                a("s_barrier")
                rx(c+1, 0, 0); m(0, 1, 0); rw(0, 0); m(0, 1, 1); rx(c+1, 0, 1); rw(0, 1)
                m(1, 0, 0)
                if c == 1:
                    a("s_sub_u32 s16, s16, 1")
                    a("s_cmp_lg_u32 s16, 0")
                m(1, 0, 1); rx(c+1, 1, 0); m(1, 1, 0); rw(1, 0); m(1, 1, 1); rx(c+1, 1, 1); rw(1, 1)
                a("s_waitcnt lgkmcnt(6)")
            a(f"s_cbranch_scc1 K1_GL_{orient}")
            a.stamp(2)
            return
        reads(0, 0)
        a("s_mov_b32 s16, 5")
        a.label(f"K1_GL_{orient}")
        if PF in (1, 2):
            a(f"s_cmp_lg_u32 s16, {6 - PF}")
            a(f"s_cbranch_scc1 K1_NPF_{orient}")
            pf()
            a.label(f"K1_NPF_{orient}")
        for c in range(4):
            if FUSED:
                a(f"ds_read_b128 {v(HW,4)}, v{HA}")
                a("s_add_u32 s18, s18, 1")
                a("s_min_u32 s18, s18, 20")
                a("v_add_u32 v5, 1, v5")
            reads(c, 1)
            if c & 1:
                a("s_add_u32 s17, s17, 16384")
                a(f"s_cmp_eq_u32 s17, {NX*16384}")
                a("s_cselect_b32 s17, 0, s17")
                for ks in range(4): a(f"v_add_u32 v{XC+ks}, s17, v{XA+ks}")
            a("s_add_u32 s59, s59, 8192")
            a(f"s_cmp_eq_u32 s59, {NW*8192}")
            a("s_cselect_b32 s59, 0, s59")
            for i in range(2): a(f"v_add_u32 v{WC+i}, s59, v{WA+i}")
            a("s_waitcnt lgkmcnt(6)")
            mfmas(orient, 0)
            if FUSED:
                fullchk()
                a("s_waitcnt lgkmcnt(0)")
                a(f"ds_write_b32 v{HF}, v5 offset:16")
                a(f"s_cbranch_vccnz K1_SL_{orient}{c}")
            else:
                a("s_waitcnt lgkmcnt(0)")
                a("s_barrier")
            reads(c + 1, 0)
            mfmas(orient, 1)
            if FUSED: a.label(f"K1_SD_{orient}{c}")
        a("s_sub_u32 s16, s16, 1")
        a("s_cmp_lg_u32 s16, 0")
        a(f"s_cbranch_scc1 K1_GL_{orient}")
        a.stamp(2)
    def slow(orient):
        if not FUSED: return
        for c in range(4):
            a.label(f"K1_SL_{orient}{c}")
            mfmas(orient, 1)
            poll(f"K1_PP_{orient}{c}")
            reads(c + 1, 0)
            a(f"s_branch K1_SD_{orient}{c}")

    a("s_lshl_b32 s12, s7, 4")
    a("s_lshl_b32 s60, s14, 3")
    a("s_add_u32 s12, s12, s60")
    a(f"v_add_u32 v{T+2}, s12, v{T+1}")
    a(f"v_lshlrev_b32 v{T+6}, 4, v{T}")
    a(f"v_lshl_add_u32 v{T+7}, v{T}, 3, 0")
    a(f"v_add_u32 v{T+7}, 1024, v{T+7}")
    a(f"s_mov_b32 s61, {HS}")
    a(f"s_add_u32 s63, s15, {HS}")
    for cb in range(2):
        for p in range(2):
            e = EA + cb * 2 + p
            mk = 36 + 2 * (cb * 2 + p)
            a(f"v_add_u32 v{T+3}, {4*cb+2*p}, v{T+2}")
            a(f"v_mul_u32_u24 v{T+4}, 205, v{T+3}")
            a(f"v_lshrrev_b32 v{T+4}, 10, v{T+4}")
            a(f"v_mul_u32_u24 v{T+5}, 5, v{T+4}")
            a(f"v_sub_u32 v{T+3}, v{T+3}, v{T+5}")
            a(f"v_lshlrev_b32 v{T+4}, 1, v{T+4}")
            a(f"v_cmp_lt_u32 vcc, 2, v{T+3}")
            a(f"v_subrev_u32 v{T+5}, 3, v{T+3}")
            a(f"v_cndmask_b32 v{T+5}, v{T+3}, v{T+5}, vcc")
            a(f"v_addc_co_u32 v{T+4}, vcc, 0, v{T+4}, vcc")
            a(f"v_cmp_eq_u32 s[{mk}:{mk+1}], 2, v{T+3}")
            a(f"v_lshl_add_u32 v{T+5}, v{T+5}, 9, v{T+6}")
            a(f"v_cndmask_b32 v{T+5}, v{T+5}, v{T+7}, s[{mk}:{mk+1}]")
            a(f"v_mad_u32_u24 v{e}, v{T+4}, s61, v{T+5}")
    qs = (20 ** -0.5) * math.log2(math.e)
    a(f"s_mov_b32 s62, {f2u(qs)}")
    a("s_cmp_ge_u32 s7, 5")
    a("s_cselect_b32 s62, 1.0, s62")
    body("qk")
    for rb in range(2):
        for cb in range(2):
            ac = ACC + (rb * 2 + cb) * 16
            for p in range(2):
                r = ac + p * 8
                mk = 36 + 2 * (cb * 2 + p)
                for i in range(0, 8, 2): a(f"v_pk_mul_f32 {v(r+i,2)}, {v(r+i,2)}, s[62:63] op_sel_hi:[1,0]")
                for i in range(4): a(f"v_cvt_pk_bf16_f32 v{r+i}, v{r+2*i}, v{r+2*i+1}")
                a(f"v_permlane32_swap_b32 v{r}, v{r+2}")
                a(f"v_permlane32_swap_b32 v{r+1}, v{r+3}")
                a(f"s_andn2_b64 exec, -1, s[{mk}:{mk+1}]")
                a(f"buffer_store_dwordx4 {v(r,4)}, v{EA+cb*2+p}, {SWS}, s15 offen offset:{rb*1280}{SCQ}")
                a(f"s_cmp_eq_u64 s[{mk}:{mk+1}], 0")
                a(f"s_cbranch_scc1 K1_NM{rb}{cb}{p}")
                a(f"s_mov_b64 exec, s[{mk}:{mk+1}]")
                a(f"buffer_store_dwordx2 {v(r,2)}, v{EA+cb*2+p}, {SWS}, s15 offen offset:{rb*1280}{SCQ}")
                a(f"buffer_store_dwordx2 {v(r+2,2)}, v{EA+cb*2+p}, {SWS}, s63 offen offset:{rb*1280}{SCQ}")
                a.label(f"K1_NM{rb}{cb}{p}")
                a("s_mov_b64 exec, -1")
    fin(a)
    slow("qk")
    a.label("K1_GEMM_V")
    a("s_sub_u32 s12, s7, 10")
    a("s_lshl_b32 s12, s12, 7")
    a("s_lshl_b32 s60, s14, 6")
    a("s_add_u32 s12, s12, s60")
    a(f"s_mov_b32 s61, {HS}")
    a(f"v_lshlrev_b32 v{T+6}, 4, v{T+1}")
    for cb in range(2):
        a(f"v_add_u32 v{T+3}, s12, v{T}")
        if cb: a(f"v_add_u32 v{T+3}, 32, v{T+3}")
        a(f"v_mul_u32_u24 v{T+4}, 3277, v{T+3}")
        a(f"v_lshrrev_b32 v{T+4}, 16, v{T+4}")
        a(f"v_mul_u32_u24 v{T+5}, 20, v{T+4}")
        a(f"v_sub_u32 v{T+3}, v{T+3}, v{T+5}")
        a(f"v_lshl_add_u32 v{T+5}, v{T+3}, 5, v{T+6}")
        a(f"v_mad_u32_u24 v{EA+cb}, v{T+4}, s61, v{T+5}")
    a(f"s_add_u32 s15, s15, {VF}")
    body("v")
    for rb in range(2):
        for cb in range(2):
            ac = ACC + (rb * 2 + cb) * 16
            for g in range(2):
                r = ac + g * 8
                for i in range(4): a(f"v_cvt_pk_bf16_f32 v{r+i}, v{r+2*i}, v{r+2*i+1}")
                a(f"buffer_store_dwordx4 {v(r,4)}, v{EA+cb}, {SWS}, s15 offen offset:{rb*1280+g*640}{SCQ}")
    fin(a)
    slow("v")

def gate_role(a):
    srd(a, 52, 16, 2048 * 1280)
    SX = "s[52:55]"
    G = 8; X = 32; ACC = 112; T = 2
    if FUSED: a.label("K1_GATE2")
    a(f"s_mul_i32 s5, s4, {32*1280}")
    a(f"v_and_b32 v{T}, 15, v0")
    a(f"v_lshlrev_b32 v{T+1}, 4, v{T}")
    for e in range(5):
        a(f"global_load_dwordx4 {v(G+4*e,4)}, v{T+1}, s[40:41] offset:{e*256}")
    a(f"v_lshrrev_b32 v{T+2}, 4, v0")
    a(f"v_mul_u32_u24 v{T+3}, 1280, v{T+2}")
    a(f"v_add_u32 v{T+3}, v{T+3}, v{T+1}")
    for grp in range(8):
        a(f"v_mov_b32 v{ACC+grp}, 0")
    def gl(grp):
        for e in range(5):
            a(f"buffer_load_dwordx4 {v(X+(grp&3)*20+e*4,4)}, v{T+3}, {SX}, s5 offen offset:{e*256}")
        if grp < 7: a(f"s_add_u32 s5, s5, {4*1280}")
    for grp in range(4): gl(grp)
    for grp in range(8):
        a(f"s_waitcnt vmcnt({min(3, 7-grp)*5})")
        for i in range(20):
            a(f"v_dot2c_f32_bf16 v{ACC+grp}, v{X+(grp&3)*20+i}, v{G+i}")
        if grp < 4: gl(grp + 4)
    for sh in (8, 4, 2, 1):
        for grp in range(8):
            a(f"v_add_f32_dpp v{ACC+grp}, v{ACC+grp}, v{ACC+grp} row_ror:{sh} row_mask:0xf bank_mask:0xf")
    for k in range(1, 8):
        a(f"v_cmp_eq_u32 vcc, {k}, v{T}")
        a(f"v_cndmask_b32 v{ACC}, v{ACC}, v{ACC+k}, vcc")
    R = ACC
    a(f"v_cvt_pk_bf16_f32 v{R}, v{R}, v{R}")
    a(f"v_lshlrev_b32 v{R}, 16, v{R}")
    a(f"v_mul_f32 v{R}, {f2u(-math.log2(math.e))}, v{R}")
    a(f"v_exp_f32 v{R}, v{R}")
    a(f"v_add_f32 v{R}, 1.0, v{R}")
    a(f"v_rcp_f32 v{R}, v{R}")
    a(f"v_cvt_pk_bf16_f32 v{R}, v{R}, v{R}")
    a(f"v_lshlrev_b32 v{R}, 16, v{R}")
    a(f"v_lshl_add_u32 v{T+3}, v{T}, 2, v{T+2}")
    a(f"v_lshlrev_b32 v{T+3}, 2, v{T+3}")
    a("s_lshl_b32 s5, s4, 7")
    a(f"s_add_u32 s5, s5, {GT}")
    a(f"v_cmp_gt_u32 vcc, 8, v{T}")
    a("s_and_saveexec_b64 s[6:7], vcc")
    a(f"buffer_store_dword v{R}, v{T+3}, {SWS}, s5 offen{SC}")
    if FUSED:
        a("s_mov_b64 exec, -1")
        a("s_add_u32 s4, s4, 3")
        a("s_cmp_lt_u32 s4, s60")
        a("s_cbranch_scc1 K1_GATE2")
    fin(a)

def cmul(a, d, x, y):
    a(f"v_pk_mul_f32 {v(d,2)}, {v(x,2)}, {v(y,2)} op_sel:[0,0] op_sel_hi:[0,1]")
    a(f"v_pk_fma_f32 {v(d,2)}, {v(x,2)}, {v(y,2)}, {v(d,2)} op_sel:[1,1,0] op_sel_hi:[1,0,1] neg_lo:[0,1,0]")

def cmul2(a, d, x, y):
    for o in (0, 2):
        a(f"v_pk_mul_f32 {v(d+o,2)}, {v(x+o,2)}, {v(y+o,2)} op_sel:[0,0] op_sel_hi:[0,1]")
    for o in (0, 2):
        a(f"v_pk_fma_f32 {v(d+o,2)}, {v(x+o,2)}, {v(y+o,2)}, {v(d+o,2)} op_sel:[1,1,0] op_sel_hi:[1,0,1] neg_lo:[0,1,0]")

def kgen_role(a):
    log2e = math.log2(math.e)
    a("s_lshl_b32 s5, s4, 8")
    T = 2
    P = 52
    DSK = 8
    a(f"v_lshl_add_u32 v{T}, v0, 2, s5")
    for i, pr in enumerate((24, 26, 28, 30, 32, 34)):
        a(f"global_load_dword v{P+i}, v{T}, s[{pr}:{pr+1}]")
    a("s_lshl_b32 s6, s4, 1")
    a(f"v_mov_b32 v{T+1}, s6")
    a(f"global_load_ushort v{P+6}, v{T+1}, s[36:37]")
    a(f"global_load_ushort v{DSK}, v{T+1}, s[38:39]")
    SL = 528
    if not FUSED: a("s_mul_i32 s7, s3, 13312")
    WRA = 9; RDA = 10; TB0 = 11; TB1 = 12; TB2 = 13
    a(f"v_lshl_add_u32 v{WRA}, v0, 3, s7")
    a(f"v_and_b32 v{T+2}, 15, v0")
    a(f"v_lshrrev_b32 v{T+3}, 4, v0")
    a(f"v_mul_u32_u24 v{RDA}, {SL}, v{T+2}")
    a(f"v_lshl_add_u32 v{RDA}, v{T+3}, 4, v{RDA}")
    a(f"v_add_u32 v{RDA}, s7, v{RDA}")
    a("s_add_u32 s8, s7, 8448")
    a(f"v_lshlrev_b32 v{TB0}, 4, v{T+2}")
    a(f"v_lshl_add_u32 v{TB0}, v{T+3}, 2, v{TB0}")
    a(f"v_lshl_add_u32 v{TB0}, v{TB0}, 2, s8")
    a(f"v_lshlrev_b32 v{T+4}, 3, v{T+2}")
    a(f"v_lshl_add_u32 v{T+4}, v{T+3}, 2, v{T+4}")
    a(f"v_add_u32 v{T+4}, 256, v{T+4}")
    a(f"v_lshlrev_b32 v{T+5}, 2, v{T+2}")
    a(f"v_lshl_add_u32 v{T+5}, v{T+3}, 6, v{T+5}")
    a(f"v_add_u32 v{T+5}, 256, v{T+5}")
    a(f"v_cmp_gt_u32 vcc, 32, v0")
    a(f"v_cndmask_b32 v{TB1}, v{T+5}, v{T+4}, vcc")
    a(f"v_lshl_add_u32 v{TB1}, v{TB1}, 2, s8")
    a(f"v_lshlrev_b32 v{T+4}, 1, v{T+2}")
    a(f"v_lshl_add_u32 v{T+4}, v{T+3}, 6, v{T+4}")
    a(f"v_add_u32 v{T+4}, 512, v{T+4}")
    a(f"v_mov_b32 v{T+5}, 704")
    a(f"v_cmp_ge_u32 vcc, 32, v0")
    a(f"v_cndmask_b32 v{TB2}, v{T+5}, v{T+4}, vcc")
    a(f"v_lshl_add_u32 v{TB2}, v{TB2}, 2, s8")
    if FUSED: a("s_barrier")
    a("s_waitcnt vmcnt(0)")
    a.stamp(0)
    DT = 14
    hi = struct.unpack("<f", struct.pack("<f", log2e))[0]; lo = log2e - hi
    a(f"v_lshlrev_b32 v{T}, 16, v{P+6}")
    a(f"s_mov_b32 s9, {f2u(hi)}")
    a(f"v_mul_f32 v{T+1}, s9, v{T}")
    a(f"v_fma_f32 v{T+2}, v{T}, s9, -v{T+1}")
    a(f"v_mov_b32 v{T+3}, {f2u(lo)}")
    a(f"v_fmac_f32 v{T+2}, v{T}, v{T+3}")
    a(f"v_exp_f32 v{T+1}, v{T+1}")
    a(f"v_mul_f32 v{T+2}, {f2u(math.log(2.0))}, v{T+2}")
    a(f"v_fma_f32 v{T+1}, v{T+1}, v{T+2}, v{T+1}")
    a(f"v_cvt_pk_bf16_f32 v{DT}, v{T+1}, v{T+1}")
    a(f"v_lshlrev_b32 v{DT}, 16, v{DT}")
    A_ = 16; B_ = 20; C_ = 24; W_ = 28
    for grp, (re_, im_) in ((A_, (P, P + 1)), (B_, (P + 2, P + 3)), (C_, (P + 4, P + 5))):
        a(f"v_lshlrev_b32 v{grp}, 16, v{re_}")
        a(f"v_lshlrev_b32 v{grp+1}, 16, v{im_}")
        a(f"v_and_b32 v{grp+2}, 0xffff0000, v{re_}")
        a(f"v_and_b32 v{grp+3}, 0xffff0000, v{im_}")
    for i in range(4):
        a(f"v_mul_f32 v{A_+i}, v{DT}, v{A_+i}")
        a(f"v_mul_f32 v{B_+i}, v{DT}, v{B_+i}")
    cmul2(a, W_, C_, B_)
    a(f"s_mov_b32 s10, {f2u(1.0/(2*math.pi))}")
    for o in (0, 2):
        a(f"v_mul_f32 v{A_+o}, s9, v{A_+o}")
        a(f"v_mul_f32 v{A_+o+1}, s10, v{A_+o+1}")
    Z1 = 32; Z16 = 36; Z256 = 40
    def base(dst, n):
        E = 44
        a(f"s_mov_b32 s11, {f2u(float(n))}")
        for o in (0, 2):
            if n != 1:
                a(f"v_mul_f32 v{E+o}, s11, v{A_+o}")
                a(f"v_mul_f32 v{E+o+1}, s11, v{A_+o+1}")
                a(f"v_fract_f32 v{E+o+1}, v{E+o+1}")
                a(f"v_exp_f32 v{E+o}, v{E+o}")
            else:
                a(f"v_fract_f32 v{E+o+1}, v{A_+o+1}")
                a(f"v_exp_f32 v{E+o}, v{A_+o}")
        for o in (0, 2):
            a(f"v_cos_f32 v{dst+o}, v{E+o+1}")
            a(f"v_sin_f32 v{dst+o+1}, v{E+o+1}")
        for o in (0, 2):
            a(f"v_pk_mul_f32 {v(dst+o,2)}, {v(dst+o,2)}, {v(E+o,2)} op_sel:[0,0] op_sel_hi:[1,0]")
    base(Z16, 16)
    PK = 2
    cnt = [0]
    def put(src, slot, neg=False):
        p = PK + 2 * (cnt[0] & 1); cnt[0] += 1
        n = "-" if neg else ""
        a(f"v_cvt_pk_bf16_f32 v{p}, v{src}, {n}v{src+1}")
        a(f"v_cvt_pk_bf16_f32 v{p+1}, v{src+2}, {n}v{src+3}")
        a(f"ds_write_b64 v{WRA}, {v(p,2)} offset:{slot*SL}")
    CA = 44; CB = 48
    put(W_, 0, True)
    cur = W_
    for j in range(1, 16):
        nxt = CA if cur != CA else CB
        cmul2(a, nxt, cur, Z16)
        put(nxt, j, True)
        cur = nxt
    RF = 52
    for s_ in range(8):
        a(f"ds_read_b128 {v(RF+4*s_,4)}, v{RDA} offset:{64*s_}")
    base(Z1, 1)
    base(Z256, 256)
    EV = 84
    ONE = 6
    a(f"v_mov_b32 v{ONE}, 0x3f80")
    a(f"v_mov_b32 v{ONE+1}, 0x3f80")
    a(f"ds_write_b64 v{WRA}, {v(ONE,2)} offset:0")
    put(Z1, 1)
    cur = Z1
    for j in range(2, 16):
        nxt = EV + 4 * (j // 2 - 1) if j % 2 == 0 else CA
        cmul2(a, nxt, cur, Z1)
        put(nxt, j)
        cur = nxt
    LF = 112
    D = 16
    def tile(t):
        for s_ in range(4):
            a(f"ds_read_b128 {v(LF+4*s_,4)}, v{RDA} offset:{64*s_}")
    def tile_mfma(t):
        for s_ in range(4):
            a(f"s_waitcnt lgkmcnt({3-s_})")
            a(f"v_mfma_f32_16x16x32_bf16 {v(D+4*t,4)}, {v(LF+4*s_,4)}, {v(RF+4*s_,4)}, {'0' if s_==0 else v(D+4*t,4)}")
        for s_ in range(4, 8):
            a(f"ds_read_b128 {v(LF+4*(s_-4),4)}, v{RDA} offset:{64*s_}")
        for s_ in range(4, 8):
            a(f"s_waitcnt lgkmcnt({7-s_})")
            a(f"v_mfma_f32_16x16x32_bf16 {v(D+4*t,4)}, {v(LF+4*(s_-4),4)}, {v(RF+4*s_,4)}, {v(D+4*t,4)}")
    ev = lambda j: EV + 4 * (j // 2 - 1)
    tile(0)
    Z512 = 32; Z768 = 36
    cmul2(a, Z512, Z256, Z256)
    cmul2(a, Z768, Z512, Z256)
    tile_mfma(0)
    put(Z256, 0)
    for m in range(1, 8):
        cmul2(a, CA, Z256, ev(2 * m)); put(CA, m)
    for k, zb in ((8, Z512), (12, Z768)):
        put(zb, k)
        for i in range(1, 4):
            cmul2(a, CA, zb, ev(4 * i)); put(CA, k + i)
    tile(1)
    Z1024 = 88;
    cmul2(a, CB, Z512, Z512)
    tile_mfma(1)
    cur = CB
    oth = {CB: 36, 36: CB}
    for aa in range(4):
        put(cur, 2 * aa)
        cmul2(a, CA, cur, ev(8)); put(CA, 2 * aa + 1)
        nxt = oth[cur]
        cmul2(a, nxt, cur, Z256)
        cur = nxt
    put(cur, 8)
    tile(2)
    tile_mfma(2)
    a.stamp(1)
    a(f"v_lshlrev_b32 v{DSK}, 16, v{DSK}")
    a("s_mov_b64 exec, 1")
    a(f"v_add_f32 v{D}, v{D}, v{DSK}")
    a("s_mov_b64 exec, -1")
    TP = 52
    for t in range(3):
        for r in range(4):
            a(f"v_cvt_pk_bf16_f32 v{TP+4*t+r}, v{D+4*t+r}, v{D+4*t+r}")
    a(f"ds_write_b128 v{TB0}, {v(TP,4)}")
    a(f"ds_write_b128 v{TB1}, {v(TP+4,4)}")
    a(f"ds_write_b64 v{TB2}, {v(TP+8,2)}")
    a(f"ds_write_b64 v{TB2}, {v(TP+10,2)} offset:128")
    RA = 2
    a(f"v_lshlrev_b32 v{RA}, 3, v0")
    a(f"v_lshlrev_b32 v{RA+1}, 2, v0")
    a(f"v_add_u32 v{RA+2}, 128, v{RA+1}")
    a(f"v_cmp_gt_u32 vcc, 32, v0")
    a(f"v_cndmask_b32 v{RA}, v{RA+2}, v{RA}, vcc")
    a(f"v_lshl_add_u32 v{RA}, v{RA}, 2, s8")
    a(f"v_lshl_add_u32 v{RA+2}, v0, 3, s8")
    a(f"v_add_u32 v{RA+1}, s8, v{RA+1}")
    E0 = 64; E1 = 72; E2 = 76; E3 = 78
    a(f"ds_read_b128 {v(E0,4)}, v{RA}")
    a(f"ds_read_b128 {v(E0+4,4)}, v{RA} offset:16")
    a(f"ds_read_b64 {v(E1,2)}, v{RA+2} offset:{384*4}")
    a(f"ds_read_b32 v{E1+2}, v{RA+2} offset:{384*4+8}")
    a(f"ds_read_b32 v{E2}, v{RA+1} offset:{512*4}")
    a(f"ds_read_b32 v{E2+1}, v{RA+1} offset:{513*4}")
    a(f"ds_read_b32 v{E3}, v{RA+1} offset:{576*4}")
    a(f"ds_read_b32 v{E3+1}, v{RA+1} offset:{577*4}")
    a(f"v_lshlrev_b32 v{RA+3}, 4, v0")
    a(f"v_sub_u32 v{RA+3}, {63*16}, v{RA+3}")
    if FUSED:
        a(f"v_add_u32 v{RA+3}, s7, v{RA+3}")
    else:
        a(f"s_mul_i32 s12, s4, {KCS}")
        a(f"s_add_u32 s12, s12, {KC}")
    def kst(r, off):
        if FUSED: a(f"ds_write_b128 v{RA+3}, {v(r,4)} offset:{off}")
        else: a(f"buffer_store_dwordx4 {v(r,4)}, v{RA+3}, {SWS}, s12 offen offset:{off}{SC}")
    a("s_mov_b32 s13, 0xffff")
    a(f"v_and_b32 v{RA+4}, 1, v0")
    a(f"v_sub_u32 v{RA+4}, 0, v{RA+4}")
    a(f"v_or_b32 v{RA+4}, 0xffff, v{RA+4}")
    O = 84
    a("s_waitcnt lgkmcnt(0)")
    a(f"v_bfi_b32 v{O}, s13, v{E0+4}, v{E0+3}")
    a(f"v_mov_b32 v{O+1}, v{E0+2}")
    a(f"v_bfi_b32 v{O+2}, s13, v{E0+2}, v{E0+1}")
    a(f"v_mov_b32 v{O+3}, v{E0}")
    a("s_mov_b64 exec, 0xffffffff")
    for i in range(4):
        a(f"v_bfi_b32 v{O+i}, s13, v{E0+7-2*i}, v{E0+6-2*i}")
    a("s_mov_b64 exec, -1")
    kst(O, 192*16)
    a(f"v_mov_b32 v{O+4}, v{E1+2}")
    a(f"v_mov_b32 v{O+5}, v{E1+1}")
    a(f"v_bfi_b32 v{O+6}, s13, v{E1+1}, v{E1}")
    a(f"v_mov_b32 v{O+7}, v{E1}")
    kst(O+4, 128*16)
    for u, E in enumerate((E2, E3)):
        o = O + 8 + 4 * u
        a(f"v_mov_b32 v{o}, v{E+1}")
        a(f"v_bfi_b32 v{o+1}, v{RA+4}, v{E+1}, v{E}")
        a(f"v_mov_b32 v{o+2}, v{E}")
        a(f"v_mov_b32 v{o+3}, v{E}")
        kst(o, (64-64*u)*16)
    for i in range(4): a(f"v_mov_b32 v{O+16+i}, 0")
    if FUSED:
        a(f"v_lshl_add_u32 v{RA}, v0, 4, s7")
        a("s_mov_b64 exec, 0xf")
        for c in range(4): a(f"ds_write_b128 v{RA}, {v(O+16,4)} offset:{c*4160 + 4096}")
        a("s_mov_b64 exec, -1")
        for g in range(4):
            a(f"ds_read_b128 {v(16+8*g,4)}, v{RA} offset:{g*1024}")
            a(f"ds_read_b64 {v(20+8*g,2)}, v{RA} offset:{g*1024+16}")
        for g in range(4):
            d = 16 + 8*g; w = 52 + 12*(g & 1)
            if g == 0: a("s_waitcnt lgkmcnt(6)")
            if g == 1: a("s_waitcnt lgkmcnt(7)")
            if g == 2: a("s_waitcnt lgkmcnt(8)")
            if g == 3: a("s_waitcnt lgkmcnt(3)")
            for i in range(4): a(f"v_alignbit_b32 v{w+i}, v{d+i+1}, v{d+i}, 16")
            for i in range(4): a(f"v_mov_b32 v{w+4+i}, v{d+i+1}")
            for i in range(4): a(f"v_alignbit_b32 v{w+8+i}, v{d+i+2}, v{d+i+1}, 16")
            for c in range(1, 4): a(f"ds_write_b128 v{RA}, {v(w+4*(c-1),4)} offset:{c*4160 + g*1024}")
        fin(a)
        return
    a(f"v_mov_b32 v{RA}, 4096")
    a("s_mov_b64 exec, 1")
    a(f"buffer_store_dwordx4 {v(O+16,4)}, v{RA}, {SWS}, s12 offen")
    a.end()

def trans_role(a):
    SX = "s[52:55]"
    T = 2; RA = 16; D = 32
    if not FUSED: xt_role(a)
    wof_role(a)

def xt_role(a):
    a("s_mul_i32 s7, s3, 13312")
    srd(a, 52, 16, 2048 * 1280)
    SX = "s[52:55]"
    T = 2
    a("s_mul_i32 s5, s4, 205")
    a("s_lshr_b32 s5, s5, 11")
    a("s_mul_i32 s6, s5, 10")
    a("s_sub_u32 s6, s4, s6")
    a(f"s_mul_i32 s8, s5, {64*1280}")
    a("s_lshl_b32 s9, s6, 7")
    a("s_add_u32 s8, s8, s9")
    a(f"v_lshrrev_b32 v{T}, 3, v0")
    a(f"v_and_b32 v{T+1}, 7, v0")
    a(f"v_xor_b32 v{T+2}, v{T}, v{T+1}")
    a(f"v_mul_u32_u24 v{T+3}, 1280, v{T}")
    a(f"v_lshl_add_u32 v{T+4}, v{T+2}, 4, v{T+3}")
    for e in range(8):
        a(f"s_add_u32 m0, s7, {e*1024}")
        a(f"s_add_u32 s10, s8, {e*8*1280}")
        a(f"buffer_load_dwordx4 v{T+4}, {SX}, s10 offen lds")
    a(f"v_lshrrev_b32 v{T}, 4, v0")
    a(f"v_bfe_u32 v{T+6}, v0, 2, 2")
    a(f"v_lshl_add_u32 v{T+7}, v{T}, 3, v{T+6}")
    a(f"v_bfe_u32 v{T+8}, v0, 1, 1")
    a(f"v_lshl_add_u32 v{T+7}, v{T+8}, 5, v{T+7}")
    a(f"v_lshlrev_b32 v{T+7}, 7, v{T+7}")
    a(f"v_and_b32 v{T+8}, 1, v0")
    a(f"v_lshl_add_u32 v{T+7}, v{T+8}, 3, v{T+7}")
    a(f"v_lshl_add_u32 v{T+7}, v{T+6}, 4, v{T+7}")
    RA = 16
    for cg in range(8):
        a(f"v_xor_b32 v{RA+cg}, {cg*16}, v{T+7}")
        a(f"v_add_u32 v{RA+cg}, s7, v{RA+cg}")
    a(f"v_lshlrev_b32 v{T+9}, 12, v{T+1}")
    a(f"v_lshl_add_u32 v{T+9}, v{T}, 4, v{T+9}")
    a(f"v_bfe_u32 v{T+8}, v0, 3, 1")
    a(f"v_lshl_add_u32 v{T+9}, v{T+8}, 6, v{T+9}")
    a(f"s_lshl_b32 s10, s6, 18")
    a("s_lshl_b32 s11, s5, 7")
    a("s_add_u32 s10, s10, s11")
    a(f"s_add_u32 s10, s10, {XT}")
    a("s_waitcnt vmcnt(0)")
    D = 32
    for cg in range(8):
        a(f"ds_read_b64_tr_b16 {v(D+4*cg,2)}, v{RA+cg}")
        a(f"ds_read_b64_tr_b16 {v(D+4*cg+2,2)}, v{RA+(cg^4)} offset:512")
    for cg in range(8):
        a(f"s_waitcnt lgkmcnt({(7-cg)*2})")
        a(f"buffer_store_dwordx4 {v(D+4*cg,4)}, v{T+9}, {SWS}, s10 offen{SC}")
        if cg < 7: a(f"s_add_u32 s10, s10, {8*4096}")
    a.end()

def wof_role(a):
    SX = "s[52:55]"
    T = 2; RA = 16; D = 32
    a.label("K1_WOT")
    a("s_mul_i32 s7, s3, 13312")
    srd(a, 52, 20, 640 * 1280)
    a("s_mul_i32 s5, s4, 205")
    a("s_lshr_b32 s5, s5, 10")
    a("s_mul_i32 s6, s5, 5")
    a("s_sub_u32 s6, s4, s6")
    a(f"s_mul_i32 s8, s5, {40*1280}")
    a("s_lshl_b32 s9, s6, 8")
    a("s_add_u32 s8, s8, s9")
    a(f"v_lshrrev_b32 v{T}, 4, v0")
    a(f"v_and_b32 v{T+1}, 15, v0")
    a(f"v_lshlrev_b32 v{T+2}, 2, v{T}")
    a(f"v_xor_b32 v{T+2}, v{T+2}, v{T+1}")
    a(f"v_mul_u32_u24 v{T+3}, 1280, v{T}")
    a(f"v_lshl_add_u32 v{T+4}, v{T+2}, 4, v{T+3}")
    for e in range(10):
        a(f"s_add_u32 m0, s7, {e*1024}")
        a(f"s_add_u32 s10, s8, {e*4*1280}")
        a(f"buffer_load_dwordx4 v{T+4}, {SX}, s10 offen lds")
    a(f"v_bfe_u32 v{T+6}, v0, 2, 2")
    a(f"v_lshlrev_b32 v{T+7}, 8, v{T+6}")
    a(f"v_and_b32 v{T+8}, 3, v0")
    a(f"v_lshl_add_u32 v{T+7}, v{T+8}, 3, v{T+7}")
    a(f"v_bfe_u32 v{T+8}, v0, 4, 1")
    a(f"v_lshl_add_u32 v{T+7}, v{T+8}, 5, v{T+7}")
    a(f"v_lshrrev_b32 v{T+8}, 5, v0")
    a(f"v_xor_b32 v{T+8}, v{T+8}, v{T+6}")
    a(f"v_lshl_add_u32 v{T+7}, v{T+8}, 6, v{T+7}")
    a(f"v_xor_b32 v{RA+1}, 128, v{T+7}")
    a(f"v_add_u32 v{RA}, s7, v{T+7}")
    a(f"v_add_u32 v{RA+1}, s7, v{RA+1}")
    a("s_lshl_b32 s11, s6, 3")
    for cs in range(2):
        a(f"v_add_u32 v{T+10}, s11, v{T}")
        if cs: a(f"v_add_u32 v{T+10}, 4, v{T+10}")
        a(f"v_mul_u32_u24 v{T+11}, 205, v{T+10}")
        a(f"v_lshrrev_b32 v{T+11}, 10, v{T+11}")
        a(f"v_mul_u32_u24 v{T+11}, 95, v{T+11}")
        a(f"v_add_u32 v{T+10}, v{T+10}, v{T+11}")
        a(f"v_lshlrev_b32 v{T+10}, 10, v{T+10}")
        a(f"v_lshl_add_u32 v{RA+2+cs}, v{T+1}, 4, v{T+10}")
    a("s_lshr_b32 s9, s5, 2")
    a("s_mul_i32 s9, s9, 25600")
    a(f"s_add_u32 s9, s9, {WOF}")
    a("s_and_b32 s12, s5, 3")
    a("s_lshl_b32 s13, s12, 8")
    a("s_add_u32 s13, s13, s9")
    a("s_add_u32 s13, s13, 20480")
    a("s_mul_i32 s12, s12, 5120")
    a("s_add_u32 s9, s9, s12")
    a("s_waitcnt vmcnt(0)")
    rows = [(0, 8), (4, 12), (20, 28), (24, 32), (16, 36)]
    for gi in range(5):
        for cs in range(2):
            for s_ in range(2):
                a(f"ds_read_b64_tr_b16 {v(D+(gi*2+cs)*4+2*s_,2)}, v{RA+cs} offset:{rows[gi][s_]*256}")
        if gi == 2: a("s_waitcnt lgkmcnt(4)")
    a("s_waitcnt lgkmcnt(0)")
    for gi in range(5):
        for cs in range(2):
            a(f"buffer_store_dwordx4 {v(D+(gi*2+cs)*4,4)}, v{RA+2+cs}, {SWS}, s{9 if gi < 4 else 13} offen offset:{gi*256 if gi < 4 else 0}{SC}")
    fin(a)

LAUNCH = "; @launch kernel=k1_kernel grid=(512,1,1) block=(512,1,1) lds=81920"
NX = 3; NW = 4; IL = 0; ROT = 0; L2W = 0; ST = 0
def k1(a, sc="", scq="", pf=0, only="", ldm="", nx=3, nw=4, gp=0, il=1, ap=0, rot=1, swap=0, l2w=0, st=0, ct=0):
    global SC, SCQ, PF, LDM, NX, NW, IL, ROT, L2W, ST
    ST = st
    L2W = l2w
    ROT = rot
    IL = il
    NX = nx; NW = nw
    LDM = ldm
    SC = sc; SCQ = scq; PF = pf
    kernel_header(a, "k1_kernel")
    a(f"s_cmp_ge_u32 s2, {240 if only == 'gemm' else 512}")
    a("s_cbranch_scc1 K1_EXIT")
    if only == "aux":
        a(f"s_cmp_lt_u32 s2, 240")
        a("s_cbranch_scc1 K1_EXIT")
    if swap: a("s_xor_b32 s2, s2, 256")
    a.tstart()
    common_prologue(a)
    a("s_cmp_ge_u32 s2, 240")
    a("s_cbranch_scc1 K1_AUX")
    if gp: a(f"s_setprio {gp}")
    gemm_role(a)
    a.label("K1_AUX")
    if ap: a(f"s_setprio {ap}")
    a("s_cmp_ge_u32 s3, 6")
    a("s_cbranch_scc1 K1_EXIT")
    a("s_sub_u32 s5, s2, 256")
    a("s_cmp_ge_u32 s5, 240")
    a("s_cbranch_scc1 K1_AUXA")
    a("s_cmp_ge_u32 s3, 4")
    a("s_cbranch_scc1 K1_EXIT")
    a("s_lshl_b32 s4, s5, 1")
    a("s_add_u32 s4, s4, s3")
    a("s_and_b32 s6, s5, 7")
    a("s_lshr_b32 s7, s5, 3")
    aux_prologue(a)
    a("s_cmp_lt_u32 s3, 2")
    a("s_cbranch_scc1 K1_KGEN")
    a("s_mul_i32 s4, s6, 40")
    a("s_add_u32 s4, s4, s7")
    a("s_cmp_eq_u32 s3, 2")
    a("s_cbranch_scc1 K1_TRANS")
    a("s_add_u32 s4, s4, 30")
    a("s_cmp_lt_u32 s7, 10")
    a("s_cbranch_scc1 K1_TRANS")
    a("s_lshl_b32 s4, s6, 3")
    a("s_add_u32 s4, s4, s7")
    a("s_sub_u32 s4, s4, 10")
    a("s_cmp_lt_u32 s7, 18")
    a("s_cbranch_scc1 K1_GATE")
    a("s_sub_u32 s4, s5, 144")
    a("s_cmp_lt_u32 s7, 28")
    a("s_cbranch_scc1 K1_WOT")
    a("s_endpgm ")
    a.label("K1_AUXA")
    aux_prologue(a)
    a("s_and_b32 s4, s2, 15")
    a("s_lshr_b32 s5, s2, 8")
    a("s_lshl_b32 s5, s5, 4")
    a("s_add_u32 s4, s4, s5")
    a("s_mul_i32 s4, s4, 5")
    a("s_add_u32 s4, s4, s3")
    a("s_add_u32 s4, s4, 480")
    a("s_cmp_lt_u32 s3, 5")
    a("s_cbranch_scc1 K1_KGEN")
    if ct:
        a("s_getpc_b64 s[60:61]")
        a.label("K1_CT")
        a("s_add_u32 s60, s60, k2_kernel-K1_CT")
        a("s_addc_u32 s61, s61, 0")
        a("v_lshlrev_b32 v8, 7, v0")
        for n in range(2):
            a(f"v_min_u32 v{9+n}, K2_EXIT-k2_kernel-4, v8")
            a(f"global_load_dword v{9+n}, v{9+n}, s[60:61]")
            if n == 0: a("v_add_u32 v8, 0x2000, v8")
        a("s_waitcnt vmcnt(0)")
    a("s_cmp_lg_u32 s2, 511")
    a("s_cbranch_scc1 K1_EXIT")
    for i in range(4): a(f"v_mov_b32 v{4+i}, 0")
    a("v_lshlrev_b32 v2, 4, v0")
    a(f"s_mov_b32 s4, {FL}")
    for i in range(32):
        a(f"buffer_store_dwordx4 v[4:7], v2, {SWS}, s4 offen")
        if i < 31: a("s_add_u32 s4, s4, 1024")
    a("s_endpgm ")
    a.label("K1_GATE"); gate_role(a)
    a.label("K1_KGEN")
    if 'K' in only: a("s_endpgm ")
    kgen_role(a)
    a.label("K1_TRANS")
    if 'T' in only: a("s_endpgm ")
    trans_role(a)
    a.label("K1_EXIT"); a("s_endpgm ")
    kernel_desc(a, "k1_kernel", 128)
```
